```python
import torch

def _softmax(x, axis=-1):
    return torch.softmax(x, dim=axis)
def _gelu(x):
    return torch.nn.functional.gelu(x, approximate="tanh")
def _silu(x):
    return torch.nn.functional.silu(x)
def _sigmoid(x):
    return torch.sigmoid(x)
def _layernorm(x, axis=-1, eps=1e-5):
    m = x.mean(dim=axis, keepdim=True)
    v = x.var(dim=axis, keepdim=True, unbiased=False)
    return (x - m) / torch.sqrt(v + eps)
def _scatter_add(tgt, idx, src, axis=0):
    return tgt.clone().index_add_(axis, idx, src)
def _segment_sum(src, seg, n):
    out = torch.zeros((n,) + src.shape[1:], dtype=src.dtype)
    return out.index_add_(0, seg, src)
def _pad(x, pw):
    flat = tuple(v for pair in reversed(pw) for v in pair)
    return torch.nn.functional.pad(x, flat)

kernel_name = 'concat_heads__softmax_full_mha__spectral_gfnet__prompt'

def setup_inputs():

    _w = (lambda a: (lambda t: t.to(torch.bfloat16) if t.is_floating_point() else t)(torch.as_tensor(a)))
    def _A_setup():
        B, S, D = 1, 2048, 448
        return {
            "x": _w((lambda *s: torch.randn(*s, dtype=torch.bfloat16) * 0.2)(B, S, D)),
            "wqkv": _w((lambda *s: torch.randn(*s, dtype=torch.bfloat16) * 0.2)(D, 3 * D)),
            "wo": _w((lambda *s: torch.randn(*s, dtype=torch.bfloat16) * 0.05)(D, D)),
        }
    _A_in = _A_setup()

    def _B_setup():
        B, S, D = 1, 2048, 448
        Df = D // 2 + 1
        return {
            "x": _w((lambda *s: torch.randn(*s, dtype=torch.bfloat16) * 0.05)(B, S, D)),
            "w_r": _w((lambda *s: torch.randn(*s, dtype=torch.bfloat16) * 6.4)(S, Df) * 0.02),
            "w_i": _w((lambda *s: torch.randn(*s, dtype=torch.bfloat16) * 6.4)(S, Df) * 0.02),
        }
    _B_in = _B_setup()

    return {
        "A_x": _A_in["x"],
        "A_wqkv": _A_in["wqkv"],
        "A_wo": _A_in["wo"],
        "B_x": _B_in["x"],
        "B_w_r": _B_in["w_r"],
        "B_w_i": _B_in["w_i"],
    }

def reference(A_x, A_wqkv, A_wo, B_x, B_w_r, B_w_i):
    def _A_ref(x, wqkv, wo):
        B, S, D = x.shape
        H = 16; Dh = D // H
        qkv = (lambda x, *d: x.permute(*d))((x @ wqkv).reshape(B, S, 3, H, Dh), 2, 0, 3, 1, 4)
        q, k, v = qkv[0], qkv[1], qkv[2]
        scale = Dh ** -0.5
        scores = torch.einsum("bhqd,bhkd->bhqk", q, k) * scale
        p = _softmax(scores, axis=-1)
        o = torch.einsum("bhqk,bhkd->bhqd", p, v)
        return (lambda x, *d: x.permute(*d))(o, 0, 2, 1, 3).reshape(B, S, D) @ wo

    def _B_ref(x, w_r, w_i):
        B, S, D = x.shape
        X = (lambda x, axes=(-2,-1): torch.fft.rfft2(x.float(), dim=axes))(x, axes=(-2, -1))
        W = w_r + 1j * w_i
        X = X * W
        y = (lambda x, s, axes=(-2,-1): torch.fft.irfft2(x, s=s, dim=axes).to(torch.bfloat16))(X, (S, D), axes=(-2, -1))
        return y

    a = _A_ref(A_x, A_wqkv, A_wo)
    b = _B_ref(B_x, B_w_r, B_w_i)
    return torch.concatenate([a, b], axis=-1)
```

```python
import re

class Asm:
    def __init__(self):
        self.lines = []
    def __call__(self, s):
        for ln in s.split("\n"):
            ln = ln.strip()
            if ln:
                self.lines.append(ln)
    def label(self, name):
        self.lines.append(name + ":")
    def text(self):
        out = []
        for ln in self.lines:
            if ln.endswith(":") or ln.startswith("."):
                out.append(ln)
            else:
                out.append("    " + ln)
        return "\n".join(out) + "\n"

def vr(base, n=1):
    return f"v{base}" if n == 1 else f"v[{base}:{base+n-1}]"
def sr(base, n=1):
    return f"s{base}" if n == 1 else f"s[{base}:{base+n-1}]"

_REG = re.compile(r"\b([vsa])(\d+)\b|\b([vsa])\[(\d+):(\d+)\]")
def regs_in(op):
    out = []
    for m in _REG.finditer(op):
        if m.group(1):
            out.append((m.group(1), int(m.group(2))))
        else:
            for i in range(int(m.group(4)), int(m.group(5)) + 1):
                out.append((m.group(3), i))
    return out

TRANS = ("v_exp_", "v_log_", "v_rcp_", "v_rsq_", "v_sqrt_", "v_sin_", "v_cos_")
def mfma_passes(mn):
    if "32x32x16" in mn: return 8
    if "16x16x32" in mn: return 4
    raise ValueError(mn)

class Ins:
    __slots__ = ("text", "mn", "cls", "wr", "rd", "srcC", "ws", "idx", "wr_sgpr", "rd_sgpr", "wr_vcc", "rd_vcc", "wr_exec","wr_m0","lds_dma")
    def __init__(self, text):
        self.text = text
        t = text.split(";")[0].strip()
        parts = t.split(None, 1)
        self.mn = mn = parts[0]
        ops = [o.strip() for o in re.split(r",(?![^\[]*\])", parts[1])] if len(parts) > 1 else []
        self.ws = 1
        self.wr, self.rd, self.srcC = set(), set(), set()
        self.wr_sgpr, self.rd_sgpr = set(), set()
        self.wr_vcc = self.rd_vcc = self.wr_exec = self.wr_m0 = self.lds_dma = False
        def V(o): return {r for r in regs_in(o) if r[0] in "va"}
        def S(o): return {r for r in regs_in(o) if r[0] == "s"}
        if mn == "s_nop":
            self.cls = "salu"; self.ws = int(ops[0], 0) + 1
        elif mn.startswith("v_mfma"):
            self.cls = "mfma"
            self.wr = V(ops[0]); self.rd = V(ops[1]) | V(ops[2]); self.srcC = V(ops[3])
        elif mn.startswith("v_"):
            self.cls = "trans" if mn.startswith(TRANS) else "valu"
            if mn.startswith("v_cmp"):
                d = ops[0]
                if d == "vcc": self.wr_vcc = True
                else: self.wr_sgpr = S(d)
                if mn.startswith("v_cmpx"): self.wr_exec = True
                for o in ops[1:]: self.rd |= V(o); self.rd_sgpr |= S(o)
            elif mn.startswith(("v_readfirstlane", "v_readlane")):
                self.wr_sgpr = S(ops[0])
                for o in ops[1:]: self.rd |= V(o); self.rd_sgpr |= S(o)
            elif mn.startswith("v_permlane") and "swap" in mn:
                self.wr = V(ops[0]) | V(ops[1]); self.rd = set(self.wr)
            else:
                self.wr = V(ops[0])
                rest = ops[1:]
                if mn.startswith(("v_add_co", "v_sub_co", "v_addc_co", "v_subb_co")):
                    if rest[0] == "vcc": self.wr_vcc = True
                    rest = rest[1:]
                for o in rest:
                    self.rd |= V(o); self.rd_sgpr |= S(o)
                    if o == "vcc": self.rd_vcc = True
                if mn.startswith(("v_fmac", "v_mac", "v_pk_fmac", "v_writelane")) or "_dpp" in t or "dst_unused:UNUSED_PRESERVE" in t:
                    self.rd |= self.wr
                if mn.startswith("v_cndmask") and len(ops) == 3: self.rd_vcc = True
        elif mn.startswith(("buffer_", "global_")):
            self.cls = "vmem"
            is_lds = re.search(r"\blds\b", t) is not None
            self.lds_dma = is_lds
            if "load" in mn and not is_lds:
                self.wr = V(ops[0])
                for o in ops[1:]: self.rd |= V(o); self.rd_sgpr |= S(o)
            else:
                for o in ops: self.rd |= V(o); self.rd_sgpr |= S(o)
                if "atomic" in mn and "sc0" in t: self.wr = V(ops[0])
        elif mn.startswith("ds_"):
            self.cls = "ds"
            if "read" in mn or "bpermute" in mn or "swizzle" in mn:
                self.wr = V(ops[0])
                for o in ops[1:]: self.rd |= V(o)
            else:
                for o in ops: self.rd |= V(o)
        else:
            self.cls = "salu"
            if ops and ops[0] == "m0": self.wr_m0 = True
            pass

def check(lines, name=""):
    ins = []
    for ln in lines:
        s = ln.strip()
        if not s or s.endswith(":") or s.startswith(".") or s.startswith(";"):
            continue
        ins.append(Ins(s))
    probs = []
    for i, c in enumerate(ins):
        dist = 0
        j = i - 1
        while j >= 0 and dist < 24:
            p = ins[j]
            def need(n, why):
                if dist < n:
                    probs.append(f"{name}: need {n} have {dist}: {why}\n    P[{j}]: {p.text}\n    C[{i}]: {c.text}")
            allc = c.rd | c.srcC
            if p.cls in ("valu", "trans"):
                if c.cls == "mfma" and p.wr & allc: need(2, "VALU write -> MFMA read")
                if p.cls == "trans" and c.cls == "valu" and p.wr & c.rd: need(1, "trans -> VALU")
                if p.cls == "trans" and c.cls == "mfma" and p.wr & allc: need(2, "trans -> mfma")
                if c.mn.startswith(("v_readfirstlane", "v_readlane")) and p.wr & c.rd: need(1, "VALU -> readlane")
                if c.mn.startswith("v_permlane") and p.wr & c.rd: need(2, "VALU -> permlane")
                if "_dpp" in c.text and p.wr & c.rd: need(2, "VALU -> DPP")
                if p.wr_sgpr and c.cls == "vmem" and p.wr_sgpr & c.rd_sgpr: need(5, "VALU sgpr -> VMEM")
                if p.wr_sgpr and c.cls in ("valu", "trans") and p.wr_sgpr & c.rd_sgpr: need(2, "VALU sgpr -> VALU read")
                if p.wr_vcc and c.rd_vcc: need(2, "VALU vcc -> cndmask/carry")
                if p.wr_exec and c.cls == "mfma": need(4, "cmpx exec -> mfma")
            if p.cls == "mfma":
                n = mfma_passes(p.mn)
                big = {4: 8, 8: 12}[n]
                if c.cls == "mfma":
                    if p.wr & c.rd: need(big, "MFMA D -> MFMA A/B")
                    if p.wr & c.srcC:
                        if not (p.wr == c.srcC and mfma_passes(c.mn) == n):
                            need({4: 6, 8: 10}[n], "MFMA D -> overlapped SrcC")
                    if p.wr & c.wr and not (p.wr == c.wr and p.wr == c.srcC) :
                        if not (p.wr == c.wr):
                            need({4: 6, 8: 10}[n], "MFMA D WAW overlapped")
                elif c.cls in ("valu", "trans", "vmem", "ds"):
                    if p.wr & (c.rd | c.wr): need(big, "MFMA D -> VALU/VMEM/DS use")
                    if c.cls in ("valu", "trans") and p.srcC & c.wr: need({4: 3, 8: 7}[n], "MFMA srcC WAR")
            if p.cls == "vmem" and "store" in p.mn and ("x4" in p.mn or "x3" in p.mn):
                if c.cls in ("valu", "trans") and (p.rd & c.wr): need(2, "wide store data WAR")
            if p.cls == "salu" and p.wr_m0 and c.lds_dma: need(1, "m0 -> lds dma")
            dist += p.ws
            j -= 1
    return probs
```

```python
from asmlib import *
QF, KV, X1, WT, OF, UT = 0x000000, 0x200000, 0x600000, 0x800000, 0xA00000, 0xC00000
WS_SIZE = 0xE00000
QSCALE_BITS = 0x3e8b97f7
import struct, math
def f32bits(x): return struct.unpack("<I", struct.pack("<f", x))[0]
QSCALE = f32bits((28 ** -0.5) * math.log2(math.e))

def load_ptrs(a):
    a("s_load_dwordx16 s[4:19], s[0:1], 0")
    a("s_load_dwordx2 s[20:21], s[0:1], 64")
def srd(a, d, lo, hi, size):
    a(f"s_mov_b32 s{d}, s{lo}")
    a(f"s_and_b32 s{d+1}, s{hi}, 0xffff")
    a(f"s_mov_b32 s{d+2}, {size}")
    a(f"s_mov_b32 s{d+3}, 0x20000")

def gen_k1(name="k1_kernel"):
    a = Asm()
    N = name
    SX, SW, SWS, SWR, SWI = 24, 28, 32, 36, 40
    ACC = 32
    XF = [64, 68]; WF = [[72, 76], [80, 84]]
    XA = [4, 5, 6, 7]; WA = [8, 9]; VA0, VA1, VW = 10, 11, 12
    SJ = 16
    a(f"s_cmp_ge_u32 s2, 256")
    a(f"s_cbranch_scc1 {N}_end")
    load_ptrs(a)
    a("s_and_b32 s44, s2, 7")
    a("s_lshr_b32 s45, s2, 3")
    a("s_lshr_b32 s46, s44, 1")
    a("s_lshl_b32 s46, s46, 2")
    a("s_and_b32 s47, s45, 3")
    a("s_add_u32 s46, s46, s47")
    a("s_and_b32 s47, s44, 1")
    a("s_lshl_b32 s47, s47, 3")
    a("s_lshr_b32 s48, s45, 2")
    a("s_add_u32 s47, s47, s48")
    a("s_lshr_b32 s48, s47, 2")
    a("s_and_b32 s49, s47, 3")
    a("v_and_b32 v1, 63, v0")
    a("v_lshrrev_b32 v2, 6, v0")
    a("s_nop 0")
    a("v_readfirstlane_b32 s50, v2")
    a("s_getpc_b64 s[52:53]")
    a("s_add_u32 s52, s52, HTAB@rel32@lo+4")
    a("s_addc_u32 s53, s53, HTAB@rel32@hi+12")
    a("s_waitcnt lgkmcnt(0)")
    a("s_cmp_eq_u32 s48, 3")
    a("s_cselect_b32 s54, s10, s4")
    a("s_cselect_b32 s55, s11, s5")
    srd(a, SX, 54, 55, 2048*896)
    a("s_cmp_eq_u32 s48, 3")
    a("s_cselect_b32 s54, s52, s6")
    a("s_cselect_b32 s55, s53, s7")
    a(f"s_mov_b32 s{SW}, s54")
    a(f"s_and_b32 s{SW+1}, s55, 0xffff")
    a("s_cmp_eq_u32 s48, 3")
    a(f"s_mov_b32 s56, {448*2688}")
    a(f"s_cselect_b32 s{SW+2}, {448*896}, s56")
    a(f"s_mov_b32 s{SW+3}, 0x20000")
    a(f"s_movk_i32 s56, 2688")
    a(f"s_cselect_b32 s56, 896, s56")
    srd(a, SWS, 20, 21, WS_SIZE)
    srd(a, SWR, 12, 13, 2048*450)
    srd(a, SWI, 14, 15, 2048*450)
    a("s_mul_i32 s57, s48, 896")
    a("s_cmp_eq_u32 s48, 3")
    a("s_cselect_b32 s57, 0, s57")
    a("s_mul_i32 s58, s49, 224")
    a("s_add_u32 s57, s57, s58")
    a("s_and_b32 s58, s50, 3")
    a("s_lshl_b32 s58, s58, 6")
    a(f"v_add_u32 v{SJ+8}, s58, v1")
    a("s_lshr_b32 s59, s50, 2")
    a("s_lshl_b32 s60, s2, 1")
    a("s_add_u32 s59, s59, s60")
    a("s_and_b32 s60, s59, 15")
    a("s_lshr_b32 s61, s59, 7")
    a("s_lshl_b32 s61, s61, 4")
    a("s_add_u32 s60, s60, s61")
    a("s_lshr_b32 s61, s59, 6")
    a("s_and_b32 s61, s61, 1")
    a("s_lshl_b32 s61, s61, 4")
    a("s_lshr_b32 s62, s59, 4")
    a("s_and_b32 s62, s62, 3")
    a("s_lshl_b32 s62, s62, 2")
    a("s_add_u32 s61, s61, s62")
    a("s_lshl_b32 s61, s61, 6")
    a("s_add_u32 s60, s60, s61")
    a("s_mul_i32 s60, s60, 450")
    a(f"v_lshlrev_b32 v{SJ+9}, 1, v{SJ+8}")
    for i in range(4):
        a(f"s_add_u32 s61, s60, {i*28800}")
        a(f"buffer_load_ushort v{SJ+i}, v{SJ+9}, s[{SWR}:{SWR+3}], s61 offen")
        a(f"buffer_load_ushort v{SJ+4+i}, v{SJ+9}, s[{SWI}:{SWI+3}], s61 offen")
    a("v_lshrrev_b32 v2, 3, v1")
    a("s_lshl_b32 s58, s50, 4")
    a("v_add_u32 v2, s58, v2")
    a("v_add_u32 v3, 8, v2")
    a("s_cmp_eq_u32 s48, 3")
    a(f"s_cbranch_scc1 {N}_tokX")
    a("s_lshl_b32 s58, s46, 7")
    a("v_add_u32 v13, s58, v2")
    a("v_add_u32 v14, s58, v3")
    a(f"s_branch {N}_tokdone")
    a(f"{N}_tokX:")
    a("s_lshr_b32 s58, s46, 1")
    a("s_lshl_b32 s58, s58, 8")
    a("s_and_b32 s59, s46, 1")
    a("s_lshl_b32 s59, s59, 4")
    a("s_add_u32 s58, s58, s59")
    for (r, t) in ((2, 13), (3, 14)):
        a(f"v_and_b32 v15, 3, v{r}")
        a(f"v_lshlrev_b32 v{t}, 5, v15")
        a(f"v_bfe_u32 v15, v{r}, 3, 1")
        a(f"v_lshl_add_u32 v{t}, v15, 7, v{t}")
        a(f"v_lshrrev_b32 v15, 5, v{r}")
        a(f"v_lshl_add_u32 v{t}, v15, 2, v{t}")
        a(f"v_bfe_u32 v15, v{r}, 4, 1")
        a(f"v_lshl_add_u32 v{t}, v15, 1, v{t}")
        a(f"v_bfe_u32 v15, v{r}, 2, 1")
        a(f"v_add_u32 v{t}, v{t}, v15")
        a(f"v_add_u32 v{t}, s58, v{t}")
    a(f"{N}_tokdone:")
    a("s_movk_i32 s58, 896")
    for (r, t, o) in ((2, 13, VA0), (3, 14, VA1)):
        a(f"v_mul_lo_u32 v{t}, v{t}, s58")
        a(f"v_bfe_u32 v15, v{r}, 1, 3")
        a(f"v_and_b32 v25, 7, v1")
        a(f"v_xor_b32 v15, v15, v25")
        a(f"v_lshl_add_u32 v{o}, v15, 4, v{t}")
    a("v_lshrrev_b32 v2, 4, v1")
    a("s_lshl_b32 s58, s50, 3")
    a("v_add_u32 v3, s58, v2")
    a("v_mul_lo_u32 v3, v3, s56")
    a("v_lshlrev_b32 v15, 2, v2")
    a("v_and_b32 v25, 15, v1")
    a("v_xor_b32 v15, v15, v25")
    a(f"v_lshl_add_u32 v{VW}, v15, 4, v3")
    a(f"v_add_u32 v{VW}, s57, v{VW}")
    a("s_lshl_b32 s59, s56, 2")
    a("s_lshl_b32 s60, s56, 6")
    a("s_lshl_b32 s61, s50, 11")
    def dma(c):
        slot = c % 5
        a(f"s_add_u32 m0, s61, {slot*32768}")
        a(f"s_mov_b32 s62, {c*128}")
        a(f"buffer_load_dwordx4 v{VA0}, s[{SX}:{SX+3}], s62 offen lds")
        a(f"s_add_u32 m0, s61, {slot*32768+1024}")
        a(f"s_mul_i32 s63, s60, {c}")
        a(f"buffer_load_dwordx4 v{VA1}, s[{SX}:{SX+3}], s62 offen lds")
        a(f"s_add_u32 m0, s61, {slot*32768+16384}")
        a(f"s_add_u32 s62, s63, s59")
        a(f"buffer_load_dwordx4 v{VW}, s[{SW}:{SW+3}], s63 offen lds")
        a(f"s_add_u32 m0, s61, {slot*32768+16384+1024}")
        a(f"s_nop 0")
        a(f"buffer_load_dwordx4 v{VW}, s[{SW}:{SW+3}], s62 offen lds")
    for c in range(5):
        dma(c)
    a("s_and_b32 s62, s50, 3")
    a("s_lshl_b32 s62, s62, 12")
    a("v_and_b32 v2, 31, v1")
    a("v_lshlrev_b32 v3, 7, v2")
    a("v_bfe_u32 v15, v1, 1, 3")
    a("v_lshrrev_b32 v25, 5, v1")
    a("v_xor_b32 v15, v15, v25")
    a("v_lshl_add_u32 v3, v15, 4, v3")
    a(f"v_add_u32 v{XA[0]}, s62, v3")
    for kk in range(1, 4):
        a(f"v_xor_b32 v{XA[kk]}, {kk*32}, v{XA[0]}")
    a("v_lshrrev_b32 v2, 5, v1")
    a("v_bfe_u32 v3, v1, 2, 2")
    a("v_lshl_add_u32 v2, v2, 3, v3")
    a("v_lshlrev_b32 v2, 8, v2")
    a("v_add_u32 v2, 16384, v2")
    a("v_bfe_u32 v15, v1, 4, 1")
    a("v_lshlrev_b32 v15, 5, v15")
    a("v_and_b32 v25, 3, v1")
    a("v_lshl_add_u32 v15, v25, 3, v15")
    a("s_lshr_b32 s62, s50, 2")
    a("s_mul_i32 s62, s62, 112")
    a("v_lshlrev_b32 v26, 2, v3")
    for g in range(2):
        a(f"v_add_u32 v25, s62, v15")
        if g: a(f"v_add_u32 v25, 56, v25")
        a(f"v_lshrrev_b32 v27, 4, v25")
        a(f"v_xor_b32 v27, v27, v26")
        a(f"v_and_b32 v25, 15, v25")
        a(f"v_lshl_add_u32 v25, v27, 4, v25")
        a(f"v_add_u32 v{WA[g]}, v2, v25")
    for r in range(ACC, ACC+32):
        a(f"v_mov_b32 v{r}, 0")
    return a, dict(N=N, SX=SX, SW=SW, SWS=SWS, ACC=ACC, XF=XF, WF=WF, XA=XA, WA=WA, SJ=SJ, dma=dma)

def k1_main(a, P, qk):
    XF, WF, XA, WA, ACC, dma = P["XF"], P["WF"], P["XA"], P["WA"], P["ACC"], P["dma"]
    base = [0]
    def reads(n):
        c, kk = n // 4, n % 4
        slot = c % 5
        want = (slot // 2) * 65536
        if want != base[0]:
            d = want - base[0]
            for r in XA + WA:
                a(f"v_add_u32 v{r}, {d & 0xffffffff:#x}, v{r}")
            base[0] = want
        off = slot * 32768 - want
        b = n % 2
        a(f"ds_read_b128 {vr(XF[b],4)}, v{XA[kk]} offset:{off}")
        for g in range(2):
            a(f"ds_read_b64_tr_b16 {vr(WF[b][g],2)}, v{WA[g]} offset:{off + kk*16*256}")
            a(f"ds_read_b64_tr_b16 {vr(WF[b][g]+2,2)}, v{WA[g]} offset:{off + kk*16*256 + 4*256}")
    vm = {0: 16, 1: 12, 2: 12, 3: 12, 4: 8, 5: 4, 6: 0}
    a(f"s_waitcnt vmcnt({vm[0]})")
    a("s_barrier")
    reads(0)
    for n in range(28):
        b = n % 2
        if n + 1 < 28:
            if (n + 1) % 4 == 0:
                c1 = (n + 1) // 4
                a(f"s_waitcnt vmcnt({vm[c1]}) lgkmcnt(0)")
                a("s_barrier")
                if c1 - 1 + 5 <= 6:
                    dma(c1 - 1 + 5)
                reads(n + 1)
            else:
                reads(n + 1)
                a("s_waitcnt lgkmcnt(5)")
        else:
            a("s_waitcnt lgkmcnt(0)")
        for g in range(2):
            d = vr(ACC + 16*g, 16)
            if qk: a(f"v_mfma_f32_32x32x16_bf16 {d}, {vr(WF[b][g],4)}, {vr(XF[b],4)}, {d}")
            else:  a(f"v_mfma_f32_32x32x16_bf16 {d}, {vr(XF[b],4)}, {vr(WF[b][g],4)}, {d}")
    a("s_nop 15")

def k1_side_store(a, P):
    SJ, SWS = P["SJ"], P["SWS"]
    N = P["N"]
    a("s_lshr_b32 s59, s50, 2")
    a("s_lshl_b32 s60, s2, 1")
    a("s_add_u32 s59, s59, s60")
    a("s_lshl_b32 s59, s59, 4")
    a(f"s_add_u32 s59, s59, {WT}")
    for i in range(4):
        a(f"v_lshl_or_b32 v{SJ+i}, v{SJ+4+i}, 16, v{SJ+i}")
    a(f"v_lshlrev_b32 v{SJ+9}, 13, v{SJ+8}")
    a(f"v_cmp_gt_u32 vcc, 225, v{SJ+8}")
    a("s_and_saveexec_b64 s[64:65], vcc")
    a(f"s_cbranch_execz {N}_sj{P['sjn']}")
    a(f"buffer_store_dwordx4 {vr(SJ,4)}, v{SJ+9}, s[{SWS}:{SWS+3}], s59 offen")
    a(f"{N}_sj{P['sjn']}:")
    a("s_mov_b64 exec, s[64:65]")
    P["sjn"] += 1

def pack(a, src, dst, n=8):
    for i in range(n):
        a(f"v_cvt_pk_bf16_f32 v{dst+i}, v{src+2*i}, v{src+2*i+1}")

def gen_k1_full(name="k1_kernel"):
    a, P = gen_k1(name)
    P["sjn"] = 0
    N, ACC, SWS = P["N"], P["ACC"], P["SWS"]
    a("s_cmp_ge_u32 s48, 2")
    a(f"s_cbranch_scc1 {N}_vx")
    k1_main(a, P, True)
    k1_side_store(a, P)
    a("s_lshl_b32 s58, s49, 2")
    a("s_lshr_b32 s59, s50, 2")
    a("s_lshl_b32 s59, s59, 1")
    a("s_add_u32 s58, s58, s59")
    a("s_lshl_b32 s58, s58, 6")
    a("s_lshl_b32 s59, s46, 2")
    a("s_add_u32 s58, s58, s59")
    a("s_and_b32 s59, s50, 3")
    a("s_add_u32 s58, s58, s59")
    a("v_lshlrev_b32 v2, 4, v1")
    a("s_cmp_eq_u32 s48, 1")
    a(f"s_cbranch_scc1 {N}_kep")
    a(f"s_mov_b32 s62, {QSCALE:#x}")
    for r in range(ACC, ACC+32):
        a(f"v_mul_f32 v{r}, s62, v{r}")
    a("s_mov_b32 exec_lo, 0")
    for g in range(2):
        for r in range(12, 16):
            a(f"v_mov_b32 v{ACC+16*g+r}, 0")
    a("s_mov_b32 exec_lo, -1")
    pack(a, ACC, 64, 16)
    a("s_lshl_b32 s58, s58, 11")
    a(f"s_add_u32 s58, s58, {QF}")
    for g in range(2):
        for j in range(2):
            a(f"s_add_u32 s59, s58, {g*64*2048 + j*1024}")
            a(f"buffer_store_dwordx4 {vr(64+8*g+4*j,4)}, v2, s[{SWS}:{SWS+3}], s59 offen")
    a("s_endpgm")
    a(f"{N}_kep:")
    a("s_mov_b32 exec_lo, 0")
    for g in range(2):
        a(f"v_mov_b32 v{ACC+16*g+12}, 1.0")
        for r in range(13, 16):
            a(f"v_mov_b32 v{ACC+16*g+r}, 0")
    a("s_mov_b32 exec_lo, -1")
    pack(a, ACC, 64, 16)
    a("s_lshl_b32 s58, s58, 12")
    a(f"s_add_u32 s58, s58, {KV}")
    for g in range(2):
        for j in range(2):
            a(f"s_add_u32 s59, s58, {g*64*4096 + j*1024}")
            a(f"buffer_store_dwordx4 {vr(64+8*g+4*j,4)}, v2, s[{SWS}:{SWS+3}], s59 offen")
    a("s_endpgm")
    a(f"{N}_vx:")
    k1_main(a, P, False)
    k1_side_store(a, P)
    a("s_cmp_eq_u32 s48, 3")
    a(f"s_cbranch_scc1 {N}_xep")
    a("v_and_b32 v2, 31, v1")
    a("v_cmp_lt_u32 vcc, 27, v2")
    a("s_and_saveexec_b64 s[64:65], vcc")
    a("v_cmp_eq_u32 vcc, 28, v2")
    a("s_nop 1")
    a("v_cndmask_b32 v3, 0, 1.0, vcc")
    for r in range(ACC, ACC+32):
        a(f"v_mov_b32 v{r}, v3")
    a("s_mov_b64 exec, s[64:65]")
    pack(a, ACC, 64, 16)
    a("s_lshl_b32 s58, s49, 2")
    a("s_lshr_b32 s59, s50, 2")
    a("s_lshl_b32 s59, s59, 1")
    a("s_add_u32 s58, s58, s59")
    a("s_lshl_b32 s58, s58, 6")
    a("s_lshl_b32 s59, s46, 2")
    a("s_add_u32 s58, s58, s59")
    a("s_and_b32 s59, s50, 3")
    a("s_add_u32 s58, s58, s59")
    a("s_lshl_b32 s58, s58, 12")
    a(f"s_add_u32 s58, s58, {KV+2048}")
    a("v_lshlrev_b32 v2, 4, v1")
    for g in range(2):
        for j in range(2):
            a(f"s_add_u32 s59, s58, {g*64*4096 + j*1024}")
            a(f"buffer_store_dwordx4 {vr(64+8*g+4*j,4)}, v2, s[{SWS}:{SWS+3}], s59 offen")
    a("s_endpgm")
    a(f"{N}_xep:")
    pack(a, ACC, 64, 16)
    a("s_barrier")
    a("s_lshr_b32 s58, s50, 2")
    a("s_mul_i32 s58, s58, 56")
    a("v_and_b32 v2, 31, v1")
    a("v_lshrrev_b32 v3, 5, v1")
    a("s_and_b32 s59, s50, 3")
    a("s_lshl_b32 s59, s59, 2")
    a("v_add_u32 v3, s59, v3")
    a("v_cmp_gt_u32 vcc, 28, v2")
    a("s_and_saveexec_b64 s[64:65], vcc")
    for g in range(2):
        a(f"v_add_u32 v4, s58, v2")
        if g: a("v_add_u32 v4, 28, v4")
        a("v_and_b32 v5, 15, v4")
        for j in range(2):
            a(f"v_add_u32 v6, {2*j}, v3")
            a("v_xor_b32 v6, v6, v5")
            a("v_lshlrev_b32 v6, 4, v6")
            a("v_lshl_add_u32 v6, v4, 8, v6")
            a(f"ds_write_b128 v6, {vr(64+8*g+4*j,4)}")
    a("s_mov_b64 exec, s[64:65]")
    a("s_waitcnt lgkmcnt(0)")
    a("s_barrier")
    a("s_mul_i32 s58, s49, 112")
    a("s_lshl_b32 s58, s58, 12")
    a("s_lshr_b32 s59, s46, 1")
    a("s_lshl_b32 s59, s59, 9")
    a("s_add_u32 s58, s58, s59")
    a("s_and_b32 s59, s46, 1")
    a("s_lshl_b32 s59, s59, 8")
    a("s_add_u32 s58, s58, s59")
    a(f"s_add_u32 s58, s58, {X1}")
    a("v_lshrrev_b32 v2, 4, v0")
    a("v_and_b32 v3, 15, v0")
    def rb(it):
        a(f"v_add_u32 v4, {32*it}, v2")
        a("v_and_b32 v5, 15, v4")
        a("v_xor_b32 v5, v5, v3")
        a("v_lshlrev_b32 v5, 4, v5")
        a("v_lshl_add_u32 v5, v4, 8, v5")
        a(f"ds_read_b128 {vr(32+4*it,4)}, v5")
        a("v_lshlrev_b32 v6, 12, v4")
        a(f"v_lshl_add_u32 v{8+it}, v3, 4, v6")
    for it in range(3):
        rb(it)
    a("s_waitcnt lgkmcnt(0)")
    for it in range(3):
        a(f"buffer_store_dwordx4 {vr(32+4*it,4)}, v{8+it}, s[{SWS}:{SWS+3}], s58 offen")
    a("v_add_u32 v4, 96, v2")
    a("v_cmp_gt_u32 vcc, 112, v4")
    a("s_and_saveexec_b64 s[64:65], vcc")
    a(f"s_cbranch_execz {N}_end")
    rb(3)
    a("s_waitcnt lgkmcnt(0)")
    a(f"buffer_store_dwordx4 {vr(32+12,4)}, v{8+3}, s[{SWS}:{SWS+3}], s58 offen")
    a(f"{N}_end:")
    a("s_endpgm")
    return a
```

```python
from asmlib import *
from k1 import QF, KV, X1, WT, OF, UT, WS_SIZE, srd, f32bits
import tables
RING = 131072
XB = RING
FLAG = RING + 9216
LDS = FLAG + 64
MF32 = "v_mfma_f32_32x32x16_bf16"
MF16 = "v_mfma_f32_16x16x32_bf16"

def gen_k2(name="k2_kernel"):
    a = Asm()
    N = name
    SWS, SFT = 24, 28
    a("s_cmp_ge_u32 s2, 256")
    a(f"s_cbranch_scc1 {N}_end")
    a("s_load_dwordx2 s[20:21], s[0:1], 64")
    a("v_and_b32 v1, 63, v0")
    a("v_lshrrev_b32 v2, 6, v0")
    a("s_nop 0")
    a("v_readfirstlane_b32 s40, v2")
    a("s_getpc_b64 s[28:29]")
    a("s_add_u32 s28, s28, FTAB@rel32@lo+4")
    a("s_addc_u32 s29, s29, FTAB@rel32@hi+12")
    a("s_and_b32 s29, s29, 0xffff")
    a(f"s_mov_b32 s30, 88064")
    a(f"s_mov_b32 s31, 0x20000")
    a("s_waitcnt lgkmcnt(0)")
    srd(a, SWS, 20, 21, WS_SIZE)
    a("s_cmp_ge_u32 s40, 8")
    a(f"s_cbranch_scc1 {N}_fft")
    gen_attn(a, N, SWS)
    a(f"{N}_fft:")
    gen_fft(a, N, SWS, SFT)
    a(f"{N}_end:")
    a("s_endpgm")
    return a

def gen_attn(a, N, SWS):
    QR = 4
    SA, SB = 16, 32
    PR = 48
    OR_ = 56
    KF = [72, 80]; VF = [88, 96]
    VL, VC, VN = 12, 13, 14
    MR = 15
    T0, T1, T2, T3 = 104, 105, 106, 107
    ws = f"s[{SWS}:{SWS+3}]"
    a("s_and_b32 s41, s2, 7")
    a("s_lshl_b32 s41, s41, 1")
    a("s_bfe_u32 s42, s2, 0x10003")
    a("s_add_u32 s41, s41, s42")
    a("s_lshr_b32 s42, s2, 4")
    a("s_and_b32 s43, s40, 3")
    a("s_lshr_b32 s44, s40, 2")
    a(f"v_lshlrev_b32 v{VL}, 4, v1")
    a("s_lshl_b32 s45, s41, 6")
    a("s_lshl_b32 s46, s42, 2")
    a("s_add_u32 s46, s46, s43")
    a("s_add_u32 s47, s45, s46")
    a("s_lshl_b32 s47, s47, 11")
    a(f"s_add_u32 s47, s47, {QF}")
    a(f"buffer_load_dwordx4 {vr(QR,4)}, v{VL}, {ws}, s47 offen")
    a(f"buffer_load_dwordx4 {vr(QR+4,4)}, v{VL}, {ws}, s47 offen offset:1024")
    a("s_lshl_b32 s48, s44, 5")
    a("s_add_u32 s48, s48, s45")
    a("s_add_u32 s48, s48, s43")
    a("s_lshl_b32 s48, s48, 12")
    a(f"s_add_u32 s48, s48, {KV}")
    a("s_lshl_b32 s49, s44, 14")
    a("s_lshl_b32 s50, s43, 12")
    a("s_add_u32 s49, s49, s50")
    a("s_lshl_b32 s50, s44, 14")
    a(f"v_add_u32 v{VC}, s50, v{VL}")
    a("s_mov_b32 s51, 0")
    a("s_cmp_lg_u32 s40, 0")
    a(f"s_cbranch_scc1 {N}_noflag")
    a(f"v_mov_b32 v{T0}, {FLAG}")
    a(f"v_mov_b32 v{T1}, 0")
    a(f"ds_write_b32 v{T0}, v{T1}")
    a(f"{N}_noflag:")
    a(f"{N}_restart:")
    def dma_step(goff_s, slot_expr_s):
        for i in range(4):
            a(f"s_add_u32 m0, s{slot_expr_s}, {i*1024}")
            a(f"s_add_u32 s54, s{goff_s}, {i*1024}")
            a(f"buffer_load_dwordx4 v{VL}, {ws}, s54 offen lds")
    a("s_mov_b32 s52, s48")
    for s in range(3):
        a(f"s_add_u32 s53, s49, {s*32768}")
        dma_step(52, 53)
        a("s_add_u32 s52, s52, 16384")
    a(f"v_xor_b32 v{VN}, 0x10000, v{VC}")
    for r in range(OR_, OR_+16):
        a(f"v_mov_b32 v{r}, 0")
    a("s_waitcnt vmcnt(8) lgkmcnt(0)")
    a("s_barrier")
    def rdK(buf, base, off):
        a(f"ds_read_b128 {vr(KF[buf],4)}, v{base} offset:{off}")
        a(f"ds_read_b128 {vr(KF[buf]+4,4)}, v{base} offset:{off+1024}")
    def rdV(buf, base, off):
        a(f"ds_read_b128 {vr(VF[buf],4)}, v{base} offset:{off+2048}")
        a(f"ds_read_b128 {vr(VF[buf]+4,4)}, v{base} offset:{off+3072}")
    def smf(S, kb):
        a(f"{MF32} {vr(S,16)}, {vr(KF[kb],4)}, {vr(QR,4)}, 0")
        return f"{MF32} {vr(S,16)}, {vr(KF[kb]+4,4)}, {vr(QR+4,4)}, {vr(S,16)}"
    rdK(0, VC, 0)
    rdK(1, VC, 4096)
    rdV(0, VC, 0)
    a("s_cmp_lg_u32 s51, 0")
    a(f"s_cbranch_scc1 {N}_havem")
    a("s_waitcnt lgkmcnt(4)")
    a(smf(SA, 0))
    a("s_nop 15")
    s = SA
    a(f"v_max3_f32 v{T0}, v{s}, v{s+1}, v{s+2}")
    a(f"v_max3_f32 v{T1}, v{s+3}, v{s+4}, v{s+5}")
    a(f"v_max3_f32 v{T2}, v{s+6}, v{s+7}, v{s+8}")
    a(f"v_max3_f32 v{T3}, v{s+9}, v{s+10}, v{s+11}")
    a(f"v_max3_f32 v{T0}, v{T0}, v{s+12}, v{s+13}")
    a(f"v_max3_f32 v{T1}, v{T1}, v{s+14}, v{s+15}")
    a(f"v_max3_f32 v{T0}, v{T0}, v{T1}, v{T2}")
    a(f"v_max_f32 v{T0}, v{T0}, v{T3}")
    set_m(a, QR, MR, T0, T1)
    a(f"{N}_havem:")
    a("s_waitcnt lgkmcnt(2)")
    a("s_nop 1")
    a(smf(SA, 0))
    a("s_nop 4")
    a("s_mov_b32 s55, 0")
    a(f"{N}_loop:")
    def off(b): return (b // 4) * 32768 + (b % 4) * 4096
    for b in range(8):
        S, Sn = (SA, SB) if b % 2 == 0 else (SB, SA)
        kb = (b + 1) % 2
        vb = b % 2
        if b in (2, 6):
            a("s_cmp_eq_u32 s55, 3")
            if b == 6:
                pass
            a(f"s_cbranch_scc1 {N}_w0_{b}")
            a("s_waitcnt vmcnt(4)")
            a(f"s_branch {N}_w1_{b}")
            a(f"{N}_w0_{b}:")
            a("s_waitcnt vmcnt(0)")
            a(f"{N}_w1_{b}:")
            a("s_barrier")
            a(f"s_cmp_gt_u32 s55, {2 if b == 2 else 1}")
            a(f"s_cbranch_scc1 {N}_nr_{b}")
            a("s_lshl_b32 s53, s55, 1")
            a(f"s_add_u32 s53, s53, {3 if b == 2 else 4}")
            a("s_and_b32 s53, s53, 3")
            a("s_lshl_b32 s53, s53, 15")
            a("s_add_u32 s53, s53, s49")
            dma_step(52, 53)
            a("s_add_u32 s52, s52, 16384")
            a(f"{N}_nr_{b}:")
        if b + 2 < 8: rdK(b % 2, VC, off(b + 2))
        else: rdK(b % 2, VN, off(b + 2 - 8))
        if b + 1 < 8: rdV((b + 1) % 2, VC, off(b + 1))
        else: rdV((b + 1) % 2, VN, off(b + 1 - 8))
        a("s_waitcnt lgkmcnt(4)")
        second = smf(Sn, kb)
        for i in range(0, 4): a(f"v_exp_f32 v{S+i}, v{S+i}")
        a(second)
        for i in range(4, 8): a(f"v_exp_f32 v{S+i}, v{S+i}")
        for i in range(0, 2): a(f"v_cvt_pk_bf16_f32 v{PR+i}, v{S+2*i}, v{S+2*i+1}")
        for i in range(8, 10): a(f"v_exp_f32 v{S+i}, v{S+i}")
        for i in range(2, 4): a(f"v_cvt_pk_bf16_f32 v{PR+i}, v{S+2*i}, v{S+2*i+1}")
        for i in range(10, 12): a(f"v_exp_f32 v{S+i}, v{S+i}")
        a(f"{MF32} {vr(OR_,16)}, {vr(VF[vb],4)}, {vr(PR,4)}, {vr(OR_,16)}")
        for i in range(12, 16): a(f"v_exp_f32 v{S+i}, v{S+i}")
        a(f"v_cvt_pk_bf16_f32 v{PR+4}, v{S+8}, v{S+9}")
        a(f"v_cvt_pk_bf16_f32 v{PR+5}, v{S+10}, v{S+11}")
        a(f"v_cvt_pk_bf16_f32 v{PR+6}, v{S+12}, v{S+13}")
        a(f"v_cvt_pk_bf16_f32 v{PR+7}, v{S+14}, v{S+15}")
        a("s_nop 1")
        a(f"{MF32} {vr(OR_,16)}, {vr(VF[vb]+4,4)}, {vr(PR+4,4)}, {vr(OR_,16)}")
    a(f"v_xor_b32 v{VC}, 0x10000, v{VC}")
    a(f"v_xor_b32 v{VN}, 0x10000, v{VN}")
    a("s_add_u32 s55, s55, 1")
    a("s_cmp_lt_u32 s55, 4")
    a(f"s_cbranch_scc1 {N}_loop")
    a("s_nop 15")
    a("s_waitcnt lgkmcnt(0)")
    LL = T0
    a(f"v_mov_b32 v{T1}, v{OR_+12}")
    a(f"v_mov_b32 v{LL}, v{OR_+12}")
    a("s_nop 1")
    a(f"v_permlane32_swap_b32 v{T1}, v{LL}")
    a("s_cmp_lg_u32 s51, 0")
    a(f"s_cbranch_scc1 {N}_nochk")
    a(f"s_mov_b32 s56, {f32bits(2.0**64):#x}")
    a(f"v_cmp_ngt_f32 vcc, s56, v{LL}")
    a("s_nop 1")
    a(f"s_cbranch_vccz {N}_nochk")
    a(f"v_mov_b32 v{T1}, {FLAG}")
    a(f"v_mov_b32 v{T2}, 1")
    a(f"ds_write_b32 v{T1}, v{T2}")
    a(f"{N}_nochk:")
    a("s_mul_i32 s56, s43, 5120")
    a("s_mul_i32 s57, s44, 2560")
    a("s_add_u32 s57, s57, s56")
    a("s_xor_b32 s58, s44, 1")
    a("s_mul_i32 s58, s58, 2560")
    a("s_add_u32 s58, s58, s56")
    a(f"v_add_u32 v{T1}, s57, v{VL}")
    a(f"v_lshlrev_b32 v{T2}, 3, v1")
    a(f"v_add_u32 v{T2}, s57, v{T2}")
    a(f"v_mov_b32 v{T3+1}, v{MR}")
    a(f"v_mov_b32 v{T3+2}, v{LL}")
    a("s_cmp_eq_u32 s44, 0")
    a(f"s_cbranch_scc1 {N}_send1")
    a(f"ds_write_b128 v{T1}, {vr(OR_,4)}")
    a(f"ds_write_b128 v{T1}, {vr(OR_+4,4)} offset:1024")
    for i in range(8): a(f"v_mov_b32 v{SA+i}, v{OR_+8+i}")
    a(f"s_branch {N}_sent")
    a(f"{N}_send1:")
    a(f"ds_write_b128 v{T1}, {vr(OR_+8,4)}")
    a(f"ds_write_b128 v{T1}, {vr(OR_+12,4)} offset:1024")
    for i in range(8): a(f"v_mov_b32 v{SA+i}, v{OR_+i}")
    a(f"{N}_sent:")
    a(f"ds_write_b64 v{T2}, {vr(T3+1,2)} offset:2048")
    a("s_waitcnt lgkmcnt(0)")
    a("s_barrier")
    a(f"v_add_u32 v{T1}, s58, v{VL}")
    a(f"v_lshlrev_b32 v{T2}, 3, v1")
    a(f"v_add_u32 v{T2}, s58, v{T2}")
    a(f"v_mov_b32 v{T3}, {FLAG}")
    a(f"ds_read_b32 v{T3}, v{T3}")
    a(f"ds_read_b128 {vr(SB,4)}, v{T1}")
    a(f"ds_read_b128 {vr(SB+4,4)}, v{T1} offset:1024")
    a(f"ds_read_b64 {vr(SB+8,2)}, v{T2} offset:2048")
    a("s_waitcnt lgkmcnt(0)")
    a("s_cmp_lg_u32 s51, 0")
    a(f"s_cbranch_scc1 {N}_merge")
    a(f"v_readfirstlane_b32 s56, v{T3}")
    a("s_nop 3")
    a("s_cmp_lg_u32 s56, 0")
    a(f"s_cbranch_scc1 {N}_slow")
    a(f"{N}_merge:")
    MP, LP = SB+8, SB+9
    a(f"v_max_f32 v{T1}, v{MR}, v{MP}")
    a(f"v_sub_f32 v{T2}, v{MR}, v{T1}")
    a(f"v_sub_f32 v{T3}, v{MP}, v{T1}")
    a(f"v_exp_f32 v{T2}, v{T2}")
    a(f"v_exp_f32 v{T3}, v{T3}")
    a("s_nop 0")
    a(f"v_mul_f32 v{T1}, v{T2}, v{LL}")
    a(f"v_fmac_f32 v{T1}, v{T3}, v{LP}")
    a(f"v_rcp_f32 v{T1}, v{T1}")
    a("s_nop 0")
    a(f"v_mul_f32 v{T2}, v{T2}, v{T1}")
    a(f"v_mul_f32 v{T3}, v{T3}, v{T1}")
    for i in range(8):
        a(f"v_mul_f32 v{SA+i}, v{T2}, v{SA+i}")
    for i in range(8):
        a(f"v_fmac_f32 v{SA+i}, v{T3}, v{SB+i}")
    a("s_cmp_eq_u32 s44, 0")
    a(f"s_cbranch_scc1 {N}_nopad")
    a("s_mov_b32 exec_lo, 0")
    for i in range(4, 8): a(f"v_mov_b32 v{SA+i}, 0")
    a("s_mov_b32 exec_lo, -1")
    a(f"{N}_nopad:")
    for i in range(4): a(f"v_cvt_pk_bf16_f32 v{PR+i}, v{SA+2*i}, v{SA+2*i+1}")
    a("s_lshl_b32 s56, s46, 4")
    a("s_add_u32 s56, s56, s41")
    a("s_lshl_b32 s56, s56, 1")
    a("s_add_u32 s56, s56, s44")
    a("s_lshl_b32 s56, s56, 10")
    a(f"s_add_u32 s56, s56, {OF}")
    a(f"buffer_store_dwordx4 {vr(PR,4)}, v{VL}, {ws}, s56 offen")
    a("s_endpgm")
    a(f"{N}_slow:")
    a("s_mov_b32 s51, 1")
    a("s_mov_b32 exec_lo, 0")
    a(f"v_mov_b32 v{QR+6}, 0")
    a("s_mov_b32 exec_lo, -1")
    a(f"v_mov_b32 v{T0}, 0xff7fffff")
    a("s_lshl_b32 s56, s44, 5")
    a("s_add_u32 s56, s56, s45")
    a("s_lshl_b32 s56, s56, 12")
    a(f"s_add_u32 s56, s56, {KV}")
    a("s_mov_b32 s57, 0")
    a(f"{N}_sloop:")
    a(f"buffer_load_dwordx4 {vr(KF[0],4)}, v{VL}, {ws}, s56 offen")
    a(f"buffer_load_dwordx4 {vr(KF[0]+4,4)}, v{VL}, {ws}, s56 offen offset:1024")
    a("s_waitcnt vmcnt(0)")
    a(smf(SA, 0))
    a("s_nop 15")
    for i in range(0, 16, 2):
        a(f"v_max3_f32 v{T0}, v{T0}, v{SA+i}, v{SA+i+1}")
    a("s_add_u32 s56, s56, 4096")
    a("s_add_u32 s57, s57, 1")
    a("s_cmp_lt_u32 s57, 32")
    a(f"s_cbranch_scc1 {N}_sloop")
    set_m(a, QR, MR, T0, T1)
    a(f"v_and_b32 v{VC}, 0xffff, v{VC}")
    a("s_barrier")
    a(f"s_branch {N}_restart")

def set_m(a, QR, MR, T0, T1):
    a(f"v_mov_b32 v{T1}, v{T0}")
    a("s_nop 1")
    a(f"v_permlane32_swap_b32 v{T0}, v{T1}")
    a("s_nop 0")
    a(f"v_max_f32 v{T0}, v{T0}, v{T1}")
    a(f"v_cvt_pk_bf16_f32 v{T1}, -v{T0}, 0")
    a(f"v_lshlrev_b32 v{MR}, 16, v{T1}")
    a(f"v_xor_b32 v{MR}, 0x80000000, v{MR}")
    a("s_mov_b32 exec_lo, 0")
    a(f"v_mov_b32 v{QR+6}, v{T1}")
    a("s_mov_b32 exec_lo, -1")

import os
DBG = os.environ.get("K2DBG")
_dn = [0]
def dbg(a, regs):
    if not DBG: return
    n = _dn[0]; _dn[0] += 1
    a("s_load_dwordx2 s[60:61], s[0:1], 56")
    a("s_waitcnt lgkmcnt(0)")
    a("s_and_b32 s61, s61, 0xffff")
    a("s_mov_b32 s62, 256")
    a("s_mov_b32 s63, 0x20000")
    a("s_cmp_eq_u32 s2, 1")
    a(f"s_cbranch_scc0 dbgskip{n}")
    a("s_cmp_eq_u32 s40, 8")
    a(f"s_cbranch_scc0 dbgskip{n}")
    a("s_nop 15")
    a("v_mov_b32 v160, 0")
    a("s_mov_b64 s[64:65], exec")
    a("s_mov_b64 exec, 1")
    for i, r in enumerate(regs):
        a(f"buffer_store_dword v{r}, v160, s[60:63], 0 offen offset:{(dbg.off+i)*4}")
    dbg.off += len(regs)
    a("s_mov_b64 exec, s[64:65]")
    a(f"dbgskip{n}:")
dbg.off = 0
def gen_fft(a, N, SWS, SFT):
    offs, _ = tables.build()
    ws = f"s[{SWS}:{SWS+3}]"; ft = f"s[{SFT}:{SFT+3}]"
    A_, B_ = 4, 20
    C1, C3, TW, WW = 36, 60, 84, 100
    TR, TI = 108, 116
    PK = 124
    T = 132
    a("s_cmp_ge_u32 s2, 225")
    a(f"s_cbranch_scc1 {N}_end")
    a("s_setprio 2")
    a("s_sub_u32 s41, s40, 8")
    a("v_lshlrev_b32 v2, 4, v1")
    a("v_lshrrev_b32 v3, 4, v1")
    a("v_lshlrev_b32 v3, 9, v3")
    a(f"v_and_b32 v{T}, 15, v1")
    a(f"v_lshl_add_u32 v3, v{T}, 4, v3")
    a("s_lshl_b32 s42, s2, 12")
    a(f"s_add_u32 s42, s42, {X1}")
    a("s_sub_u32 s43, 448, s2")
    a("s_cmp_eq_u32 s2, 0")
    a("s_cselect_b32 s43, 0, s43")
    a("s_lshl_b32 s44, s43, 12")
    a(f"s_add_u32 s44, s44, {X1}")
    for t in range(2):
        for ks in range(2):
            a(f"buffer_load_dwordx4 {vr(A_+4*(2*t+ks),4)}, v3, {ws}, s42 offen offset:{ks*2048+t*256}")
            a(f"buffer_load_dwordx4 {vr(B_+4*(2*t+ks),4)}, v3, {ws}, s44 offen offset:{ks*2048+t*256}")
    a("s_mul_i32 s45, s41, 6144")
    a(f"s_add_u32 s46, s45, {offs['C1']}")
    def ld(dst, n, sreg, srd_=ft):
        for i in range(n):
            if i and i % 4 == 0:
                a(f"s_add_u32 s{sreg}, s{sreg}, 4096")
            a(f"buffer_load_dwordx4 {vr(dst+4*i,4)}, v2, {srd_}, s{sreg} offen offset:{(i%4)*1024}")
    ld(C1, 6, 46)
    a("s_lshl_b32 s47, s41, 12")
    a(f"s_add_u32 s46, s47, {offs['TW1']}")
    ld(TW, 4, 46)
    a(f"s_mov_b32 s46, {offs['C3']}")
    ld(C3, 6, 46)
    a("s_lshl_b32 s46, s2, 13")
    a("s_lshl_b32 s48, s41, 11")
    a("s_add_u32 s46, s46, s48")
    a(f"s_add_u32 s46, s46, {WT}")
    ld(WW, 2, 46, ws)
    a("s_barrier")
    a("s_waitcnt vmcnt(12)")
    dbg(a, [A_, B_, C1, C1+8])
    P = lambda ks: vr(C1+4*ks, 4); Q = lambda ks: vr(C1+8+4*ks, 4); NQ = lambda ks: vr(C1+16+4*ks, 4)
    da = lambda t, ks: vr(A_+4*(2*t+ks), 4); db = lambda t, ks: vr(B_+4*(2*t+ks), 4)
    tr = lambda t: vr(TR+4*t, 4); ti = lambda t: vr(TI+4*t, 4)
    seq = []
    for step in range(4):
        ks = step % 2
        for t in range(2):
            cr = "0" if step == 0 else tr(t); ci = "0" if step == 0 else ti(t)
            if step < 2:
                a(f"{MF16} {tr(t)}, {da(t,ks)}, {P(ks)}, {cr}")
                a(f"{MF16} {ti(t)}, {da(t,ks)}, {NQ(ks)}, {ci}")
            else:
                a(f"{MF16} {tr(t)}, {db(t,ks)}, {Q(ks)}, {cr}")
                a(f"{MF16} {ti(t)}, {db(t,ks)}, {P(ks)}, {ci}")
    a("s_waitcnt vmcnt(8)")
    a(f"s_add_u32 s46, s45, {offs['C5']}")
    a("s_nop 7")
    ld(C1, 6, 46)
    def cmul(xr, xi, c, s, outr, outi, conj=False):
        for p in range(0, 4, 2):
            a(f"v_pk_mul_f32 {vr(T+p,2)}, {vr(xi+p,2)}, {vr(s+p,2)}")
            a(f"v_pk_mul_f32 {vr(T+4+p,2)}, {vr(xi+p,2)}, {vr(c+p,2)}")
        for p in range(0, 4, 2):
            a(f"v_pk_fma_f32 {vr(outr+p,2)}, {vr(xr+p,2)}, {vr(c+p,2)}, {vr(T+p,2)} neg_lo:[0,0,1] neg_hi:[0,0,1]")
            a(f"v_pk_fma_f32 {vr(outi+p,2)}, {vr(xr+p,2)}, {vr(s+p,2)}, {vr(T+4+p,2)}")
    O1 = T + 8
    def packRI(t):
        a(f"v_cvt_pk_bf16_f32 v{PK+2*t}, v{O1}, v{O1+1}")
        a(f"v_cvt_pk_bf16_f32 v{PK+2*t+1}, v{O1+2}, v{O1+3}")
        a(f"v_cvt_pk_bf16_f32 v{PK+4+2*t}, v{O1+4}, v{O1+5}")
        a(f"v_cvt_pk_bf16_f32 v{PK+4+2*t+1}, v{O1+6}, v{O1+7}")
    for t in range(2):
        cmul(TR+4*t, TI+4*t, TW+8*t, TW+8*t+4, O1, O1+4)
        packRI(t)
    dbg(a, [TR, TI, TW, PK])
    a(f"s_add_u32 s46, s47, {offs['TW2']}")
    ld(TW, 4, 46)
    a("s_waitcnt vmcnt(12)")
    Fr = lambda u: vr(C3+4*u, 4); Fi = lambda u: vr(C3+8+4*u, 4); NFi = lambda u: vr(C3+16+4*u, 4)
    BR, BI = vr(PK, 4), vr(PK+4, 4)
    for u in range(2):
        a(f"{MF16} {tr(u)}, {Fr(u)}, {BR}, 0")
        a(f"{MF16} {ti(u)}, {Fi(u)}, {BR}, 0")
    for u in range(2):
        a(f"{MF16} {tr(u)}, {NFi(u)}, {BI}, {tr(u)}")
        a(f"{MF16} {ti(u)}, {Fr(u)}, {BI}, {ti(u)}")
    a("s_barrier")
    a("s_waitcnt vmcnt(10)")
    for u in range(2):
        for i in range(4):
            a(f"v_lshlrev_b32 v{A_+8*u+i}, 16, v{WW+4*u+i}")
            a(f"v_and_b32 v{A_+8*u+4+i}, 0xffff0000, v{WW+4*u+i}")
    a("s_nop 3")
    for u in range(2):
        cmul(TR+4*u, TI+4*u, A_+8*u, A_+8*u+4, O1, O1+4)
        packRI(u)
    a("s_nop 1")
    AR, AI = vr(PK, 4), vr(PK+4, 4)
    for t in range(2):
        a(f"{MF16} {tr(t)}, {AR}, {Fr(t)}, 0")
        a(f"{MF16} {ti(t)}, {AR}, {NFi(t)}, 0")
    for t in range(2):
        a(f"{MF16} {tr(t)}, {AI}, {Fi(t)}, {tr(t)}")
        a(f"{MF16} {ti(t)}, {AI}, {Fr(t)}, {ti(t)}")
    dbg(a, [WW, PK, PK+4])
    a(f"v_and_b32 v{B_}, 15, v1")
    a(f"v_mul_u32_u24 v{B_}, 144, v{B_}")
    a(f"v_lshrrev_b32 v{B_+1}, 4, v1")
    a(f"v_lshl_add_u32 v{B_+2}, v{B_+1}, 3, v{B_}")
    a("s_lshl_b32 s46, s41, 5")
    a(f"s_add_u32 s46, s46, {XB}")
    a(f"v_add_u32 v{B_+2}, s46, v{B_+2}")
    a(f"v_lshl_add_u32 v{B_+3}, v{B_+1}, 4, v{B_}")
    a(f"v_add_u32 v{B_+3}, {XB}, v{B_+3}")
    a("s_waitcnt vmcnt(0)")
    for t in range(2):
        cmul(TR+4*t, TI+4*t, TW+8*t, TW+8*t+4, O1, O1+4)
        packRI(t)
        a(f"ds_write_b64 v{B_+2}, {vr(PK+2*t,2)} offset:{t*16*144}")
        a(f"ds_write_b64 v{B_+2}, {vr(PK+4+2*t,2)} offset:{4608+t*16*144}")
    a("s_waitcnt lgkmcnt(0)")
    a("s_barrier")
    DR = 60
    for part in range(2):
        for t in range(2):
            for ks in range(2):
                a(f"ds_read_b128 {vr(DR+4*(part*4+t*2+ks),4)}, v{B_+3} offset:{part*4608+t*16*144+ks*64}")
    a("s_waitcnt lgkmcnt(0)")
    dbg(a, [DR, DR+16, C1, PK])
    A1 = lambda ks: vr(C1+4*ks, 4); A2 = lambda ks: vr(C1+8+4*ks, 4); NA2 = lambda ks: vr(C1+16+4*ks, 4)
    br = lambda t, ks: vr(DR+4*(t*2+ks), 4); bi = lambda t, ks: vr(DR+4*(4+t*2+ks), 4)
    a("s_waitcnt lgkmcnt(0)")
    for step in range(4):
        ks = step % 2
        for t in range(2):
            cm = "0" if step == 0 else tr(t); cp = "0" if step == 0 else ti(t)
            if step < 2:
                a(f"{MF16} {tr(t)}, {A1(ks)}, {br(t,ks)}, {cm}")
                a(f"{MF16} {ti(t)}, {A2(ks)}, {br(t,ks)}, {cp}")
            else:
                a(f"{MF16} {tr(t)}, {NA2(ks)}, {bi(t,ks)}, {cm}")
                a(f"{MF16} {ti(t)}, {A1(ks)}, {bi(t,ks)}, {cp}")
    a("s_nop 7")
    a("s_cmp_eq_u32 s2, 0")
    a(f"s_cbranch_scc1 {N}_avg")
    a("s_cmp_eq_u32 s2, 224")
    a(f"s_cbranch_scc0 {N}_noavg")
    a(f"{N}_avg:")
    for i in range(8):
        a(f"v_add_f32 v{TR+i}, v{TR+i}, v{TI+i}")
        a(f"v_mul_f32 v{TR+i}, 0.5, v{TR+i}")
        a(f"v_mov_b32 v{TI+i}, v{TR+i}")
    a(f"{N}_noavg:")
    for t in range(2):
        a(f"v_cvt_pk_bf16_f32 v{PK+2*t}, v{TR+4*t}, v{TR+4*t+1}")
        a(f"v_cvt_pk_bf16_f32 v{PK+2*t+1}, v{TR+4*t+2}, v{TR+4*t+3}")
        a(f"v_cvt_pk_bf16_f32 v{PK+4+2*t}, v{TI+4*t}, v{TI+4*t+1}")
        a(f"v_cvt_pk_bf16_f32 v{PK+4+2*t+1}, v{TI+4*t+2}, v{TI+4*t+3}")
    a("v_lshlrev_b32 v2, 3, v1")
    a("s_lshl_b32 s46, s41, 10")
    a("s_lshl_b32 s47, s2, 12")
    a("s_add_u32 s47, s47, s46")
    a(f"s_add_u32 s47, s47, {UT}")
    a("s_lshl_b32 s48, s43, 12")
    a("s_add_u32 s48, s48, s46")
    a(f"s_add_u32 s48, s48, {UT}")
    for t in range(2):
        a(f"buffer_store_dwordx2 {vr(PK+2*t,2)}, v2, {ws}, s47 offen offset:{t*512}")
        a(f"buffer_store_dwordx2 {vr(PK+4+2*t,2)}, v2, {ws}, s48 offen offset:{t*512}")
    a("s_endpgm")
```

```python
from asmlib import *
from k1 import QF, KV, X1, WT, OF, UT, WS_SIZE, srd, load_ptrs
SLOT = 24576
NSLOT = 6
LDS = SLOT * NSLOT
MF32 = "v_mfma_f32_32x32x16_bf16"

def gen_k3(name="k3_kernel"):
    a = Asm()
    N = name
    ST, SW, SO = 24, 28, 32
    ACC = 32
    TF = [48, 52]; WF = [56, 60]
    VT, VW = 10, 12
    a("s_cmp_ge_u32 s2, 256")
    a(f"s_cbranch_scc1 {N}_end")
    load_ptrs(a)
    a("s_and_b32 s44, s2, 7")
    a("s_lshr_b32 s45, s2, 3")
    a("s_and_b32 s48, s44, 1")
    a("s_lshr_b32 s46, s44, 1")
    a("s_lshl_b32 s46, s46, 3")
    a("s_and_b32 s47, s45, 7")
    a("s_add_u32 s46, s46, s47")
    a("s_lshr_b32 s49, s45, 3")
    a("v_and_b32 v1, 63, v0")
    a("v_lshrrev_b32 v2, 6, v0")
    a("s_nop 0")
    a("v_readfirstlane_b32 s50, v2")
    a("s_getpc_b64 s[52:53]")
    a("s_add_u32 s52, s52, HTAB@rel32@lo+4")
    a("s_addc_u32 s53, s53, HTAB@rel32@hi+12")
    a("s_waitcnt lgkmcnt(0)")
    srd(a, ST, 20, 21, WS_SIZE)
    a("s_cmp_eq_u32 s48, 1")
    a("s_cselect_b32 s54, s52, s8")
    a("s_cselect_b32 s55, s53, s9")
    srd(a, SW, 54, 55, 448*896)
    srd(a, SO, 16, 17, 2048*1792)
    a("v_lshrrev_b32 v2, 4, v1")
    a("s_lshl_b32 s58, s50, 3")
    a("v_add_u32 v3, s58, v2")
    a("v_lshlrev_b32 v15, 2, v2")
    a("v_and_b32 v16, 15, v1")
    a("v_xor_b32 v15, v15, v16")
    a("v_lshlrev_b32 v15, 4, v15")
    a("s_mul_i32 s57, s49, 224")
    a("v_add_u32 v15, s57, v15")
    a("s_movk_i32 s58, 896")
    a("s_cmp_eq_u32 s48, 1")
    a(f"s_cbranch_scc1 {N}_wB")
    for k, rho_add in ((0, 0), (1, 4)):
        a(f"v_add_u32 v17, {rho_add}, v3")
        a("v_and_b32 v18, 31, v17")
        a("v_cmp_lt_u32 vcc, 27, v18")
        a("v_subrev_u32 v19, 4, v18")
        a("s_nop 0")
        a("v_cndmask_b32 v18, v18, v19, vcc")
        a("v_lshrrev_b32 v17, 5, v17")
        a("v_mul_u32_u24 v17, 28, v17")
        a("v_add_u32 v17, v17, v18")
        a("v_mul_lo_u32 v17, v17, s58")
        a(f"v_add_u32 v{VW+k}, v17, v15")
    a(f"s_mov_b32 s59, {56*896}")
    a(f"s_branch {N}_wdone")
    a(f"{N}_wB:")
    for k, rho_add in ((0, 0), (1, 4)):
        a(f"v_add_u32 v17, {rho_add}, v3")
        a("v_mul_lo_u32 v17, v17, s58")
        a(f"v_add_u32 v{VW+k}, v17, v15")
    a(f"s_mov_b32 s59, {64*896}")
    a(f"{N}_wdone:")
    a("s_cmp_eq_u32 s48, 1")
    a(f"s_cbranch_scc1 {N}_tB")
    a("s_lshl_b32 s60, s46, 1")
    a("s_lshr_b32 s61, s50, 2")
    a("s_add_u32 s60, s60, s61")
    a("s_lshl_b32 s60, s60, 4")
    a("s_bfe_u32 s61, s50, 0x10001")
    a("s_add_u32 s60, s60, s61")
    a("s_lshl_b32 s60, s60, 1")
    a("s_and_b32 s61, s50, 1")
    a("s_add_u32 s60, s60, s61")
    a("s_lshl_b32 s60, s60, 10")
    a(f"s_add_u32 s60, s60, {OF}")
    a(f"v_lshlrev_b32 v{VT}, 4, v1")
    a("s_movk_i32 s61, 4096")
    a(f"s_branch {N}_tdone")
    a(f"{N}_tB:")
    a("v_lshrrev_b32 v2, 3, v1")
    a("s_lshl_b32 s60, s50, 3")
    a("v_add_u32 v2, s60, v2")
    a("v_bfe_u32 v3, v2, 1, 1")
    a("v_lshlrev_b32 v3, 2, v3")
    a("v_and_b32 v16, 7, v1")
    a("v_xor_b32 v3, v3, v16")
    a("v_lshlrev_b32 v3, 4, v3")
    a(f"v_lshl_add_u32 v{VT}, v2, 12, v3")
    a("s_lshl_b32 s60, s46, 7")
    a(f"s_add_u32 s60, s60, {UT}")
    a(f"s_mov_b32 s61, {64*4096}")
    a(f"{N}_tdone:")
    a("s_lshl_b32 s62, s50, 10")
    a("s_lshl_b32 s63, s50, 11")
    a("s_mov_b32 s64, 0")
    def dma(c):
        slot = c % NSLOT
        a(f"s_add_u32 m0, s62, {slot*SLOT}")
        a("s_nop 0")
        a(f"buffer_load_dwordx4 v{VT}, s[{ST}:{ST+3}], s60 offen lds")
        a(f"s_add_u32 m0, s63, {slot*SLOT+8192}")
        a("s_add_u32 s60, s60, s61")
        a(f"buffer_load_dwordx4 v{VW}, s[{SW}:{SW+3}], s64 offen lds")
        a(f"s_add_u32 m0, s63, {slot*SLOT+8192+1024}")
        a("s_nop 0")
        a(f"buffer_load_dwordx4 v{VW+1}, s[{SW}:{SW+3}], s64 offen lds")
        a("s_add_u32 s64, s64, s59")
    for c in range(6):
        dma(c)
    WA, TA = 4, 5
    a("v_lshrrev_b32 v2, 5, v1")
    a("v_bfe_u32 v3, v1, 2, 2")
    a("v_lshl_add_u32 v2, v2, 2, v3")
    a("v_lshlrev_b32 v16, 8, v2")
    a("v_add_u32 v16, 8192, v16")
    a("v_bfe_u32 v15, v1, 4, 1")
    a("v_lshlrev_b32 v15, 5, v15")
    a("v_and_b32 v17, 3, v1")
    a("v_lshl_add_u32 v15, v17, 3, v15")
    a("s_lshr_b32 s65, s50, 1")
    a("s_mul_i32 s65, s65, 56")
    a("v_add_u32 v17, s65, v15")
    a("v_lshrrev_b32 v18, 4, v17")
    a("v_lshlrev_b32 v19, 2, v3")
    a("v_xor_b32 v18, v18, v19")
    a("v_and_b32 v17, 15, v17")
    a("v_lshl_add_u32 v17, v18, 4, v17")
    a(f"v_add_u32 v{WA}, v16, v17")
    a("s_and_b32 s65, s50, 1")
    a("s_cmp_eq_u32 s48, 1")
    a(f"s_cbranch_scc1 {N}_raB")
    a("s_lshl_b32 s65, s65, 12")
    a(f"v_lshlrev_b32 v{TA}, 4, v1")
    a(f"v_add_u32 v{TA}, s65, v{TA}")
    a(f"s_branch {N}_radone")
    a(f"{N}_raB:")
    a("s_lshl_b32 s65, s65, 6")
    a("v_add_u32 v17, s65, v15")
    a("v_lshrrev_b32 v18, 4, v17")
    a("v_bfe_u32 v19, v2, 1, 1")
    a("v_lshlrev_b32 v19, 2, v19")
    a("v_xor_b32 v18, v18, v19")
    a("v_and_b32 v17, 15, v17")
    a("v_lshl_add_u32 v17, v18, 4, v17")
    a(f"v_lshl_add_u32 v{TA}, v2, 7, v17")
    a(f"{N}_radone:")
    for r in range(ACC, ACC+16):
        a(f"v_mov_b32 v{r}, 0")
    P = dict(N=N, ACC=ACC, TF=TF, WF=WF, WA=WA, TA=TA, dma=dma)
    a("s_cmp_eq_u32 s48, 1")
    a(f"s_cbranch_scc1 {N}_mainB")
    main(a, P, False)
    a(f"s_branch {N}_epi")
    a(f"{N}_mainB:")
    main(a, P, True)
    a(f"{N}_epi:")
    for i in range(8):
        a(f"v_cvt_pk_bf16_f32 v{48+i}, v{ACC+2*i}, v{ACC+2*i+1}")
    a("s_barrier")
    a("v_and_b32 v2, 31, v1")
    a("s_and_b32 s65, s50, 1")
    a("s_lshl_b32 s65, s65, 5")
    a("v_add_u32 v2, s65, v2")
    a("v_mul_u32_u24 v2, 240, v2")
    a("v_lshrrev_b32 v3, 5, v1")
    a("v_lshl_add_u32 v2, v3, 3, v2")
    a("s_lshr_b32 s65, s50, 1")
    a("s_mul_i32 s65, s65, 56")
    a("v_add_u32 v2, s65, v2")
    for jp in range(3):
        a(f"ds_write_b64 v2, {vr(48+2*jp,2)} offset:{jp*16}")
    a("s_mov_b32 exec_hi, 0")
    a(f"ds_write_b64 v2, {vr(48+6,2)} offset:48")
    a("s_mov_b32 exec_hi, -1")
    a("s_waitcnt lgkmcnt(0)")
    a("s_barrier")
    a("s_mul_i32 s65, s48, 896")
    a("s_mul_i32 s66, s49, 224")
    a("s_add_u32 s65, s65, s66")
    a("s_lshl_b32 s66, s46, 6")
    def rb(it):
        a(f"v_add_u32 v4, {512*it}, v0")
        a("v_mul_u32_u24 v5, 4682, v4")
        a("v_lshrrev_b32 v5, 16, v5")
        a("v_mul_u32_u24 v6, 14, v5")
        a("v_sub_u32 v6, v4, v6")
        a("v_mul_u32_u24 v7, 240, v5")
        a("v_lshl_add_u32 v7, v6, 4, v7")
        a(f"ds_read_b128 {vr(32+4*it,4)}, v7")
        a("v_add_u32 v5, s66, v5")
        a("s_cmp_eq_u32 s48, 0")
        a(f"s_cbranch_scc1 {N}_tk{it}")
        a("v_and_b32 v8, 3, v5")
        a("v_bfe_u32 v9, v5, 6, 2")
        a("v_lshl_add_u32 v8, v9, 2, v8")
        a("v_lshrrev_b32 v9, 9, v5")
        a("v_lshl_add_u32 v8, v9, 4, v8")
        a("v_lshlrev_b32 v8, 5, v8")
        a("v_bfe_u32 v9, v5, 8, 1")
        a("v_lshl_add_u32 v8, v9, 4, v8")
        a("v_bfe_u32 v9, v5, 2, 4")
        a("v_add_u32 v5, v8, v9")
        a(f"{N}_tk{it}:")
        a("v_mul_u32_u24 v5, 1792, v5")
        a(f"v_lshl_add_u32 v{20+it}, v6, 4, v5")
    rb(0)
    a("s_waitcnt lgkmcnt(0)")
    a(f"buffer_store_dwordx4 {vr(32,4)}, v20, s[{SO}:{SO+3}], s65 offen")
    a("v_cmp_gt_u32 vcc, 384, v0")
    a("s_and_saveexec_b64 s[66:67], vcc")
    a(f"s_cbranch_execz {N}_end")
    a("s_lshl_b32 s66, s46, 6")
    rb(1)
    a("s_waitcnt lgkmcnt(0)")
    a(f"buffer_store_dwordx4 {vr(36,4)}, v21, s[{SO}:{SO+3}], s65 offen")
    a(f"{N}_end:")
    a("s_endpgm")
    return a

def main(a, P, partB):
    TF, WF, WA, TA, ACC, dma = P["TF"], P["WF"], P["WA"], P["TA"], P["ACC"], P["dma"]
    nch = 7 if partB else 8
    nst = nch * 4
    base = [0]
    def reads(n):
        c, kk = n // 4, n % 4
        slot = c % NSLOT
        want = (slot // 2) * 2 * SLOT
        if want != base[0]:
            d = want - base[0]
            for r in (WA, TA):
                a(f"v_add_u32 v{r}, {d & 0xffffffff:#x}, v{r}")
            base[0] = want
        off = slot * SLOT - want
        b = n % 2
        if partB:
            a(f"ds_read_b64_tr_b16 {vr(TF[b],2)}, v{TA} offset:{off + kk*16*128}")
            a(f"ds_read_b64_tr_b16 {vr(TF[b]+2,2)}, v{TA} offset:{off + kk*16*128 + 8*128}")
        else:
            a(f"ds_read_b128 {vr(TF[b],4)}, v{TA} offset:{off + kk*1024}")
        a(f"ds_read_b64_tr_b16 {vr(WF[b],2)}, v{WA} offset:{off + kk*16*256}")
        a(f"ds_read_b64_tr_b16 {vr(WF[b]+2,2)}, v{WA} offset:{off + kk*16*256 + 8*256}")
    nr = 4 if partB else 3
    issued = 6
    def younger(c):
        return 3 * (min(issued, nch if False else 99) - 1 - c)
    a(f"s_waitcnt vmcnt({3*5})")
    a("s_barrier")
    reads(0)
    for n in range(nst):
        b = n % 2
        if n + 1 < nst:
            if (n + 1) % 4 == 0:
                c1 = (n + 1) // 4
                a(f"s_waitcnt vmcnt({3*(issued-1-c1)}) lgkmcnt(0)")
                a("s_barrier")
                if issued < nch and c1 - 1 + NSLOT == issued:
                    dma(issued); issued += 1
                reads(n + 1)
            else:
                reads(n + 1)
                a(f"s_waitcnt lgkmcnt({nr})")
        else:
            a("s_waitcnt lgkmcnt(0)")
        d = vr(ACC, 16)
        a(f"{MF32} {d}, {vr(WF[b],4)}, {vr(TF[b],4)}, {d}")
    a("s_nop 15")
```

```python
import numpy as np, math, struct
def bf16_bits(x):
    x = np.asarray(x, dtype=np.float32)
    u = x.view(np.uint32).astype(np.uint64)
    r = (u + np.uint64(0x7FFF) + ((u >> np.uint64(16)) & np.uint64(1))) >> np.uint64(16)
    return (r & np.uint64(0xFFFF)).astype(np.uint16)
L = np.arange(64)
def frag16(fn):
    out = np.zeros((64, 8), dtype=np.float64)
    for l in range(64):
        for e in range(8):
            out[l, e] = fn(l % 16, l // 16, e)
    return bf16_bits(out.astype(np.float32)).reshape(-1)
SCALE = 1.0 / (2048.0 * 448.0)
def build():
    parts = {}
    c1 = []
    for w in range(4):
        def P(ks): return frag16(lambda n, g, e: (math.cos(2*math.pi*(32*ks+8*g+e)*(16*w+n)/64) - math.sin(2*math.pi*(32*ks+8*g+e)*(16*w+n)/64))/2)
        def Q(ks, sg): return frag16(lambda n, g, e: sg*(math.cos(2*math.pi*(32*ks+8*g+e)*(16*w+n)/64) + math.sin(2*math.pi*(32*ks+8*g+e)*(16*w+n)/64))/2)
        c1 += [P(0), P(1), Q(0, 1), Q(1, 1), Q(0, -1), Q(1, -1)]
    parts["C1"] = np.concatenate(c1)
    def b(g, e): return 16*(e//4) + 4*g + e % 4
    Fr = lambda u: frag16(lambda m, g, e: math.cos(2*math.pi*(16*u+m)*b(g, e)/32))
    Fi = lambda u, sg: frag16(lambda m, g, e: -sg*math.sin(2*math.pi*(16*u+m)*b(g, e)/32))
    parts["C3"] = np.concatenate([Fr(0), Fr(1), Fi(0, 1), Fi(1, 1), Fi(0, -1), Fi(1, -1)])
    tw1 = np.zeros((4, 4, 64, 4), dtype=np.float32)
    tw2 = np.zeros((4, 4, 64, 4), dtype=np.float32)
    for w in range(4):
        for t in range(2):
            for l in range(64):
                for i in range(4):
                    k1 = 16*w + l % 16; s2 = 16*t + 4*(l//16) + i
                    th = -2*math.pi*s2*k1/2048
                    tw1[w, 2*t, l, i] = math.cos(th); tw1[w, 2*t+1, l, i] = math.sin(th)
                    s2 = 16*t + l % 16; k1 = 16*w + 4*(l//16) + i
                    th = 2*math.pi*s2*k1/2048
                    tw2[w, 2*t, l, i] = math.cos(th); tw2[w, 2*t+1, l, i] = math.sin(th)
    parts["TW1"] = tw1.reshape(-1).view(np.uint16)
    parts["TW2"] = tw2.reshape(-1).view(np.uint16)
    c5 = []
    for w in range(4):
        def E(ks, a, bsg): return frag16(lambda m, g, e: SCALE*(a*math.cos(2*math.pi*(16*w+m)*(32*ks+8*g+e)/64) + bsg*math.sin(2*math.pi*(16*w+m)*(32*ks+8*g+e)/64)))
        c5 += [E(0, 1, -1), E(1, 1, -1), E(0, 1, 1), E(1, 1, 1), E(0, -1, -1), E(1, -1, -1)]
    parts["C5"] = np.concatenate(c5)
    offs = {}
    off = 0
    blob = []
    for k in ("C1", "C3", "TW1", "TW2"):
        offs[k] = off
        blob.append(parts[k])
        off += parts[k].size * 2
    blob = np.concatenate(blob)
    return offs, blob
def emit_blob(blob, label):
    q = blob.view(np.uint64)
    s = f"{label}:\n"
    for i in range(0, len(q), 8):
        s += ".quad " + ",".join(f"{int(x):#x}" for x in q[i:i+8]) + "\n"
    return s
def htab_asm(label):
    s = ""
    for m in range(448):
        a = 2*math.pi*m/448
        s += f".set cas_{m}, {int(bf16_bits(np.array([math.cos(a)+math.sin(a)],dtype=np.float32))[0]):#x}\n"
    s += f""".altmacro
.macro hpair a, b
  .long cas_\\a | (cas_\\b << 16)
.endm
.macro hrow d
  .set hidx, 0
  .rept 224
    hpair %hidx, %((hidx + \\d) % 448)
    .set hidx, (hidx + 2*\\d) % 448
  .endr
.endm
{label}:
.set hd, 0
.rept 448
  hrow %hd
  .set hd, hd + 1
.endr
.noaltmacro
"""
    return s
if __name__ == "__main__":
    offs, blob = build()
    print(offs, blob.size*2, len(emit_blob(blob, "FT")))
```

```python
import sys
from asmlib import *
import tables, k1
NAME = "concat_heads__softmax_full_mha__spectral_gfnet__prompt"
def desc(name, nv, ns=100, acc=None):
    acc = acc or ((nv + 3) // 4 * 4)
    return f""".section .rodata,"a"
.p2align 6
.amdhsa_kernel {name}
  .amdhsa_next_free_vgpr {nv}
  .amdhsa_next_free_sgpr {ns}
  .amdhsa_accum_offset {acc}
  .amdhsa_group_segment_fixed_size 0
  .amdhsa_kernarg_size 72
  .amdhsa_user_sgpr_count 2
  .amdhsa_user_sgpr_kernarg_segment_ptr 1
  .amdhsa_system_sgpr_workgroup_id_x 1
.end_amdhsa_kernel
"""
def kern(name, a):
    return f".text\n.globl {name}\n.p2align 8\n.type {name},@function\n{name}:\n" + a.text()
HEAD = """; Kernarg layout: 0 A_x, 8 A_wqkv, 16 A_wo, 24 B_x, 32 B_w_r, 40 B_w_i, 48 d_out, 56 d_debug, 64 d_ws
"""
def build(which, out):
    ks = []
    if "1" in which:
        ks.append(("k1_kernel", k1.gen_k1_full("k1_kernel"), (256, k1.BLOCK, k1.LDS), 96))
    if "2" in which:
        import k2
        ks.append(("k2_kernel", k2.gen_k2("k2_kernel"), (256, 768, k2.LDS), 168))
    if "3" in which:
        import k3
        ks.append(("k3_kernel", k3.gen_k3("k3_kernel"), (256, 512, k3.LDS), 96))
    s = HEAD
    for n, a, (g, b, l), nv in ks:
        s += f"; @launch kernel={n} grid=({g},1,1) block=({b},1,1) lds={l}\n"
    s += '.amdgcn_target "amdgcn-amd-amdhsa--gfx950"\n'
    nprob = 0
    for n, a, _, nv in ks:
        pr = check(a.lines, n)
        for p in pr: print(p)
        nprob += len(pr)
        s += kern(n, a)
    for n, a, _, nv in ks:
        s += desc(n, nv)
    offs, blob = tables.build()
    s += '.section .rodata,"a"\n.p2align 8\n'
    s += tables.htab_asm("HTAB")
    s += ".p2align 8\n" + tables.emit_blob(blob, "FTAB")
    open(out, "w").write(s)
    print("hazard problems:", nprob, "size:", len(s))
if __name__ == "__main__":
    build(sys.argv[1], sys.argv[2])
```

```python
import re

class Asm:
    def __init__(self):
        self.lines = []
    def __call__(self, s):
        for ln in s.split("\n"):
            ln = ln.strip()
            if ln:
                self.lines.append(ln)
    def label(self, name):
        self.lines.append(name + ":")
    def text(self):
        out = []
        for ln in self.lines:
            if ln.endswith(":") or ln.startswith("."):
                out.append(ln)
            else:
                out.append("    " + ln)
        return "\n".join(out) + "\n"

def vr(base, n=1):
    return f"v{base}" if n == 1 else f"v[{base}:{base+n-1}]"
def sr(base, n=1):
    return f"s{base}" if n == 1 else f"s[{base}:{base+n-1}]"

_REG = re.compile(r"\b([vsa])(\d+)\b|\b([vsa])\[(\d+):(\d+)\]")
def regs_in(op):
    out = []
    for m in _REG.finditer(op):
        if m.group(1):
            out.append((m.group(1), int(m.group(2))))
        else:
            for i in range(int(m.group(4)), int(m.group(5)) + 1):
                out.append((m.group(3), i))
    return out

TRANS = ("v_exp_", "v_log_", "v_rcp_", "v_rsq_", "v_sqrt_", "v_sin_", "v_cos_")
def mfma_passes(mn):
    if "32x32x16" in mn: return 8
    if "16x16x32" in mn: return 4
    raise ValueError(mn)

class Ins:
    __slots__ = ("text", "mn", "cls", "wr", "rd", "srcC", "ws", "idx", "wr_sgpr", "rd_sgpr", "wr_vcc", "rd_vcc", "wr_exec","wr_m0","lds_dma")
    def __init__(self, text):
        self.text = text
        t = text.split(";")[0].strip()
        parts = t.split(None, 1)
        self.mn = mn = parts[0]
        ops = [o.strip() for o in re.split(r",(?![^\[]*\])", parts[1])] if len(parts) > 1 else []
        self.ws = 1
        self.wr, self.rd, self.srcC = set(), set(), set()
        self.wr_sgpr, self.rd_sgpr = set(), set()
        self.wr_vcc = self.rd_vcc = self.wr_exec = self.wr_m0 = self.lds_dma = False
        def V(o): return {r for r in regs_in(o) if r[0] in "va"}
        def S(o): return {r for r in regs_in(o) if r[0] == "s"}
        if mn == "s_nop":
            self.cls = "salu"; self.ws = int(ops[0], 0) + 1
        elif mn.startswith("v_mfma"):
            self.cls = "mfma"
            self.wr = V(ops[0]); self.rd = V(ops[1]) | V(ops[2]); self.srcC = V(ops[3])
        elif mn.startswith("v_"):
            self.cls = "trans" if mn.startswith(TRANS) else "valu"
            if mn.startswith("v_cmp"):
                d = ops[0]
                if d == "vcc": self.wr_vcc = True
                else: self.wr_sgpr = S(d)
                if mn.startswith("v_cmpx"): self.wr_exec = True
                for o in ops[1:]: self.rd |= V(o); self.rd_sgpr |= S(o)
            elif mn.startswith(("v_readfirstlane", "v_readlane")):
                self.wr_sgpr = S(ops[0])
                for o in ops[1:]: self.rd |= V(o); self.rd_sgpr |= S(o)
            elif mn.startswith("v_permlane") and "swap" in mn:
                self.wr = V(ops[0]) | V(ops[1]); self.rd = set(self.wr)
            else:
                self.wr = V(ops[0])
                rest = ops[1:]
                if mn.startswith(("v_add_co", "v_sub_co", "v_addc_co", "v_subb_co")):
                    if rest[0] == "vcc": self.wr_vcc = True
                    rest = rest[1:]
                for o in rest:
                    self.rd |= V(o); self.rd_sgpr |= S(o)
                    if o == "vcc": self.rd_vcc = True
                if mn.startswith(("v_fmac", "v_mac", "v_pk_fmac", "v_writelane")) or "_dpp" in t or "dst_unused:UNUSED_PRESERVE" in t:
                    self.rd |= self.wr
                if mn.startswith("v_cndmask") and len(ops) == 3: self.rd_vcc = True
        elif mn.startswith(("buffer_", "global_")):
            self.cls = "vmem"
            is_lds = re.search(r"\blds\b", t) is not None
            self.lds_dma = is_lds
            if "load" in mn and not is_lds:
                self.wr = V(ops[0])
                for o in ops[1:]: self.rd |= V(o); self.rd_sgpr |= S(o)
            else:
                for o in ops: self.rd |= V(o); self.rd_sgpr |= S(o)
                if "atomic" in mn and "sc0" in t: self.wr = V(ops[0])
        elif mn.startswith("ds_"):
            self.cls = "ds"
            if "read" in mn or "bpermute" in mn or "swizzle" in mn:
                self.wr = V(ops[0])
                for o in ops[1:]: self.rd |= V(o)
            else:
                for o in ops: self.rd |= V(o)
        else:
            self.cls = "salu"
            if ops and ops[0] == "m0": self.wr_m0 = True
            pass

def check(lines, name=""):
    ins = []
    for ln in lines:
        s = ln.strip()
        if not s or s.endswith(":") or s.startswith(".") or s.startswith(";"):
            continue
        ins.append(Ins(s))
    probs = []
    for i, c in enumerate(ins):
        dist = 0
        j = i - 1
        while j >= 0 and dist < 24:
            p = ins[j]
            def need(n, why):
                if dist < n:
                    probs.append(f"{name}: need {n} have {dist}: {why}\n    P[{j}]: {p.text}\n    C[{i}]: {c.text}")
            allc = c.rd | c.srcC
            if p.cls in ("valu", "trans"):
                if c.cls == "mfma" and p.wr & allc: need(2, "VALU write -> MFMA read")
                if p.cls == "trans" and c.cls == "valu" and p.wr & c.rd: need(1, "trans -> VALU")
                if p.cls == "trans" and c.cls == "mfma" and p.wr & allc: need(2, "trans -> mfma")
                if c.mn.startswith(("v_readfirstlane", "v_readlane")) and p.wr & c.rd: need(1, "VALU -> readlane")
                if c.mn.startswith("v_permlane") and p.wr & c.rd: need(2, "VALU -> permlane")
                if "_dpp" in c.text and p.wr & c.rd: need(2, "VALU -> DPP")
                if p.wr_sgpr and c.cls == "vmem" and p.wr_sgpr & c.rd_sgpr: need(5, "VALU sgpr -> VMEM")
                if p.wr_sgpr and c.cls in ("valu", "trans") and p.wr_sgpr & c.rd_sgpr: need(2, "VALU sgpr -> VALU read")
                if p.wr_vcc and c.rd_vcc: need(2, "VALU vcc -> cndmask/carry")
                if p.wr_exec and c.cls == "mfma": need(4, "cmpx exec -> mfma")
            if p.cls == "mfma":
                n = mfma_passes(p.mn)
                big = {4: 8, 8: 12}[n]
                if c.cls == "mfma":
                    if p.wr & c.rd: need(big, "MFMA D -> MFMA A/B")
                    if p.wr & c.srcC:
                        if not (p.wr == c.srcC and mfma_passes(c.mn) == n):
                            need({4: 6, 8: 10}[n], "MFMA D -> overlapped SrcC")
                    if p.wr & c.wr and not (p.wr == c.wr and p.wr == c.srcC) :
                        if not (p.wr == c.wr):
                            need({4: 6, 8: 10}[n], "MFMA D WAW overlapped")
                elif c.cls in ("valu", "trans", "vmem", "ds"):
                    if p.wr & (c.rd | c.wr): need(big, "MFMA D -> VALU/VMEM/DS use")
                    if c.cls in ("valu", "trans") and p.srcC & c.wr: need({4: 3, 8: 7}[n], "MFMA srcC WAR")
            if p.cls == "vmem" and "store" in p.mn and ("x4" in p.mn or "x3" in p.mn):
                if c.cls in ("valu", "trans") and (p.rd & c.wr): need(2, "wide store data WAR")
            if p.cls == "salu" and p.wr_m0 and c.lds_dma: need(1, "m0 -> lds dma")
            dist += p.ws
            j -= 1
    return probs

import os
STAMP = os.environ.get("STAMP")
class Stamps:
    def __init__(self, a, kidx, wave_sgpr):
        self.a, self.k, self.w, self.n = a, kidx, wave_sgpr, 0
    def stamp(self, cyc=False):
        if not STAMP: return
        i = self.n; self.n += 1
        assert i < 12
        usecyc = cyc or (STAMP == "cyc" and i not in (0, 10))
        self.a(f"s_memrealtime s[{76+2*i}:{77+2*i}]" if not usecyc else f"s_memtime s[{76+2*i}:{77+2*i}]")
    def end(self):
        self.n = 10; self.stamp(); self.stamp(True)
    def flush(self, tag):
        if not STAMP: return
        a = self.a
        a("s_waitcnt lgkmcnt(0)")
        a("s_mov_b32 s72, s20")
        a("s_and_b32 s73, s21, 0xffff")
        a("s_mov_b32 s74, 0x1100000")
        a("s_mov_b32 s75, 0x20000")
        a(f"s_lshl_b32 s70, s2, 4")
        a(f"s_add_u32 s70, s70, s{self.w}")
        a(f"s_lshl_b32 s70, s70, 7")
        a(f"s_add_u32 s70, s70, {0xE80000 + self.k*0x80000}")
        a("s_mov_b64 exec, 1")
        a("v_mov_b32 v2, 0")
        for i in range(12):
            a(f"v_mov_b32 v4, s{76+2*i}")
            a(f"v_mov_b32 v5, s{77+2*i}")
            a(f"buffer_store_dwordx2 v[4:5], v2, s[72:75], s70 offen offset:{i*8}")
            a("s_nop 1")
```

```python
from asmlib import *
import struct, math, os
QF, KV, X1, WT, OF, UT = 0x000000, 0x200000, 0x600000, 0x800000, 0xA00000, 0xC00000
WS_SIZE = 0xE00000
def f32bits(x): return struct.unpack("<I", struct.pack("<f", x))[0]
QSCALE = f32bits((28 ** -0.5) * math.log2(math.e))
NLD = int(os.environ.get('K1_NLD', '4'))
BLOCK = 512 + 64*NLD
PER = 16 // NLD
LDS = 131072
NS = 4

def load_ptrs(a):
    a("s_load_dwordx16 s[4:19], s[0:1], 0")
    a("s_load_dwordx2 s[20:21], s[0:1], 64")
def srd(a, d, lo, hi, size):
    a(f"s_mov_b32 s{d}, s{lo}")
    a(f"s_and_b32 s{d+1}, s{hi}, 0xffff")
    a(f"s_mov_b32 s{d+2}, {size}")
    a(f"s_mov_b32 s{d+3}, 0x20000")

SX, SW, SWS, SWR, SWI = 24, 28, 32, 36, 40
ACC = 32
XF = [64, 68]; WF = [[72, 76], [80, 84]]
XA = [4, 5, 6, 7]; WA = [8, 9]

def fin(a, ST):
    if STAMP:
        a("s_waitcnt vmcnt(0)")
        ST.end()
        ST.flush(0)
    a("s_endpgm")

def gen_k1_full(name="k1_kernel"):
    a = Asm()
    N = name
    a(f"s_cmp_ge_u32 s2, 256")
    a(f"s_cbranch_scc1 {N}_end")
    ST = Stamps(a, 0, 50)
    if STAMP:
        for i in range(76, 100): a(f"s_mov_b32 s{i}, 0")
    ST.stamp(); ST.stamp(True)
    load_ptrs(a)
    a("s_and_b32 s44, s2, 7")
    a("s_lshr_b32 s45, s2, 3")
    a("s_and_b32 s48, s44, 3")
    a("s_lshr_b32 s46, s44, 2")
    a("s_lshl_b32 s46, s46, 3")
    a("s_and_b32 s47, s45, 7")
    a("s_add_u32 s46, s46, s47")
    a("s_lshr_b32 s49, s45, 3")
    a("v_and_b32 v1, 63, v0")
    a("v_lshrrev_b32 v2, 6, v0")
    a("s_nop 0")
    a("v_readfirstlane_b32 s50, v2")
    a("s_getpc_b64 s[52:53]")
    a("s_add_u32 s52, s52, HTAB@rel32@lo+4")
    a("s_addc_u32 s53, s53, HTAB@rel32@hi+12")
    a("s_cmp_ge_u32 s50, 8")
    a(f"s_cbranch_scc1 {N}_loader")
    a("s_and_b32 s62, s50, 3")
    a("s_lshl_b32 s62, s62, 12")
    a("v_and_b32 v2, 31, v1")
    a("v_lshlrev_b32 v3, 7, v2")
    a("v_bfe_u32 v15, v1, 1, 3")
    a("v_lshrrev_b32 v25, 5, v1")
    a("v_xor_b32 v15, v15, v25")
    a("v_lshl_add_u32 v3, v15, 4, v3")
    a(f"v_add_u32 v{XA[0]}, s62, v3")
    for kk in range(1, 4):
        a(f"v_xor_b32 v{XA[kk]}, {kk*32}, v{XA[0]}")
    a("v_lshrrev_b32 v2, 5, v1")
    a("v_bfe_u32 v3, v1, 2, 2")
    a("v_lshl_add_u32 v2, v2, 3, v3")
    a("v_lshlrev_b32 v2, 8, v2")
    a("v_add_u32 v2, 16384, v2")
    a("v_bfe_u32 v15, v1, 4, 1")
    a("v_lshlrev_b32 v15, 5, v15")
    a("v_and_b32 v25, 3, v1")
    a("v_lshl_add_u32 v15, v25, 3, v15")
    a("s_lshr_b32 s62, s50, 2")
    a("s_mul_i32 s62, s62, 112")
    a("v_lshlrev_b32 v26, 2, v3")
    for g in range(2):
        a(f"v_add_u32 v25, s62, v15")
        if g: a(f"v_add_u32 v25, 56, v25")
        a(f"v_lshrrev_b32 v27, 4, v25")
        a(f"v_xor_b32 v27, v27, v26")
        a(f"v_and_b32 v25, 15, v25")
        a(f"v_lshl_add_u32 v25, v27, 4, v25")
        a(f"v_add_u32 v{WA[g]}, v2, v25")
    for r in range(ACC, ACC+32):
        a(f"v_mov_b32 v{r}, 0")
    a("s_waitcnt lgkmcnt(0)")
    ST.stamp()
    srd(a, SWS, 20, 21, WS_SIZE)
    a("s_cmp_ge_u32 s48, 2")
    a(f"s_cbranch_scc1 {N}_vx")
    main(a, ST, True)
    def headtile():
        a("s_lshl_b32 s58, s49, 2")
        a("s_lshr_b32 s59, s50, 2")
        a("s_lshl_b32 s59, s59, 1")
        a("s_add_u32 s58, s58, s59")
        a("s_lshl_b32 s58, s58, 6")
        a("s_lshl_b32 s59, s46, 2")
        a("s_add_u32 s58, s58, s59")
        a("s_and_b32 s59, s50, 3")
        a("s_add_u32 s58, s58, s59")
    headtile()
    a("v_lshlrev_b32 v2, 4, v1")
    a("s_cmp_eq_u32 s48, 1")
    a(f"s_cbranch_scc1 {N}_kep")
    a(f"s_mov_b32 s62, {QSCALE:#x}")
    for r in range(ACC, ACC+32):
        a(f"v_mul_f32 v{r}, s62, v{r}")
    a("s_mov_b32 exec_lo, 0")
    for g in range(2):
        for r in range(12, 16):
            a(f"v_mov_b32 v{ACC+16*g+r}, 0")
    a("s_mov_b32 exec_lo, -1")
    pack(a, ACC, 64, 16)
    a("s_lshl_b32 s58, s58, 11")
    a(f"s_add_u32 s58, s58, {QF}")
    for g in range(2):
        for j in range(2):
            a(f"s_add_u32 s59, s58, {g*64*2048 + j*1024}")
            a(f"buffer_store_dwordx4 {vr(64+8*g+4*j,4)}, v2, s[{SWS}:{SWS+3}], s59 offen")
    fin(a, ST)
    a(f"{N}_kep:")
    a("s_mov_b32 exec_lo, 0")
    for g in range(2):
        a(f"v_mov_b32 v{ACC+16*g+12}, 1.0")
        for r in range(13, 16):
            a(f"v_mov_b32 v{ACC+16*g+r}, 0")
    a("s_mov_b32 exec_lo, -1")
    pack(a, ACC, 64, 16)
    a("s_lshl_b32 s58, s58, 12")
    a(f"s_add_u32 s58, s58, {KV}")
    for g in range(2):
        for j in range(2):
            a(f"s_add_u32 s59, s58, {g*64*4096 + j*1024}")
            a(f"buffer_store_dwordx4 {vr(64+8*g+4*j,4)}, v2, s[{SWS}:{SWS+3}], s59 offen")
    fin(a, ST)
    a(f"{N}_vx:")
    main(a, ST, False)
    a("s_cmp_eq_u32 s48, 3")
    a(f"s_cbranch_scc1 {N}_xep")
    a("v_and_b32 v2, 31, v1")
    a("v_cmp_lt_u32 vcc, 27, v2")
    a("s_and_saveexec_b64 s[64:65], vcc")
    a("v_cmp_eq_u32 vcc, 28, v2")
    a("s_nop 1")
    a("v_cndmask_b32 v3, 0, 1.0, vcc")
    for r in range(ACC, ACC+32):
        a(f"v_mov_b32 v{r}, v3")
    a("s_mov_b64 exec, s[64:65]")
    pack(a, ACC, 64, 16)
    headtile()
    a("s_lshl_b32 s58, s58, 12")
    a(f"s_add_u32 s58, s58, {KV+2048}")
    a("v_lshlrev_b32 v2, 4, v1")
    for g in range(2):
        for j in range(2):
            a(f"s_add_u32 s59, s58, {g*64*4096 + j*1024}")
            a(f"buffer_store_dwordx4 {vr(64+8*g+4*j,4)}, v2, s[{SWS}:{SWS+3}], s59 offen")
    fin(a, ST)
    a(f"{N}_xep:")
    pack(a, ACC, 64, 16)
    a("s_barrier")
    a("s_lshr_b32 s58, s50, 2")
    a("s_mul_i32 s58, s58, 56")
    a("v_and_b32 v2, 31, v1")
    a("v_lshrrev_b32 v3, 5, v1")
    a("s_and_b32 s59, s50, 3")
    a("s_lshl_b32 s59, s59, 2")
    a("v_add_u32 v3, s59, v3")
    a("v_cmp_gt_u32 vcc, 28, v2")
    a("s_and_saveexec_b64 s[64:65], vcc")
    for g in range(2):
        a(f"v_add_u32 v4, s58, v2")
        if g: a("v_add_u32 v4, 28, v4")
        a("v_and_b32 v5, 15, v4")
        for j in range(2):
            a(f"v_add_u32 v6, {2*j}, v3")
            a("v_xor_b32 v6, v6, v5")
            a("v_lshlrev_b32 v6, 4, v6")
            a("v_lshl_add_u32 v6, v4, 8, v6")
            a(f"ds_write_b128 v6, {vr(64+8*g+4*j,4)}")
    a("s_mov_b64 exec, s[64:65]")
    a("s_waitcnt lgkmcnt(0)")
    a("s_barrier")
    a("s_mul_i32 s58, s49, 112")
    a("s_lshl_b32 s58, s58, 12")
    a("s_lshr_b32 s59, s46, 1")
    a("s_lshl_b32 s59, s59, 9")
    a("s_add_u32 s58, s58, s59")
    a("s_and_b32 s59, s46, 1")
    a("s_lshl_b32 s59, s59, 8")
    a("s_add_u32 s58, s58, s59")
    a(f"s_add_u32 s58, s58, {X1}")
    a("v_lshrrev_b32 v2, 4, v0")
    a("v_and_b32 v3, 15, v0")
    def rb(it):
        a(f"v_add_u32 v4, {32*it}, v2")
        a("v_and_b32 v5, 15, v4")
        a("v_xor_b32 v5, v5, v3")
        a("v_lshlrev_b32 v5, 4, v5")
        a("v_lshl_add_u32 v5, v4, 8, v5")
        a(f"ds_read_b128 {vr(32+4*it,4)}, v5")
        a("v_lshlrev_b32 v6, 12, v4")
        a(f"v_lshl_add_u32 v{8+it}, v3, 4, v6")
    for it in range(3):
        rb(it)
    a("s_waitcnt lgkmcnt(0)")
    for it in range(3):
        a(f"buffer_store_dwordx4 {vr(32+4*it,4)}, v{8+it}, s[{SWS}:{SWS+3}], s58 offen")
    a("v_add_u32 v4, 96, v2")
    a("v_cmp_gt_u32 vcc, 112, v4")
    a("s_and_saveexec_b64 s[64:65], vcc")
    a(f"s_cbranch_execz {N}_xfin")
    rb(3)
    a("s_waitcnt lgkmcnt(0)")
    a(f"buffer_store_dwordx4 {vr(32+12,4)}, v{8+3}, s[{SWS}:{SWS+3}], s58 offen")
    a(f"{N}_xfin:")
    fin(a, ST)
    a(f"{N}_loader:")
    loader(a, N, ST)
    a(f"{N}_end:")
    a("s_endpgm")
    return a

def loader(a, N, ST):
    VX0, VX1, VW = 10, 11, 12
    a("s_sub_u32 s51, s50, 8")
    a("v_lshrrev_b32 v2, 3, v1")
    a("s_cmp_eq_u32 s48, 3")
    a(f"s_cbranch_scc0 {N}_lp")
    a("v_and_b32 v3, 3, v2")
    a("v_lshlrev_b32 v3, 5, v3")
    a("v_lshrrev_b32 v2, 5, v1")
    a("v_add_u32 v2, v2, v3")
    a(f"{N}_lp:")
    a("v_mul_u32_u24 v2, 896, v2")
    a("v_and_b32 v3, 7, v1")
    a("v_lshrrev_b32 v4, 4, v1")
    a("v_xor_b32 v5, v3, v4")
    a(f"v_lshl_add_u32 v{VX0}, v5, 4, v2")
    a("v_xor_b32 v5, 4, v5")
    a(f"v_lshl_add_u32 v{VX1}, v5, 4, v2")
    TK = 56
    a("s_cmp_eq_u32 s48, 3")
    a(f"s_cbranch_scc1 {N}_ltX")
    a("s_lshl_b32 s66, s46, 7")
    a(f"s_mul_i32 s67, s51, {8*PER}")
    a("s_add_u32 s66, s66, s67")
    for ii in range(PER):
        a(f"s_add_u32 s{TK+ii}, s66, {8*ii}")
    a(f"s_branch {N}_ltd")
    a(f"{N}_ltX:")
    a("s_lshr_b32 s66, s46, 1")
    a("s_lshl_b32 s66, s66, 8")
    a("s_and_b32 s67, s46, 1")
    a("s_lshl_b32 s67, s67, 4")
    a("s_add_u32 s66, s66, s67")
    a(f"s_mul_i32 s67, s51, {PER}")
    a("s_add_u32 s66, s66, s67")
    for ii in range(PER):
        a(f"s_add_u32 s{TK+ii}, s66, {128*(ii&1) + 4*(ii>>2) + 2*((ii>>1)&1)}")
    a(f"{N}_ltd:")
    for ii in range(PER):
        a(f"s_mulk_i32 s{TK+ii}, 896")
    a("s_cmp_eq_u32 s48, 3")
    a(f"s_movk_i32 s64, 2688")
    a(f"s_cselect_b32 s64, 896, s64")
    a("s_mul_i32 s65, s48, 896")
    a("s_cselect_b32 s65, 0, s65")
    a("s_mul_i32 s66, s49, 224")
    a("s_add_u32 s65, s65, s66")
    a("v_lshrrev_b32 v2, 4, v1")
    a("v_mul_lo_u32 v3, v2, s64")
    a("v_lshlrev_b32 v4, 2, v2")
    a("v_and_b32 v5, 15, v1")
    a("v_xor_b32 v4, v4, v5")
    a(f"v_lshl_add_u32 v{VW}, v4, 4, v3")
    a(f"v_add_u32 v{VW}, s65, v{VW}")
    a("s_lshl_b32 s65, s64, 2")
    a(f"s_mul_i32 s66, s64, {4*PER}")
    a("s_mul_i32 s66, s66, s51")
    a("s_lshl_b32 s67, s64, 6")
    a(f"s_mul_i32 s68, s51, {PER*1024}")
    a("s_lshr_b32 s69, s45, 3")
    a("s_add_u32 s69, s69, s45")
    a("s_and_b32 s69, s69, 3")
    a("s_lshl_b32 s69, s69, 1")
    if not os.environ.get("K1_ROT"): a("s_mov_b32 s69, 0")
    a("s_waitcnt lgkmcnt(0)")
    ST.n = 2; ST.stamp()
    a("s_cmp_eq_u32 s48, 3")
    a("s_cselect_b32 s54, s10, s4")
    a("s_cselect_b32 s55, s11, s5")
    srd(a, SX, 54, 55, 2048*896)
    a("s_cmp_eq_u32 s48, 3")
    a("s_cselect_b32 s54, s52, s6")
    a("s_cselect_b32 s55, s53, s7")
    a(f"s_mov_b32 s{SW}, s54")
    a(f"s_and_b32 s{SW+1}, s55, 0xffff")
    a("s_cmp_eq_u32 s48, 3")
    a(f"s_mov_b32 s70, {448*2688}")
    a(f"s_cselect_b32 s{SW+2}, {448*896}, s70")
    a(f"s_mov_b32 s{SW+3}, 0x20000")
    def dma(c):
        slot = c % NS
        a("s_lshl_b32 s70, s69, 7")
        a("s_mul_i32 s71, s69, s67")
        a("s_add_u32 s71, s71, s66")
        for ii in range(PER):
            a(f"s_add_u32 m0, s68, {slot*32768 + ii*1024}")
            a(f"s_add_u32 s54, s{TK+ii}, s70")
            a(f"buffer_load_dwordx4 v{VX0 if ii % 2 == 0 else VX1}, s[{SX}:{SX+3}], s54 offen lds")
            a(f"s_add_u32 m0, s68, {slot*32768 + 16384 + ii*1024}")
            if ii: a("s_add_u32 s71, s71, s65")
            else: a("s_nop 0")
            a(f"buffer_load_dwordx4 v{VW}, s[{SW}:{SW+3}], s71 offen lds")
        a("s_add_u32 s69, s69, 1")
        a("s_cmp_eq_u32 s69, 7")
        a("s_cselect_b32 s69, 0, s69")
    dma(0); dma(1)
    ST.stamp()
    for c in range(7):
        NSD = 8 * (4 // (NLD // 2)) if False else 64 // NLD
        if c == 5: n = 2*PER + NSD
        elif c == 6: n = NSD
        else: n = 2*PER
        a(f"s_waitcnt vmcnt({n})")
        a("s_barrier")
        if c in (0, 2, 4, 6): ST.stamp()
        if c + 2 <= 6: dma(c + 2)
        if c == 4:
            side_loads(a)
    side_store(a, N)
    fin(a, ST)

SJ = 16
def side_loads(a):
    srd(a, SWR, 12, 13, 2048*450)
    srd(a, SWI, 14, 15, 2048*450)
    UP = 8 // NLD
    a("s_lshl_b32 s56, s2, 1")
    if NLD == 2: a("s_add_u32 s56, s56, s51")
    else:
        a("s_lshr_b32 s57, s51, 1")
        a("s_add_u32 s56, s56, s57")
        a("s_and_b32 s63, s51, 1")
        a("s_lshl_b32 s63, s63, 1")
    a("s_and_b32 s57, s56, 15")
    a("s_lshr_b32 s58, s56, 7")
    a("s_lshl_b32 s58, s58, 4")
    a("s_add_u32 s57, s57, s58")
    a("s_bfe_u32 s58, s56, 0x10006")
    a("s_lshl_b32 s58, s58, 4")
    a("s_bfe_u32 s59, s56, 0x20004")
    a("s_lshl_b32 s59, s59, 2")
    a("s_add_u32 s58, s58, s59")
    a("s_lshl_b32 s58, s58, 6")
    a("s_add_u32 s57, s57, s58")
    a("s_mulk_i32 s57, 450")
    a("v_lshlrev_b32 v13, 1, v1")
    if NLD == 4:
        a("s_lshl_b32 s62, s63, 7")
        a("s_add_u32 s57, s57, s62")
    for q in range(UP):
        for i in range(4):
            a(f"s_add_u32 s58, s57, {i*28800 + q*128}")
            a(f"buffer_load_ushort v{SJ+8*q+i}, v13, s[{SWR}:{SWR+3}], s58 offen")
            a(f"buffer_load_ushort v{SJ+8*q+4+i}, v13, s[{SWI}:{SWI+3}], s58 offen")

def side_store(a, N):
    UP = 8 // NLD
    srd(a, SWS, 20, 21, WS_SIZE)
    a("s_lshl_b32 s58, s56, 4")
    a(f"s_add_u32 s58, s58, {WT}")
    if NLD == 4:
        a(f"s_mul_i32 s59, s63, {64*8192}")
        a("s_add_u32 s58, s58, s59")
    a("s_waitcnt vmcnt(0)")
    for q in range(UP):
        for i in range(4):
            a(f"v_lshl_or_b32 v{SJ+8*q+i}, v{SJ+8*q+4+i}, 16, v{SJ+8*q+i}")
    a("v_lshlrev_b32 v14, 13, v1")
    for q in range(UP):
        if NLD == 4:
            a(f"s_add_u32 s62, s63, {q}")
            a("s_lshl_b32 s62, s62, 6")
            a("v_add_u32 v15, s62, v1")
        else:
            a(f"v_add_u32 v15, {64*q}, v1")
        a("v_cmp_gt_u32 vcc, 225, v15")
        a("s_and_saveexec_b64 s[60:61], vcc")
        a(f"s_add_u32 s59, s58, {q*64*8192}")
        a(f"buffer_store_dwordx4 {vr(SJ+8*q,4)}, v14, s[{SWS}:{SWS+3}], s59 offen")
        a("s_mov_b64 exec, s[60:61]")

def main(a, ST, qk):
    base = [0]
    def reads(n):
        c, kk = n // 4, n % 4
        slot = c % NS
        want = (slot // 2) * 65536
        if want != base[0]:
            d = want - base[0]
            for r in XA + WA:
                a(f"v_add_u32 v{r}, {d & 0xffffffff:#x}, v{r}")
            base[0] = want
        off = slot * 32768 - want
        b = n % 2
        a(f"ds_read_b128 {vr(XF[b],4)}, v{XA[kk]} offset:{off}")
        for g in range(2):
            a(f"ds_read_b64_tr_b16 {vr(WF[b][g],2)}, v{WA[g]} offset:{off + kk*16*256}")
            a(f"ds_read_b64_tr_b16 {vr(WF[b][g]+2,2)}, v{WA[g]} offset:{off + kk*16*256 + 4*256}")
    a("s_barrier")
    ST.n = 3; ST.stamp()
    reads(0)
    for n in range(28):
        b = n % 2
        if n + 1 < 28:
            if (n + 1) % 4 == 0:
                a(f"s_waitcnt lgkmcnt(0)")
                a("s_barrier")
                if (n + 1) // 4 in (2, 4, 6): ST.stamp()
                reads(n + 1)
            else:
                reads(n + 1)
                a("s_waitcnt lgkmcnt(5)")
        else:
            a("s_waitcnt lgkmcnt(0)")
        for g in range(2):
            d = vr(ACC + 16*g, 16)
            if qk: a(f"v_mfma_f32_32x32x16_bf16 {d}, {vr(WF[b][g],4)}, {vr(XF[b],4)}, {d}")
            else:  a(f"v_mfma_f32_32x32x16_bf16 {d}, {vr(XF[b],4)}, {vr(WF[b][g],4)}, {d}")
    a("s_nop 15")
    ST.stamp()

def pack(a, src, dst, n=8):
    for i in range(n):
        a(f"v_cvt_pk_bf16_f32 v{dst+i}, v{src+2*i}, v{src+2*i+1}")
```

```python
from asmlib import *
from k1 import QF, KV, X1, WT, OF, UT, WS_SIZE, srd, f32bits
import tables, os
RING = 131072
XB = RING
FLAG = RING + 9216
LDS = FLAG + 64
MF32 = "v_mfma_f32_32x32x16_bf16"
MF16 = "v_mfma_f32_16x16x32_bf16"

def gen_k2(name="k2_kernel"):
    a = Asm()
    N = name
    SWS, SFT = 24, 28
    a("s_cmp_ge_u32 s2, 256")
    a(f"s_cbranch_scc1 {N}_end")
    global ST
    ST = Stamps(a, 1, 40)
    if STAMP:
        for i in range(76, 100): a(f"s_mov_b32 s{i}, 0")
    ST.stamp(); ST.stamp(True)
    a("s_load_dwordx2 s[20:21], s[0:1], 64")
    a("v_and_b32 v1, 63, v0")
    a("v_lshrrev_b32 v2, 6, v0")
    a("s_nop 0")
    a("v_readfirstlane_b32 s40, v2")
    a("s_getpc_b64 s[28:29]")
    a("s_add_u32 s28, s28, FTAB@rel32@lo+4")
    a("s_addc_u32 s29, s29, FTAB@rel32@hi+12")
    a("s_and_b32 s29, s29, 0xffff")
    a(f"s_mov_b32 s30, 88064")
    a(f"s_mov_b32 s31, 0x20000")
    a("s_waitcnt lgkmcnt(0)")
    ST.stamp()
    srd(a, SWS, 20, 21, WS_SIZE)
    a("s_cmp_ge_u32 s40, 8")
    a(f"s_cbranch_scc1 {N}_fft")
    gen_attn(a, N, SWS)
    a(f"{N}_fft:")
    gen_fft(a, N, SWS, SFT)
    a(f"{N}_end:")
    a("s_endpgm")
    return a

def fin2(a):
    if STAMP:
        a("s_waitcnt vmcnt(0)")
        ST.end()
        ST.flush(1)
    a("s_endpgm")

def gen_attn(a, N, SWS):
    QR = 4
    SA, SB = 16, 32
    PR = 48
    OR_ = 56
    KF = [72, 80]; VF = [88, 96]
    VL, VC, VN = 12, 13, 14
    MR = 15
    T0, T1, T2, T3 = 104, 105, 106, 107
    ws = f"s[{SWS}:{SWS+3}]"
    a("s_and_b32 s41, s2, 7")
    a("s_lshl_b32 s41, s41, 1")
    a("s_bfe_u32 s42, s2, 0x10003")
    a("s_add_u32 s41, s41, s42")
    a("s_lshr_b32 s42, s2, 4")
    a("s_and_b32 s43, s40, 3")
    a("s_lshr_b32 s44, s40, 2")
    a(f"v_lshlrev_b32 v{VL}, 4, v1")
    a("s_lshl_b32 s45, s41, 6")
    a("s_lshl_b32 s46, s42, 2")
    a("s_add_u32 s46, s46, s43")
    a("s_add_u32 s47, s45, s46")
    a("s_lshl_b32 s47, s47, 11")
    a(f"s_add_u32 s47, s47, {QF}")
    a(f"buffer_load_dwordx4 {vr(QR,4)}, v{VL}, {ws}, s47 offen")
    a(f"buffer_load_dwordx4 {vr(QR+4,4)}, v{VL}, {ws}, s47 offen offset:1024")
    a("s_lshl_b32 s48, s44, 5")
    a("s_add_u32 s48, s48, s45")
    a("s_add_u32 s48, s48, s43")
    a("s_lshl_b32 s48, s48, 12")
    a(f"s_add_u32 s48, s48, {KV}")
    a("s_lshl_b32 s49, s44, 14")
    a("s_lshl_b32 s50, s43, 12")
    a("s_add_u32 s49, s49, s50")
    a("s_lshl_b32 s50, s44, 14")
    a(f"v_add_u32 v{VC}, s50, v{VL}")
    a("s_mov_b32 s51, 0")
    a("s_cmp_lg_u32 s40, 0")
    a(f"s_cbranch_scc1 {N}_noflag")
    a(f"v_mov_b32 v{T0}, {FLAG}")
    a(f"v_mov_b32 v{T1}, 0")
    a(f"ds_write_b32 v{T0}, v{T1}")
    a(f"{N}_noflag:")
    a(f"{N}_restart:")
    a("s_and_b32 s59, s42, 7")
    def step_goff(dst, s_sgpr=None, s_imm=None):
        if s_sgpr is not None:
            a(f"s_add_u32 s{dst}, s{s_sgpr}, s59")
            if s_imm: a(f"s_add_u32 s{dst}, s{dst}, {s_imm}")
        else:
            a(f"s_add_u32 s{dst}, s59, {s_imm}")
        a(f"s_and_b32 s{dst}, s{dst}, 7")
        a(f"s_lshl_b32 s{dst}, s{dst}, 14")
        a(f"s_add_u32 s{dst}, s{dst}, s48")
    def dma1(goff_s, slot_s, i):
        a(f"s_add_u32 m0, s{slot_s}, {i*1024}")
        a(f"s_add_u32 s54, s{goff_s}, {i*1024}")
        a(f"buffer_load_dwordx4 v{VL}, {ws}, s54 offen lds")
    step_goff(52, s_imm=0)
    a("s_mov_b32 s53, s49")
    for i in range(4): dma1(52, 53, i)
    a(f"v_xor_b32 v{VN}, 0x10000, v{VC}")
    for r in range(OR_, OR_+16):
        a(f"v_mov_b32 v{r}, 0")
    for r in list(range(PR+4, PR+8)) + list(range(VF[1]+4, VF[1]+8)):
        a(f"v_mov_b32 v{r}, 0")
    ST.n = 3; ST.stamp()
    a("s_waitcnt vmcnt(0) lgkmcnt(0)")
    a("s_barrier")
    ST.stamp()
    def rd(dst, base, off):
        a(f"ds_read_b128 {vr(dst,4)}, v{base} offset:{off}")
    def smf1(S, kb): return f"{MF32} {vr(S,16)}, {vr(KF[kb],4)}, {vr(QR,4)}, 0"
    def smf2(S, kb): return f"{MF32} {vr(S,16)}, {vr(KF[kb]+4,4)}, {vr(QR+4,4)}, {vr(S,16)}"
    rd(KF[0], VC, 0); rd(KF[0]+4, VC, 1024)
    rd(VF[0], VC, 2048); rd(VF[0]+4, VC, 3072)
    rd(KF[1], VC, 4096); rd(KF[1]+4, VC, 4096+1024)
    a("s_cmp_lg_u32 s51, 0")
    a(f"s_cbranch_scc1 {N}_havem")
    a("s_waitcnt lgkmcnt(4)")
    a(smf1(SA, 0)); a(smf2(SA, 0))
    a("s_nop 15")
    s = SA
    a(f"v_max3_f32 v{T0}, v{s}, v{s+1}, v{s+2}")
    a(f"v_max3_f32 v{T1}, v{s+3}, v{s+4}, v{s+5}")
    a(f"v_max3_f32 v{T2}, v{s+6}, v{s+7}, v{s+8}")
    a(f"v_max3_f32 v{T3}, v{s+9}, v{s+10}, v{s+11}")
    a(f"v_max3_f32 v{T0}, v{T0}, v{s+12}, v{s+13}")
    a(f"v_max3_f32 v{T1}, v{T1}, v{s+14}, v{s+15}")
    a(f"v_max3_f32 v{T0}, v{T0}, v{T1}, v{T2}")
    a(f"v_max_f32 v{T0}, v{T0}, v{T3}")
    set_m(a, QR, MR, T0, T1)
    a(f"{N}_havem:")
    a("s_waitcnt lgkmcnt(0)")
    a("s_nop 1")
    a(smf1(SA, 0)); a(smf2(SA, 0))
    a("s_nop 11")
    ST.stamp()
    def off(b): return (b // 4) * 32768 + (b % 4) * 4096
    E = lambda S, i: a(f"v_exp_f32 v{S+i}, v{S+i}")
    C = lambda S, i: a(f"v_cvt_pk_bf16_f32 v{PR+i}, v{S+2*i}, v{S+2*i+1}")
    NOLDS = os.environ.get("K2_NOLDS")
    def body(first):
        for b in range(8):
            S, Sn = (SA, SB) if b % 2 == 0 else (SB, SA)
            kb = (b + 1) % 2
            vb = b % 2
            pvb = (b + 1) % 2
            refill = False
            if first and b in (0, 1):
                step_goff(52, s_imm=b + 1)
                a(f"s_add_u32 s53, s49, {(b+1)*32768}")
                refill = True
            if b in (2, 6) and not os.environ.get("K2_NOBAR"):
                a("s_lshl_b32 s53, s55, 1")
                a(f"s_add_u32 s53, s53, {3 if b == 2 else 4}")
                a("s_add_u32 s52, s53, s59")
                a("s_and_b32 s52, s52, 7")
                a("s_lshl_b32 s52, s52, 14")
                a("s_add_u32 s52, s52, s48")
                a("s_cmp_gt_u32 s53, 7")
                a(f"s_cselect_b32 s52, {WS_SIZE}, s52")
                a("s_and_b32 s53, s53, 3")
                a("s_lshl_b32 s53, s53, 15")
                a("s_add_u32 s53, s53, s49")
                a("s_waitcnt vmcnt(4)")
                a("s_barrier")
                refill = True
            def dm(i):
                if refill and not (os.environ.get("K2_NODMA") and not first): dma1(52, 53, i)
            kbase, koff = (VC, off(b + 2)) if b + 2 < 8 else (VN, off(b + 2 - 8))
            vbase, voff = (VC, off(b + 1)) if b + 1 < 8 else (VN, off(b + 1 - 8))
            E(S, 0); E(S, 1)
            a(f"{MF32} {vr(OR_,16)}, {vr(VF[pvb]+4,4)}, {vr(PR+4,4)}, {vr(OR_,16)}")
            if not NOLDS: rd(VF[pvb], vbase, voff + 2048)
            dm(0)
            E(S, 2); E(S, 3); E(S, 4); C(S, 0); C(S, 1)
            if not NOLDS: a("s_waitcnt lgkmcnt(1)")
            a(smf1(Sn, kb))
            if not NOLDS: rd(VF[pvb]+4, vbase, voff + 3072)
            dm(1)
            E(S, 5); E(S, 6); E(S, 7); E(S, 8); C(S, 2)
            a(smf2(Sn, kb))
            if not NOLDS: rd(KF[b % 2], kbase, koff)
            dm(2)
            C(S, 3); E(S, 9); E(S, 10); E(S, 11)
            a(f"{MF32} {vr(OR_,16)}, {vr(VF[vb],4)}, {vr(PR,4)}, {vr(OR_,16)}")
            if not NOLDS: rd(KF[b % 2]+4, kbase, koff + 1024)
            dm(3)
            E(S, 12); E(S, 13); C(S, 4); E(S, 14); E(S, 15); C(S, 5); C(S, 6); C(S, 7)
        a(f"v_xor_b32 v{VC}, 0x10000, v{VC}")
        a(f"v_xor_b32 v{VN}, 0x10000, v{VN}")
    a("s_mov_b32 s55, 0")
    body(True)
    if STAMP and os.environ.get("ITERSTAMP"): a(f"{'s_memtime' if STAMP == 'cyc' else 's_memrealtime'} s[{76+2*6}:{77+2*6}]")
    a("s_mov_b32 s55, 1")
    a(f"{N}_loop:")
    body(False)
    ST.n = 9
    if STAMP and os.environ.get("ITERSTAMP"):
        for L in range(1, 3):
            a(f"s_cmp_eq_u32 s55, {L}")
            a(f"s_cbranch_scc0 {N}_st{L}")
            a(f"{'s_memtime' if STAMP == 'cyc' else 's_memrealtime'} s[{76+2*(6+L)}:{77+2*(6+L)}]")
            a(f"{N}_st{L}:")
        ST.n = 9
    a("s_add_u32 s55, s55, 1")
    a("s_cmp_lt_u32 s55, 4")
    a(f"s_cbranch_scc1 {N}_loop")
    a(f"{MF32} {vr(OR_,16)}, {vr(VF[1]+4,4)}, {vr(PR+4,4)}, {vr(OR_,16)}")
    a("s_nop 15")
    a("s_waitcnt lgkmcnt(0)")
    ST.stamp()
    LL = T0
    a(f"v_mov_b32 v{T1}, v{OR_+12}")
    a(f"v_mov_b32 v{LL}, v{OR_+12}")
    a("s_nop 1")
    a(f"v_permlane32_swap_b32 v{T1}, v{LL}")
    a("s_cmp_lg_u32 s51, 0")
    a(f"s_cbranch_scc1 {N}_nochk")
    if os.environ.get("K2_NOCHK"): a(f"s_branch {N}_nochk")
    a(f"s_mov_b32 s56, {f32bits(2.0**64):#x}")
    a(f"v_cmp_ngt_f32 vcc, s56, v{LL}")
    a("s_nop 1")
    a(f"s_cbranch_vccz {N}_nochk")
    a(f"v_mov_b32 v{T1}, {FLAG}")
    a(f"v_mov_b32 v{T2}, 1")
    a(f"ds_write_b32 v{T1}, v{T2}")
    a(f"{N}_nochk:")
    a("s_mul_i32 s56, s43, 5120")
    a("s_mul_i32 s57, s44, 2560")
    a("s_add_u32 s57, s57, s56")
    a("s_xor_b32 s58, s44, 1")
    a("s_mul_i32 s58, s58, 2560")
    a("s_add_u32 s58, s58, s56")
    a(f"v_add_u32 v{T1}, s57, v{VL}")
    a(f"v_lshlrev_b32 v{T2}, 3, v1")
    a(f"v_add_u32 v{T2}, s57, v{T2}")
    a(f"v_mov_b32 v{T3+1}, v{MR}")
    a(f"v_mov_b32 v{T3+2}, v{LL}")
    a("s_cmp_eq_u32 s44, 0")
    a(f"s_cbranch_scc1 {N}_send1")
    a(f"ds_write_b128 v{T1}, {vr(OR_,4)}")
    a(f"ds_write_b128 v{T1}, {vr(OR_+4,4)} offset:1024")
    for i in range(8): a(f"v_mov_b32 v{SA+i}, v{OR_+8+i}")
    a(f"s_branch {N}_sent")
    a(f"{N}_send1:")
    a(f"ds_write_b128 v{T1}, {vr(OR_+8,4)}")
    a(f"ds_write_b128 v{T1}, {vr(OR_+12,4)} offset:1024")
    for i in range(8): a(f"v_mov_b32 v{SA+i}, v{OR_+i}")
    a(f"{N}_sent:")
    a(f"ds_write_b64 v{T2}, {vr(T3+1,2)} offset:2048")
    a("s_waitcnt lgkmcnt(0)")
    a("s_barrier")
    a(f"v_add_u32 v{T1}, s58, v{VL}")
    a(f"v_lshlrev_b32 v{T2}, 3, v1")
    a(f"v_add_u32 v{T2}, s58, v{T2}")
    a(f"v_mov_b32 v{T3}, {FLAG}")
    a(f"ds_read_b32 v{T3}, v{T3}")
    a(f"ds_read_b128 {vr(SB,4)}, v{T1}")
    a(f"ds_read_b128 {vr(SB+4,4)}, v{T1} offset:1024")
    a(f"ds_read_b64 {vr(SB+8,2)}, v{T2} offset:2048")
    a("s_waitcnt lgkmcnt(0)")
    a("s_cmp_lg_u32 s51, 0")
    a(f"s_cbranch_scc1 {N}_merge")
    a(f"v_readfirstlane_b32 s56, v{T3}")
    a("s_nop 3")
    a("s_cmp_lg_u32 s56, 0")
    a(f"s_cbranch_scc1 {N}_slow")
    a(f"{N}_merge:")
    MP, LP = SB+8, SB+9
    a(f"v_max_f32 v{T1}, v{MR}, v{MP}")
    a(f"v_sub_f32 v{T2}, v{MR}, v{T1}")
    a(f"v_sub_f32 v{T3}, v{MP}, v{T1}")
    a(f"v_exp_f32 v{T2}, v{T2}")
    a(f"v_exp_f32 v{T3}, v{T3}")
    a("s_nop 0")
    a(f"v_mul_f32 v{T1}, v{T2}, v{LL}")
    a(f"v_fmac_f32 v{T1}, v{T3}, v{LP}")
    a(f"v_rcp_f32 v{T1}, v{T1}")
    a("s_nop 0")
    a(f"v_mul_f32 v{T2}, v{T2}, v{T1}")
    a(f"v_mul_f32 v{T3}, v{T3}, v{T1}")
    for i in range(8):
        a(f"v_mul_f32 v{SA+i}, v{T2}, v{SA+i}")
    for i in range(8):
        a(f"v_fmac_f32 v{SA+i}, v{T3}, v{SB+i}")
    a("s_cmp_eq_u32 s44, 0")
    a(f"s_cbranch_scc1 {N}_nopad")
    a("s_mov_b32 exec_lo, 0")
    for i in range(4, 8): a(f"v_mov_b32 v{SA+i}, 0")
    a("s_mov_b32 exec_lo, -1")
    a(f"{N}_nopad:")
    for i in range(4): a(f"v_cvt_pk_bf16_f32 v{PR+i}, v{SA+2*i}, v{SA+2*i+1}")
    a("s_lshl_b32 s56, s46, 4")
    a("s_add_u32 s56, s56, s41")
    a("s_lshl_b32 s56, s56, 1")
    a("s_add_u32 s56, s56, s44")
    a("s_lshl_b32 s56, s56, 10")
    a(f"s_add_u32 s56, s56, {OF}")
    a(f"buffer_store_dwordx4 {vr(PR,4)}, v{VL}, {ws}, s56 offen")
    fin2(a)
    a(f"{N}_slow:")
    a("s_mov_b32 s51, 1")
    a("s_mov_b32 exec_lo, 0")
    a(f"v_mov_b32 v{QR+6}, 0")
    a("s_mov_b32 exec_lo, -1")
    a(f"v_mov_b32 v{T0}, 0xff7fffff")
    a("s_lshl_b32 s56, s44, 5")
    a("s_add_u32 s56, s56, s45")
    a("s_lshl_b32 s56, s56, 12")
    a(f"s_add_u32 s56, s56, {KV}")
    a("s_mov_b32 s57, 0")
    a(f"{N}_sloop:")
    a(f"buffer_load_dwordx4 {vr(KF[0],4)}, v{VL}, {ws}, s56 offen")
    a(f"buffer_load_dwordx4 {vr(KF[0]+4,4)}, v{VL}, {ws}, s56 offen offset:1024")
    a("s_waitcnt vmcnt(0)")
    a(smf1(SA, 0)); a(smf2(SA, 0))
    a("s_nop 15")
    for i in range(0, 16, 2):
        a(f"v_max3_f32 v{T0}, v{T0}, v{SA+i}, v{SA+i+1}")
    a("s_add_u32 s56, s56, 4096")
    a("s_add_u32 s57, s57, 1")
    a("s_cmp_lt_u32 s57, 32")
    a(f"s_cbranch_scc1 {N}_sloop")
    set_m(a, QR, MR, T0, T1)
    a(f"v_and_b32 v{VC}, 0xffff, v{VC}")
    a("s_barrier")
    a(f"s_branch {N}_restart")

def set_m(a, QR, MR, T0, T1):
    a(f"v_mov_b32 v{T1}, v{T0}")
    a("s_nop 1")
    a(f"v_permlane32_swap_b32 v{T0}, v{T1}")
    a("s_nop 0")
    a(f"v_max_f32 v{T0}, v{T0}, v{T1}")
    a(f"v_cvt_pk_bf16_f32 v{T1}, -v{T0}, 0")
    a(f"v_lshlrev_b32 v{MR}, 16, v{T1}")
    a(f"v_xor_b32 v{MR}, 0x80000000, v{MR}")
    a("s_mov_b32 exec_lo, 0")
    a(f"v_mov_b32 v{QR+6}, v{T1}")
    a("s_mov_b32 exec_lo, -1")

DBG = os.environ.get("K2DBG")
_dn = [0]
def dbg(a, regs):
    if not DBG: return
    n = _dn[0]; _dn[0] += 1
    a("s_load_dwordx2 s[60:61], s[0:1], 56")
    a("s_waitcnt lgkmcnt(0)")
    a("s_and_b32 s61, s61, 0xffff")
    a("s_mov_b32 s62, 256")
    a("s_mov_b32 s63, 0x20000")
    a("s_cmp_eq_u32 s2, 1")
    a(f"s_cbranch_scc0 dbgskip{n}")
    a("s_cmp_eq_u32 s40, 8")
    a(f"s_cbranch_scc0 dbgskip{n}")
    a("s_nop 15")
    a("v_mov_b32 v160, 0")
    a("s_mov_b64 s[64:65], exec")
    a("s_mov_b64 exec, 1")
    for i, r in enumerate(regs):
        a(f"buffer_store_dword v{r}, v160, s[60:63], 0 offen offset:{(dbg.off+i)*4}")
    dbg.off += len(regs)
    a("s_mov_b64 exec, s[64:65]")
    a(f"dbgskip{n}:")
dbg.off = 0
def gen_fft(a, N, SWS, SFT):
    offs, _ = tables.build()
    ws = f"s[{SWS}:{SWS+3}]"; ft = f"s[{SFT}:{SFT+3}]"
    A_, B_ = 4, 20
    C1, C3, TW, WW = 36, 60, 84, 100
    TW2R = 108
    TR, TI = 124, 132
    PK = 140
    T = 148
    a(f"s_cmp_ge_u32 s2, {0 if os.environ.get('K2_NOFFT') else 225}")
    a(f"s_cbranch_scc1 {N}_end")
    a("s_setprio 2")
    a("s_barrier")
    a("s_sub_u32 s41, s40, 8")
    a("v_lshlrev_b32 v2, 4, v1")
    a("v_lshrrev_b32 v3, 4, v1")
    a("v_lshlrev_b32 v3, 9, v3")
    a(f"v_and_b32 v{T}, 15, v1")
    a(f"v_lshl_add_u32 v3, v{T}, 4, v3")
    a("s_lshl_b32 s42, s2, 12")
    a(f"s_add_u32 s42, s42, {X1}")
    a("s_sub_u32 s43, 448, s2")
    a("s_cmp_eq_u32 s2, 0")
    a("s_cselect_b32 s43, 0, s43")
    a("s_lshl_b32 s44, s43, 12")
    a(f"s_add_u32 s44, s44, {X1}")
    for t in range(2):
        for ks in range(2):
            a(f"buffer_load_dwordx4 {vr(A_+4*(2*t+ks),4)}, v3, {ws}, s42 offen offset:{ks*2048+t*256}")
            a(f"buffer_load_dwordx4 {vr(B_+4*(2*t+ks),4)}, v3, {ws}, s44 offen offset:{ks*2048+t*256}")
    a("s_mul_i32 s45, s41, 6144")
    a(f"s_add_u32 s46, s45, {offs['C1']}")
    def ld(dst, n, sreg, srd_=ft):
        for i in range(n):
            if i and i % 4 == 0:
                a(f"s_add_u32 s{sreg}, s{sreg}, 4096")
            a(f"buffer_load_dwordx4 {vr(dst+4*i,4)}, v2, {srd_}, s{sreg} offen offset:{(i%4)*1024}")
    ld(C1, 6, 46)
    a("s_lshl_b32 s47, s41, 12")
    a(f"s_add_u32 s46, s47, {offs['TW1']}")
    ld(TW, 4, 46)
    a(f"s_mov_b32 s46, {offs['C3']}")
    ld(C3, 6, 46)
    a("s_lshl_b32 s46, s2, 13")
    a("s_lshl_b32 s48, s41, 11")
    a("s_add_u32 s46, s46, s48")
    a(f"s_add_u32 s46, s46, {WT}")
    ld(WW, 2, 46, ws)
    a(f"s_add_u32 s46, s47, {offs['TW2']}")
    ld(TW2R, 4, 46)
    ST.n = 3; ST.stamp()
    a("s_barrier")
    a("s_waitcnt vmcnt(16)")
    ST.stamp()
    dbg(a, [A_, B_, C1, C1+8])
    P = lambda ks: vr(C1+4*ks, 4); Q = lambda ks: vr(C1+8+4*ks, 4); NQ = lambda ks: vr(C1+16+4*ks, 4)
    da = lambda t, ks: vr(A_+4*(2*t+ks), 4); db = lambda t, ks: vr(B_+4*(2*t+ks), 4)
    tr = lambda t: vr(TR+4*t, 4); ti = lambda t: vr(TI+4*t, 4)
    seq = []
    for step in range(4):
        ks = step % 2
        for t in range(2):
            cr = "0" if step == 0 else tr(t); ci = "0" if step == 0 else ti(t)
            if step < 2:
                a(f"{MF16} {tr(t)}, {da(t,ks)}, {P(ks)}, {cr}")
                a(f"{MF16} {ti(t)}, {da(t,ks)}, {NQ(ks)}, {ci}")
            else:
                a(f"{MF16} {tr(t)}, {db(t,ks)}, {Q(ks)}, {cr}")
                a(f"{MF16} {ti(t)}, {db(t,ks)}, {P(ks)}, {ci}")
    a("s_barrier")
    a("s_waitcnt vmcnt(12)")
    a(f"s_add_u32 s46, s45, {offs['C5']}")
    a("s_nop 7")
    ld(C1, 6, 46)
    def cmul(xr, xi, c, s, outr, outi, conj=False):
        for p in range(0, 4, 2):
            a(f"v_pk_mul_f32 {vr(T+p,2)}, {vr(xi+p,2)}, {vr(s+p,2)}")
            a(f"v_pk_mul_f32 {vr(T+4+p,2)}, {vr(xi+p,2)}, {vr(c+p,2)}")
        for p in range(0, 4, 2):
            a(f"v_pk_fma_f32 {vr(outr+p,2)}, {vr(xr+p,2)}, {vr(c+p,2)}, {vr(T+p,2)} neg_lo:[0,0,1] neg_hi:[0,0,1]")
            a(f"v_pk_fma_f32 {vr(outi+p,2)}, {vr(xr+p,2)}, {vr(s+p,2)}, {vr(T+4+p,2)}")
    O1 = T + 8
    def packRI(t):
        a(f"v_cvt_pk_bf16_f32 v{PK+2*t}, v{O1}, v{O1+1}")
        a(f"v_cvt_pk_bf16_f32 v{PK+2*t+1}, v{O1+2}, v{O1+3}")
        a(f"v_cvt_pk_bf16_f32 v{PK+4+2*t}, v{O1+4}, v{O1+5}")
        a(f"v_cvt_pk_bf16_f32 v{PK+4+2*t+1}, v{O1+6}, v{O1+7}")
    for t in range(2):
        cmul(TR+4*t, TI+4*t, TW+8*t, TW+8*t+4, O1, O1+4)
        packRI(t)
    dbg(a, [TR, TI, TW, PK])
    a("s_waitcnt vmcnt(12)")
    Fr = lambda u: vr(C3+4*u, 4); Fi = lambda u: vr(C3+8+4*u, 4); NFi = lambda u: vr(C3+16+4*u, 4)
    BR, BI = vr(PK, 4), vr(PK+4, 4)
    for u in range(2):
        a(f"{MF16} {tr(u)}, {Fr(u)}, {BR}, 0")
        a(f"{MF16} {ti(u)}, {Fi(u)}, {BR}, 0")
    for u in range(2):
        a(f"{MF16} {tr(u)}, {NFi(u)}, {BI}, {tr(u)}")
        a(f"{MF16} {ti(u)}, {Fr(u)}, {BI}, {ti(u)}")
    ST.stamp()
    a("s_barrier")
    a("s_waitcnt vmcnt(10)")
    for u in range(2):
        for i in range(4):
            a(f"v_lshlrev_b32 v{A_+8*u+i}, 16, v{WW+4*u+i}")
            a(f"v_and_b32 v{A_+8*u+4+i}, 0xffff0000, v{WW+4*u+i}")
    a("s_nop 3")
    for u in range(2):
        cmul(TR+4*u, TI+4*u, A_+8*u, A_+8*u+4, O1, O1+4)
        packRI(u)
    a("s_nop 1")
    AR, AI = vr(PK, 4), vr(PK+4, 4)
    for t in range(2):
        a(f"{MF16} {tr(t)}, {AR}, {Fr(t)}, 0")
        a(f"{MF16} {ti(t)}, {AR}, {NFi(t)}, 0")
    for t in range(2):
        a(f"{MF16} {tr(t)}, {AI}, {Fi(t)}, {tr(t)}")
        a(f"{MF16} {ti(t)}, {AI}, {Fr(t)}, {ti(t)}")
    dbg(a, [WW, PK, PK+4])
    a("s_barrier")
    a(f"v_and_b32 v{B_}, 15, v1")
    a(f"v_mul_u32_u24 v{B_}, 144, v{B_}")
    a(f"v_lshrrev_b32 v{B_+1}, 4, v1")
    a(f"v_lshl_add_u32 v{B_+2}, v{B_+1}, 3, v{B_}")
    a("s_lshl_b32 s46, s41, 5")
    a(f"s_add_u32 s46, s46, {XB}")
    a(f"v_add_u32 v{B_+2}, s46, v{B_+2}")
    a(f"v_lshl_add_u32 v{B_+3}, v{B_+1}, 4, v{B_}")
    a(f"v_add_u32 v{B_+3}, {XB}, v{B_+3}")
    a("s_waitcnt vmcnt(6)")
    for t in range(2):
        cmul(TR+4*t, TI+4*t, TW2R+8*t, TW2R+8*t+4, O1, O1+4)
        packRI(t)
        a(f"ds_write_b64 v{B_+2}, {vr(PK+2*t,2)} offset:{t*16*144}")
        a(f"ds_write_b64 v{B_+2}, {vr(PK+4+2*t,2)} offset:{4608+t*16*144}")
    a("s_waitcnt lgkmcnt(0)")
    ST.stamp()
    a("s_barrier")
    a("s_waitcnt vmcnt(0)")
    DR = 60
    for part in range(2):
        for t in range(2):
            for ks in range(2):
                a(f"ds_read_b128 {vr(DR+4*(part*4+t*2+ks),4)}, v{B_+3} offset:{part*4608+t*16*144+ks*64}")
    a("s_waitcnt lgkmcnt(0)")
    dbg(a, [DR, DR+16, C1, PK])
    A1 = lambda ks: vr(C1+4*ks, 4); A2 = lambda ks: vr(C1+8+4*ks, 4); NA2 = lambda ks: vr(C1+16+4*ks, 4)
    br = lambda t, ks: vr(DR+4*(t*2+ks), 4); bi = lambda t, ks: vr(DR+4*(4+t*2+ks), 4)
    a("s_waitcnt lgkmcnt(0)")
    for step in range(4):
        ks = step % 2
        for t in range(2):
            cm = "0" if step == 0 else tr(t); cp = "0" if step == 0 else ti(t)
            if step < 2:
                a(f"{MF16} {tr(t)}, {A1(ks)}, {br(t,ks)}, {cm}")
                a(f"{MF16} {ti(t)}, {A2(ks)}, {br(t,ks)}, {cp}")
            else:
                a(f"{MF16} {tr(t)}, {NA2(ks)}, {bi(t,ks)}, {cm}")
                a(f"{MF16} {ti(t)}, {A1(ks)}, {bi(t,ks)}, {cp}")
    a("s_nop 7")
    a("s_cmp_eq_u32 s2, 0")
    a(f"s_cbranch_scc1 {N}_avg")
    a("s_cmp_eq_u32 s2, 224")
    a(f"s_cbranch_scc0 {N}_noavg")
    a(f"{N}_avg:")
    for i in range(8):
        a(f"v_add_f32 v{TR+i}, v{TR+i}, v{TI+i}")
        a(f"v_mul_f32 v{TR+i}, 0.5, v{TR+i}")
        a(f"v_mov_b32 v{TI+i}, v{TR+i}")
    a(f"{N}_noavg:")
    for t in range(2):
        a(f"v_cvt_pk_bf16_f32 v{PK+2*t}, v{TR+4*t}, v{TR+4*t+1}")
        a(f"v_cvt_pk_bf16_f32 v{PK+2*t+1}, v{TR+4*t+2}, v{TR+4*t+3}")
        a(f"v_cvt_pk_bf16_f32 v{PK+4+2*t}, v{TI+4*t}, v{TI+4*t+1}")
        a(f"v_cvt_pk_bf16_f32 v{PK+4+2*t+1}, v{TI+4*t+2}, v{TI+4*t+3}")
    a("v_lshlrev_b32 v2, 3, v1")
    a("s_lshl_b32 s46, s41, 10")
    a("s_lshl_b32 s47, s2, 12")
    a("s_add_u32 s47, s47, s46")
    a(f"s_add_u32 s47, s47, {UT}")
    a("s_lshl_b32 s48, s43, 12")
    a("s_add_u32 s48, s48, s46")
    a(f"s_add_u32 s48, s48, {UT}")
    for t in range(2):
        a(f"buffer_store_dwordx2 {vr(PK+2*t,2)}, v2, {ws}, s47 offen offset:{t*512}")
        a(f"buffer_store_dwordx2 {vr(PK+4+2*t,2)}, v2, {ws}, s48 offen offset:{t*512}")
    fin2(a)
```

```python
from asmlib import *
from k1 import QF, KV, X1, WT, OF, UT, WS_SIZE, srd, load_ptrs
SLOT = 24576
NSLOT = 6
LDS = SLOT * NSLOT
MF32 = "v_mfma_f32_32x32x16_bf16"

def gen_k3(name="k3_kernel"):
    a = Asm()
    N = name
    ST_, SW, SO = 24, 28, 32
    ACC = 32
    TF = [48, 52]; WF = [56, 60]
    VT, VW = 10, 12
    a("s_cmp_ge_u32 s2, 256")
    a(f"s_cbranch_scc1 {N}_end")
    ST = Stamps(a, 2, 50)
    if STAMP:
        for i in range(76, 100): a(f"s_mov_b32 s{i}, 0")
    ST.stamp(); ST.stamp(True)
    load_ptrs(a)
    a("s_and_b32 s44, s2, 7")
    a("s_lshr_b32 s45, s2, 3")
    a("s_and_b32 s48, s44, 1")
    a("s_lshr_b32 s46, s44, 1")
    a("s_lshl_b32 s46, s46, 3")
    a("s_and_b32 s47, s45, 7")
    a("s_add_u32 s46, s46, s47")
    a("s_lshr_b32 s49, s45, 3")
    a("v_and_b32 v1, 63, v0")
    a("v_lshrrev_b32 v2, 6, v0")
    a("s_nop 0")
    a("v_readfirstlane_b32 s50, v2")
    a("s_getpc_b64 s[52:53]")
    a("s_add_u32 s52, s52, HTAB@rel32@lo+4")
    a("s_addc_u32 s53, s53, HTAB@rel32@hi+12")
    a("s_waitcnt lgkmcnt(0)")
    ST.stamp()
    srd(a, ST_, 20, 21, WS_SIZE)
    a("s_cmp_eq_u32 s48, 1")
    a("s_cselect_b32 s54, s52, s8")
    a("s_cselect_b32 s55, s53, s9")
    srd(a, SW, 54, 55, 448*896)
    srd(a, SO, 16, 17, 2048*1792)
    a("v_lshrrev_b32 v2, 4, v1")
    a("s_lshl_b32 s58, s50, 3")
    a("v_add_u32 v3, s58, v2")
    a("v_lshlrev_b32 v15, 2, v2")
    a("v_and_b32 v16, 15, v1")
    a("v_xor_b32 v15, v15, v16")
    a("v_lshlrev_b32 v15, 4, v15")
    a("s_mul_i32 s57, s49, 224")
    a("v_add_u32 v15, s57, v15")
    a("s_movk_i32 s58, 896")
    a("s_cmp_eq_u32 s48, 1")
    a(f"s_cbranch_scc1 {N}_wB")
    for k, rho_add in ((0, 0), (1, 4)):
        a(f"v_add_u32 v17, {rho_add}, v3")
        a("v_and_b32 v18, 31, v17")
        a("v_cmp_lt_u32 vcc, 27, v18")
        a("v_subrev_u32 v19, 4, v18")
        a("s_nop 0")
        a("v_cndmask_b32 v18, v18, v19, vcc")
        a("v_lshrrev_b32 v17, 5, v17")
        a("v_mul_u32_u24 v17, 28, v17")
        a("v_add_u32 v17, v17, v18")
        a("v_mul_lo_u32 v17, v17, s58")
        a(f"v_add_u32 v{VW+k}, v17, v15")
    a(f"s_mov_b32 s59, {56*896}")
    a(f"s_branch {N}_wdone")
    a(f"{N}_wB:")
    for k, rho_add in ((0, 0), (1, 4)):
        a(f"v_add_u32 v17, {rho_add}, v3")
        a("v_mul_lo_u32 v17, v17, s58")
        a(f"v_add_u32 v{VW+k}, v17, v15")
    a(f"s_mov_b32 s59, {64*896}")
    a(f"{N}_wdone:")
    a("s_cmp_eq_u32 s48, 1")
    a(f"s_cbranch_scc1 {N}_tB")
    a("s_lshl_b32 s60, s46, 1")
    a("s_lshr_b32 s61, s50, 2")
    a("s_add_u32 s60, s60, s61")
    a("s_lshl_b32 s60, s60, 4")
    a("s_bfe_u32 s61, s50, 0x10001")
    a("s_add_u32 s60, s60, s61")
    a("s_lshl_b32 s60, s60, 1")
    a("s_and_b32 s61, s50, 1")
    a("s_add_u32 s60, s60, s61")
    a("s_lshl_b32 s60, s60, 10")
    a(f"s_add_u32 s60, s60, {OF}")
    a(f"v_lshlrev_b32 v{VT}, 4, v1")
    a("s_movk_i32 s61, 4096")
    a(f"s_branch {N}_tdone")
    a(f"{N}_tB:")
    a("v_lshrrev_b32 v2, 3, v1")
    a("s_lshl_b32 s60, s50, 3")
    a("v_add_u32 v2, s60, v2")
    a("v_bfe_u32 v3, v2, 1, 1")
    a("v_lshlrev_b32 v3, 2, v3")
    a("v_and_b32 v16, 7, v1")
    a("v_xor_b32 v3, v3, v16")
    a("v_lshlrev_b32 v3, 4, v3")
    a(f"v_lshl_add_u32 v{VT}, v2, 12, v3")
    a("s_lshl_b32 s60, s46, 7")
    a(f"s_add_u32 s60, s60, {UT}")
    a(f"s_mov_b32 s61, {64*4096}")
    a(f"{N}_tdone:")
    a("s_lshl_b32 s62, s50, 10")
    a("s_lshl_b32 s63, s50, 11")
    a("s_mov_b32 s64, 0")
    def dma(c):
        slot = c % NSLOT
        a(f"s_add_u32 m0, s62, {slot*SLOT}")
        a("s_nop 0")
        a(f"buffer_load_dwordx4 v{VT}, s[{ST_}:{ST_+3}], s60 offen lds")
        a(f"s_add_u32 m0, s63, {slot*SLOT+8192}")
        a("s_add_u32 s60, s60, s61")
        a(f"buffer_load_dwordx4 v{VW}, s[{SW}:{SW+3}], s64 offen lds")
        a(f"s_add_u32 m0, s63, {slot*SLOT+8192+1024}")
        a("s_nop 0")
        a(f"buffer_load_dwordx4 v{VW+1}, s[{SW}:{SW+3}], s64 offen lds")
        a("s_add_u32 s64, s64, s59")
    for c in range(6):
        dma(c)
    WA, TA = 4, 5
    a("v_lshrrev_b32 v2, 5, v1")
    a("v_bfe_u32 v3, v1, 2, 2")
    a("v_lshl_add_u32 v2, v2, 2, v3")
    a("v_lshlrev_b32 v16, 8, v2")
    a("v_add_u32 v16, 8192, v16")
    a("v_bfe_u32 v15, v1, 4, 1")
    a("v_lshlrev_b32 v15, 5, v15")
    a("v_and_b32 v17, 3, v1")
    a("v_lshl_add_u32 v15, v17, 3, v15")
    a("s_lshr_b32 s65, s50, 1")
    a("s_mul_i32 s65, s65, 56")
    a("v_add_u32 v17, s65, v15")
    a("v_lshrrev_b32 v18, 4, v17")
    a("v_lshlrev_b32 v19, 2, v3")
    a("v_xor_b32 v18, v18, v19")
    a("v_and_b32 v17, 15, v17")
    a("v_lshl_add_u32 v17, v18, 4, v17")
    a(f"v_add_u32 v{WA}, v16, v17")
    a("s_and_b32 s65, s50, 1")
    a("s_cmp_eq_u32 s48, 1")
    a(f"s_cbranch_scc1 {N}_raB")
    a("s_lshl_b32 s65, s65, 12")
    a(f"v_lshlrev_b32 v{TA}, 4, v1")
    a(f"v_add_u32 v{TA}, s65, v{TA}")
    a(f"s_branch {N}_radone")
    a(f"{N}_raB:")
    a("s_lshl_b32 s65, s65, 6")
    a("v_add_u32 v17, s65, v15")
    a("v_lshrrev_b32 v18, 4, v17")
    a("v_bfe_u32 v19, v2, 1, 1")
    a("v_lshlrev_b32 v19, 2, v19")
    a("v_xor_b32 v18, v18, v19")
    a("v_and_b32 v17, 15, v17")
    a("v_lshl_add_u32 v17, v18, 4, v17")
    a(f"v_lshl_add_u32 v{TA}, v2, 7, v17")
    a(f"{N}_radone:")
    for r in range(ACC, ACC+16):
        a(f"v_mov_b32 v{r}, 0")
    ST.stamp()
    P = dict(STP=ST, N=N, ACC=ACC, TF=TF, WF=WF, WA=WA, TA=TA, dma=dma)
    a("s_cmp_eq_u32 s48, 1")
    a(f"s_cbranch_scc1 {N}_mainB")
    main(a, P, False)
    a(f"s_branch {N}_epi")
    a(f"{N}_mainB:")
    main(a, P, True)
    a(f"{N}_epi:")
    for i in range(8):
        a(f"v_cvt_pk_bf16_f32 v{48+i}, v{ACC+2*i}, v{ACC+2*i+1}")
    a("s_barrier")
    a("v_and_b32 v2, 31, v1")
    a("s_and_b32 s65, s50, 1")
    a("s_lshl_b32 s65, s65, 5")
    a("v_add_u32 v2, s65, v2")
    a("v_mul_u32_u24 v2, 240, v2")
    a("v_lshrrev_b32 v3, 5, v1")
    a("v_lshl_add_u32 v2, v3, 3, v2")
    a("s_lshr_b32 s65, s50, 1")
    a("s_mul_i32 s65, s65, 56")
    a("v_add_u32 v2, s65, v2")
    for jp in range(3):
        a(f"ds_write_b64 v2, {vr(48+2*jp,2)} offset:{jp*16}")
    a("s_mov_b32 exec_hi, 0")
    a(f"ds_write_b64 v2, {vr(48+6,2)} offset:48")
    a("s_mov_b32 exec_hi, -1")
    a("s_waitcnt lgkmcnt(0)")
    a("s_barrier")
    a("s_mul_i32 s65, s48, 896")
    a("s_mul_i32 s66, s49, 224")
    a("s_add_u32 s65, s65, s66")
    a("s_lshl_b32 s66, s46, 6")
    def rb(it):
        a(f"v_add_u32 v4, {512*it}, v0")
        a("v_mul_u32_u24 v5, 4682, v4")
        a("v_lshrrev_b32 v5, 16, v5")
        a("v_mul_u32_u24 v6, 14, v5")
        a("v_sub_u32 v6, v4, v6")
        a("v_mul_u32_u24 v7, 240, v5")
        a("v_lshl_add_u32 v7, v6, 4, v7")
        a(f"ds_read_b128 {vr(32+4*it,4)}, v7")
        a("v_add_u32 v5, s66, v5")
        a("s_cmp_eq_u32 s48, 0")
        a(f"s_cbranch_scc1 {N}_tk{it}")
        a("v_and_b32 v8, 3, v5")
        a("v_bfe_u32 v9, v5, 6, 2")
        a("v_lshl_add_u32 v8, v9, 2, v8")
        a("v_lshrrev_b32 v9, 9, v5")
        a("v_lshl_add_u32 v8, v9, 4, v8")
        a("v_lshlrev_b32 v8, 5, v8")
        a("v_bfe_u32 v9, v5, 8, 1")
        a("v_lshl_add_u32 v8, v9, 4, v8")
        a("v_bfe_u32 v9, v5, 2, 4")
        a("v_add_u32 v5, v8, v9")
        a(f"{N}_tk{it}:")
        a("v_mul_u32_u24 v5, 1792, v5")
        a(f"v_lshl_add_u32 v{20+it}, v6, 4, v5")
    rb(0)
    a("s_waitcnt lgkmcnt(0)")
    a(f"buffer_store_dwordx4 {vr(32,4)}, v20, s[{SO}:{SO+3}], s65 offen")
    a("v_cmp_gt_u32 vcc, 384, v0")
    a("s_and_saveexec_b64 s[66:67], vcc")
    a(f"s_cbranch_execz {N}_fin")
    a("s_lshl_b32 s66, s46, 6")
    rb(1)
    a("s_waitcnt lgkmcnt(0)")
    a(f"buffer_store_dwordx4 {vr(36,4)}, v21, s[{SO}:{SO+3}], s65 offen")
    a(f"{N}_fin:")
    if STAMP:
        a("s_waitcnt vmcnt(0)")
        ST.end()
        ST.flush(2)
    a("s_endpgm")
    a(f"{N}_end:")
    a("s_endpgm")
    return a

def main(a, P, partB):
    TF, WF, WA, TA, ACC, dma = P["TF"], P["WF"], P["WA"], P["TA"], P["ACC"], P["dma"]
    nch = 7 if partB else 8
    nst = nch * 4
    base = [0]
    def reads(n):
        c, kk = n // 4, n % 4
        slot = c % NSLOT
        want = (slot // 2) * 2 * SLOT
        if want != base[0]:
            d = want - base[0]
            for r in (WA, TA):
                a(f"v_add_u32 v{r}, {d & 0xffffffff:#x}, v{r}")
            base[0] = want
        off = slot * SLOT - want
        b = n % 2
        if partB:
            a(f"ds_read_b64_tr_b16 {vr(TF[b],2)}, v{TA} offset:{off + kk*16*128}")
            a(f"ds_read_b64_tr_b16 {vr(TF[b]+2,2)}, v{TA} offset:{off + kk*16*128 + 8*128}")
        else:
            a(f"ds_read_b128 {vr(TF[b],4)}, v{TA} offset:{off + kk*1024}")
        a(f"ds_read_b64_tr_b16 {vr(WF[b],2)}, v{WA} offset:{off + kk*16*256}")
        a(f"ds_read_b64_tr_b16 {vr(WF[b]+2,2)}, v{WA} offset:{off + kk*16*256 + 8*256}")
    nr = 4 if partB else 3
    issued = 6
    def younger(c):
        return 3 * (min(issued, nch if False else 99) - 1 - c)
    a(f"s_waitcnt vmcnt({3*5})")
    a("s_barrier")
    P["STP"].n = 4; P["STP"].stamp()
    reads(0)
    for n in range(nst):
        b = n % 2
        if n + 1 < nst:
            if (n + 1) % 4 == 0:
                c1 = (n + 1) // 4
                a(f"s_waitcnt vmcnt({3*(issued-1-c1)}) lgkmcnt(0)")
                a("s_barrier")
                if issued < nch and c1 - 1 + NSLOT == issued:
                    dma(issued); issued += 1
                reads(n + 1)
            else:
                reads(n + 1)
                a(f"s_waitcnt lgkmcnt({nr})")
        else:
            a("s_waitcnt lgkmcnt(0)")
        d = vr(ACC, 16)
        a(f"{MF32} {d}, {vr(WF[b],4)}, {vr(TF[b],4)}, {d}")
    a("s_nop 15")
    P["STP"].stamp()
```

```python
import sys
from asmlib import *
import tables, k1
NAME = "concat_heads__softmax_full_mha__spectral_gfnet__prompt"
def desc(name, nv, ns=100, acc=None):
    acc = acc or ((nv + 3) // 4 * 4)
    return f""".section .rodata,"a"
.p2align 6
.amdhsa_kernel {name}
  .amdhsa_next_free_vgpr {nv}
  .amdhsa_next_free_sgpr {ns}
  .amdhsa_accum_offset {acc}
  .amdhsa_group_segment_fixed_size 0
  .amdhsa_kernarg_size 72
  .amdhsa_user_sgpr_count 2
  .amdhsa_user_sgpr_kernarg_segment_ptr 1
  .amdhsa_system_sgpr_workgroup_id_x 1
.end_amdhsa_kernel
"""
def kern(name, a):
    return f".text\n.globl {name}\n.p2align 8\n.type {name},@function\n{name}:\n" + a.text()
HEAD = """; Kernarg layout: 0 A_x, 8 A_wqkv, 16 A_wo, 24 B_x, 32 B_w_r, 40 B_w_i, 48 d_out, 56 d_debug, 64 d_ws
"""
def build(which, out):
    ks = []
    if "1" in which:
        ks.append(("k1_kernel", k1.gen_k1_full("k1_kernel"), (256, k1.BLOCK, k1.LDS), 96))
    if "2" in which:
        import k2
        ks.append(("k2_kernel", k2.gen_k2("k2_kernel"), (256, 768, k2.LDS), 168))
    if "3" in which:
        import k3
        ks.append(("k3_kernel", k3.gen_k3("k3_kernel"), (256, 512, k3.LDS), 96))
    s = HEAD
    for n, a, (g, b, l), nv in ks:
        s += f"; @launch kernel={n} grid=({g},1,1) block=({b},1,1) lds={l}\n"
    s += '.amdgcn_target "amdgcn-amd-amdhsa--gfx950"\n'
    import os, re
    fl = os.environ.get("STFLAG")
    if fl:
        for n, a, _, nv in ks:
            if n == "k3_kernel" and not os.environ.get("STFLAG3"): continue
            for i, ln in enumerate(a.lines):
                if ln.startswith("buffer_store"): a.lines[i] = ln + " " + fl
    nprob = 0
    for n, a, _, nv in ks:
        pr = check(a.lines, n)
        for p in pr: print(p)
        nprob += len(pr)
        s += kern(n, a)
    for n, a, _, nv in ks:
        s += desc(n, nv)
    offs, blob = tables.build()
    s += '.section .rodata,"a"\n.p2align 8\n'
    s += tables.htab_asm("HTAB")
    s += ".p2align 8\n" + tables.emit_blob(blob, "FTAB")
    open(out, "w").write(s)
    print("hazard problems:", nprob, "size:", len(s))
if __name__ == "__main__":
    build(sys.argv[1], sys.argv[2])
```

```python
from asmlib import *
import struct, math, os
import tables
QF, KV, X1, WT, OF, UT, FL = 0x000000, 0x200000, 0x600000, 0x800000, 0xA00000, 0xC00000, 0xE00000
WS_SIZE = 0xE10000
F1, FW, FO, FU = FL, FL + 0x1000, FL + 0x2000, FL + 0x3000
OOB = 0xF00000 + 0x100000
def f32bits(x): return struct.unpack("<I", struct.pack("<f", x))[0]
QSCALE = f32bits((28 ** -0.5) * math.log2(math.e))
BLOCK = 768
LDS = 163840
MF32 = "v_mfma_f32_32x32x16_bf16"
MF16 = "v_mfma_f32_16x16x32_bf16"
SWS = 24
ws = "s[24:27]"
SC = " sc1"
SPIN = int(os.environ.get('SPIN', '400000'))
E = os.environ.get

def srd(a, d, lo, hi, size):
    a(f"s_mov_b32 s{d}, s{lo}")
    a(f"s_and_b32 s{d+1}, s{hi}, 0xffff")
    a(f"s_mov_b32 s{d+2}, {size}")
    a(f"s_mov_b32 s{d+3}, 0x20000")
def pack(a, src, dst, n=8):
    for i in range(n):
        a(f"v_cvt_pk_bf16_f32 v{dst+i}, v{src+2*i}, v{src+2*i+1}")

_uid = [0]
def uid():
    _uid[0] += 1
    return _uid[0]

def get_tag(a):
    n = uid()
    srd(a, 72, 18, 19, 256)
    a("v_mov_b32 v2, 0")
    a("s_mov_b32 s70, 0")
    a(f"tagL{n}:")
    a("buffer_load_dword v3, v2, s[72:75], 0 offen sc1")
    a("s_waitcnt vmcnt(0)")
    a("v_readfirstlane_b32 s23, v3")
    a("s_nop 3")
    a("s_cmp_lg_u32 s23, 0")
    a(f"s_cbranch_scc1 tagD{n}")
    a("s_add_u32 s70, s70, 1")
    a(f"s_cmp_lt_u32 s70, {SPIN}")
    a("s_sleep 1")
    a(f"s_cbranch_scc1 tagL{n}")
    a(f"tagD{n}:")

def poll(a, voffs, masks=None):
    n = uid()
    a("s_mov_b32 s70, 0")
    a("s_mov_b64 s[68:69], exec")
    a(f"plL{n}:")
    for i, vo in enumerate(voffs):
        if masks and masks[i] is not None: a(f"s_mov_b64 exec, {masks[i]}")
        else: a("s_mov_b64 exec, -1")
        a(f"buffer_load_dword v{160+i}, v{vo}, {ws}, 0 offen sc1")
    a("s_waitcnt vmcnt(0)")
    a("s_mov_b64 s[66:67], 0")
    for i, vo in enumerate(voffs):
        if masks and masks[i] is not None: a(f"s_mov_b64 exec, {masks[i]}")
        else: a("s_mov_b64 exec, -1")
        a(f"v_cmp_ne_u32 vcc, s23, v{160+i}")
        a("s_nop 1")
        a("s_or_b64 s[66:67], s[66:67], vcc")
    a("s_mov_b64 exec, s[68:69]")
    a("s_cmp_eq_u64 s[66:67], 0")
    a(f"s_cbranch_scc1 plD{n}")
    a("s_add_u32 s70, s70, 1")
    a(f"s_cmp_lt_u32 s70, {SPIN}")
    a("s_sleep 2")
    a(f"s_cbranch_scc1 plL{n}")
    a(f"plD{n}:")

def signal(a, off_sgpr):
    a("s_mov_b64 s[68:69], exec")
    a("s_mov_b64 exec, 1")
    a("v_mov_b32 v2, 0")
    a("v_mov_b32 v3, s23")
    a(f"buffer_store_dword v3, v2, {ws}, s{off_sgpr} offen sc1")
    a("s_mov_b64 exec, s[68:69]")

def gen(name):
    a = Asm()
    N = "F"
    ST = Stamps(a, 0, 22)
    a("s_cmp_ge_u32 s2, 256")
    a(f"s_cbranch_scc1 {N}_end")
    if STAMP:
        for i in range(76, 100): a(f"s_mov_b32 s{i}, 0")
    ST.stamp(); ST.stamp(True)
    a("s_load_dwordx16 s[4:19], s[0:1], 0")
    a("s_load_dwordx2 s[20:21], s[0:1], 64")
    a("v_and_b32 v1, 63, v0")
    a("v_lshrrev_b32 v2, 6, v0")
    a("s_nop 0")
    a("v_readfirstlane_b32 s22, v2")
    a("s_and_b32 s44, s2, 7")
    a("s_lshr_b32 s45, s2, 3")
    a("s_and_b32 s48, s44, 3")
    a("s_lshr_b32 s46, s44, 2")
    a("s_lshl_b32 s46, s46, 3")
    a("s_and_b32 s47, s45, 7")
    a("s_add_u32 s46, s46, s47")
    a("s_lshr_b32 s49, s45, 3")
    a("s_cmp_ge_u32 s22, 8")
    a(f"s_cbranch_scc1 {N}_aux")
    p1_addr(a)
    a("s_waitcnt lgkmcnt(0)")
    ST.stamp()
    srd(a, SWS, 20, 21, WS_SIZE)
    a("s_cmp_lg_u32 s22, 0")
    a(f"s_cbranch_scc1 {N}_notag")
    a("s_cmp_lg_u32 s2, 0")
    a(f"s_cbranch_scc1 {N}_gettag")
    a("s_memrealtime s[70:71]")
    a("s_waitcnt lgkmcnt(0)")
    a("s_or_b32 s23, s70, 1")
    srd(a, 72, 18, 19, 256)
    a("s_mov_b64 exec, 1")
    a("v_mov_b32 v2, 0")
    a("v_mov_b32 v3, s23")
    a("buffer_store_dword v3, v2, s[72:75], 0 offen sc1")
    a("s_mov_b64 exec, -1")
    a(f"s_branch {N}_notag")
    a(f"{N}_gettag:")
    get_tag(a)
    a(f"{N}_notag:")
    p1_compute(a, N, ST)
    a(f"{N}_p1done:")
    a("s_waitcnt vmcnt(0)")
    a("s_barrier")
    ST.n = 4; ST.stamp()
    a("s_cmp_lg_u32 s22, 0")
    a(f"s_cbranch_scc1 {N}_p2s")
    a("s_lshl_b32 s50, s48, 2")
    a("s_add_u32 s50, s50, s49")
    a("s_lshl_b32 s50, s50, 7")
    a("s_lshl_b32 s51, s46, 2")
    a("s_add_u32 s50, s50, s51")
    a(f"s_add_u32 s50, s50, {F1}")
    signal(a, 50)
    a("s_and_b32 s41, s2, 7")
    a("s_lshl_b32 s41, s41, 1")
    a("s_bfe_u32 s42, s2, 0x10003")
    a("s_add_u32 s41, s41, s42")
    a("s_lshr_b32 s42, s2, 4")
    a("s_lshr_b32 s43, s41, 2")
    a("v_and_b32 v4, 15, v1")
    a("v_lshlrev_b32 v4, 2, v4")
    a("v_lshrrev_b32 v5, 4, v1")
    a("v_add_u32 v5, 1, v5")
    a("v_cmp_eq_u32 vcc, 3, v5")
    a("s_lshl_b32 s50, s42, 2")
    a("v_mov_b32 v6, s50")
    a("v_cndmask_b32 v5, v5, 0, vcc")
    a("v_cndmask_b32 v4, v4, v6, vcc")
    a("v_lshlrev_b32 v5, 9, v5")
    a("s_lshl_b32 s50, s43, 7")
    a(f"s_add_u32 s50, s50, {F1}")
    a("v_add3_u32 v4, v4, v5, s50")
    a("s_mov_b32 s52, -1")
    a("s_mov_b32 s53, 1")
    poll(a, [4], ["s[52:53]"])
    a(f"{N}_p2s:")
    a("s_barrier")
    ST.stamp()
    p2_attn(a, N, ST)
    a("s_waitcnt vmcnt(0)")
    a("s_barrier")
    ST.n = 7; ST.stamp()
    p3_decode(a)
    a("s_cmp_lg_u32 s22, 0")
    a(f"s_cbranch_scc1 {N}_p3s")
    a("s_lshl_b32 s50, s42, 7")
    a("s_lshl_b32 s51, s41, 2")
    a("s_add_u32 s50, s50, s51")
    a(f"s_add_u32 s50, s50, {FO}")
    signal(a, 50)
    a("s_cmp_eq_u32 s48, 1")
    a(f"s_cbranch_scc1 {N}_pollU")
    a("s_lshr_b32 s50, s46, 1")
    a("s_lshl_b32 s50, s50, 7")
    a(f"s_add_u32 s50, s50, {FO}")
    a("v_lshlrev_b32 v4, 2, v1")
    a("v_add_u32 v4, s50, v4")
    a("s_mov_b32 s52, 0xffff")
    a("s_mov_b32 s53, 0")
    poll(a, [4], ["s[52:53]"])
    a(f"s_branch {N}_p3s")
    a(f"{N}_pollU:")
    a("v_lshlrev_b32 v4, 2, v1")
    a(f"v_add_u32 v4, {FU}, v4")
    for i in range(1, 4): a(f"v_add_u32 v{4+i}, {256*i}, v4")
    a("s_mov_b32 s52, -1")
    a("s_mov_b32 s53, 1")
    poll(a, [4, 5, 6, 7], [None, None, None, "s[52:53]"])
    a(f"{N}_p3s:")
    a("s_barrier")
    ST.stamp()
    p3_compute(a, N, ST)
    a(f"{N}_aux:")
    p1_loader(a, N, ST)
    a("s_barrier")
    p1_side_finish(a, N)
    fft_consts(a, N)
    a("s_cmp_lg_u32 s22, 8")
    a(f"s_cbranch_scc1 {N}_ap2s")
    a("s_cmp_ge_u32 s2, 225")
    a(f"s_cbranch_scc1 {N}_ap2s")
    a("s_mul_i32 s50, s2, 586")
    a("s_lshr_b32 s50, s50, 16")
    a("s_sub_u32 s51, 448, s2")
    a("s_cmp_eq_u32 s2, 0")
    a("s_cselect_b32 s51, 0, s51")
    a("s_mul_i32 s51, s51, 586")
    a("s_lshr_b32 s51, s51, 16")
    a("v_and_b32 v150, 15, v1")
    a("v_lshlrev_b32 v150, 2, v150")
    a("v_cmp_lt_u32 vcc, 15, v1")
    a("v_mov_b32 v151, s50")
    a("v_mov_b32 v152, s51")
    a("v_cndmask_b32 v151, v151, v152, vcc")
    a("v_lshlrev_b32 v151, 7, v151")
    a("v_add_u32 v150, v150, v151")
    a(f"v_add_u32 v150, {F1 + 12*128}, v150")
    a("s_lshr_b32 s50, s2, 6")
    a("s_lshl_b32 s50, s50, 10")
    a(f"s_add_u32 s50, s50, {FW}")
    a("v_lshlrev_b32 v151, 2, v1")
    a("v_add_u32 v151, s50, v151")
    for i in range(1, 4): a(f"v_add_u32 v{151+i}, {256*i}, v151")
    a("s_mov_b32 s52, -1")
    a("s_mov_b32 s53, 0")
    poll(a, [150, 151, 152, 153, 154], ["s[52:53]", None, None, None, None])
    a(f"{N}_ap2s:")
    a("s_barrier")
    p2_fft(a, N, ST)
    a("s_barrier")
    p3_decode(a)
    p3_loader(a, N, ST)
    a(f"{N}_end:")
    a("s_endpgm")
    return a

def fin(a, ST):
    if STAMP:
        a("s_waitcnt vmcnt(0)")
        ST.end()
        ST.flush(0)
    a("s_endpgm")

ACC = 32
XF = [64, 68]; WF = [[72, 76], [80, 84]]
XA = [4, 5, 6, 7]; WA = [8, 9]
NS1 = 4
def p1_addr(a):
    a("s_and_b32 s62, s22, 3")
    a("s_lshl_b32 s62, s62, 12")
    a("v_and_b32 v2, 31, v1")
    a("v_lshlrev_b32 v3, 7, v2")
    a("v_bfe_u32 v15, v1, 1, 3")
    a("v_lshrrev_b32 v25, 5, v1")
    a("v_xor_b32 v15, v15, v25")
    a("v_lshl_add_u32 v3, v15, 4, v3")
    a(f"v_add_u32 v{XA[0]}, s62, v3")
    for kk in range(1, 4):
        a(f"v_xor_b32 v{XA[kk]}, {kk*32}, v{XA[0]}")
    a("v_lshrrev_b32 v2, 5, v1")
    a("v_bfe_u32 v3, v1, 2, 2")
    a("v_lshl_add_u32 v2, v2, 3, v3")
    a("v_lshlrev_b32 v2, 8, v2")
    a("v_add_u32 v2, 16384, v2")
    a("v_bfe_u32 v15, v1, 4, 1")
    a("v_lshlrev_b32 v15, 5, v15")
    a("v_and_b32 v25, 3, v1")
    a("v_lshl_add_u32 v15, v25, 3, v15")
    a("s_lshr_b32 s62, s22, 2")
    a("s_mul_i32 s62, s62, 112")
    a("v_lshlrev_b32 v26, 2, v3")
    for g in range(2):
        a(f"v_add_u32 v25, s62, v15")
        if g: a(f"v_add_u32 v25, 56, v25")
        a(f"v_lshrrev_b32 v27, 4, v25")
        a(f"v_xor_b32 v27, v27, v26")
        a(f"v_and_b32 v25, 15, v25")
        a(f"v_lshl_add_u32 v25, v27, 4, v25")
        a(f"v_add_u32 v{WA[g]}, v2, v25")
    for r in range(ACC, ACC+32):
        a(f"v_mov_b32 v{r}, 0")

def p1_main(a, ST, qk):
    base = [0]
    def reads(n):
        c, kk = n // 4, n % 4
        slot = c % NS1
        want = (slot // 2) * 65536
        if want != base[0]:
            d = want - base[0]
            for r in XA + WA:
                a(f"v_add_u32 v{r}, {d & 0xffffffff:#x}, v{r}")
            base[0] = want
        off = slot * 32768 - want
        b = n % 2
        a(f"ds_read_b128 {vr(XF[b],4)}, v{XA[kk]} offset:{off}")
        for g in range(2):
            a(f"ds_read_b64_tr_b16 {vr(WF[b][g],2)}, v{WA[g]} offset:{off + kk*16*256}")
            a(f"ds_read_b64_tr_b16 {vr(WF[b][g]+2,2)}, v{WA[g]} offset:{off + kk*16*256 + 4*256}")
    a("s_barrier")
    reads(0)
    for n in range(28):
        b = n % 2
        if n + 1 < 28:
            if (n + 1) % 4 == 0:
                a(f"s_waitcnt lgkmcnt(0)")
                a("s_barrier")
                reads(n + 1)
            else:
                reads(n + 1)
                a("s_waitcnt lgkmcnt(5)")
        else:
            a("s_waitcnt lgkmcnt(0)")
        for g in range(2):
            d = vr(ACC + 16*g, 16)
            if qk: a(f"{MF32} {d}, {vr(WF[b][g],4)}, {vr(XF[b],4)}, {d}")
            else:  a(f"{MF32} {d}, {vr(XF[b],4)}, {vr(WF[b][g],4)}, {d}")
    a("s_nop 15")

def p1_compute(a, N, ST):
    a("s_cmp_ge_u32 s48, 2")
    a(f"s_cbranch_scc1 {N}_vx")
    p1_main(a, ST, True)
    ST.n = 3; ST.stamp()
    def headtile():
        a("s_lshl_b32 s58, s49, 2")
        a("s_lshr_b32 s59, s22, 2")
        a("s_lshl_b32 s59, s59, 1")
        a("s_add_u32 s58, s58, s59")
        a("s_lshl_b32 s58, s58, 6")
        a("s_lshl_b32 s59, s46, 2")
        a("s_add_u32 s58, s58, s59")
        a("s_and_b32 s59, s22, 3")
        a("s_add_u32 s58, s58, s59")
    def stores(gstride):
        for g in range(2):
            for j in range(2):
                a(f"s_add_u32 s59, s58, {g*64*gstride + j*1024}")
                a(f"buffer_store_dwordx4 {vr(64+8*g+4*j,4)}, v2, {ws}, s59 offen{SC}")
    headtile()
    a("v_lshlrev_b32 v2, 4, v1")
    a("s_cmp_eq_u32 s48, 1")
    a(f"s_cbranch_scc1 {N}_kep")
    a(f"s_mov_b32 s62, {QSCALE:#x}")
    for r in range(ACC, ACC+32):
        a(f"v_mul_f32 v{r}, s62, v{r}")
    a("s_mov_b32 exec_lo, 0")
    for g in range(2):
        for r in range(12, 16):
            a(f"v_mov_b32 v{ACC+16*g+r}, 0")
    a("s_mov_b32 exec_lo, -1")
    pack(a, ACC, 64, 16)
    a("s_lshl_b32 s58, s58, 11")
    a(f"s_add_u32 s58, s58, {QF}")
    stores(2048)
    a(f"s_branch {N}_p1done")
    a(f"{N}_kep:")
    a("s_mov_b32 exec_lo, 0")
    for g in range(2):
        a(f"v_mov_b32 v{ACC+16*g+12}, 1.0")
        for r in range(13, 16):
            a(f"v_mov_b32 v{ACC+16*g+r}, 0")
    a("s_mov_b32 exec_lo, -1")
    pack(a, ACC, 64, 16)
    a("s_lshl_b32 s58, s58, 12")
    a(f"s_add_u32 s58, s58, {KV}")
    stores(4096)
    a(f"s_branch {N}_p1done")
    a(f"{N}_vx:")
    p1_main(a, ST, False)
    ST.n = 3; ST.stamp()
    a("s_cmp_eq_u32 s48, 3")
    a(f"s_cbranch_scc1 {N}_xep")
    a("v_and_b32 v2, 31, v1")
    a("v_cmp_lt_u32 vcc, 27, v2")
    a("s_and_saveexec_b64 s[64:65], vcc")
    a("v_cmp_eq_u32 vcc, 28, v2")
    a("s_nop 1")
    a("v_cndmask_b32 v3, 0, 1.0, vcc")
    for r in range(ACC, ACC+32):
        a(f"v_mov_b32 v{r}, v3")
    a("s_mov_b64 exec, s[64:65]")
    pack(a, ACC, 64, 16)
    headtile()
    a("s_lshl_b32 s58, s58, 12")
    a(f"s_add_u32 s58, s58, {KV+2048}")
    a("v_lshlrev_b32 v2, 4, v1")
    stores(4096)
    a(f"s_branch {N}_p1done")
    a(f"{N}_xep:")
    pack(a, ACC, 64, 16)
    a("s_barrier")
    a("s_lshr_b32 s58, s22, 2")
    a("s_mul_i32 s58, s58, 56")
    a("v_and_b32 v2, 31, v1")
    a("v_lshrrev_b32 v3, 5, v1")
    a("s_and_b32 s59, s22, 3")
    a("s_lshl_b32 s59, s59, 2")
    a("v_add_u32 v3, s59, v3")
    a("v_cmp_gt_u32 vcc, 28, v2")
    a("s_and_saveexec_b64 s[64:65], vcc")
    for g in range(2):
        a(f"v_add_u32 v4, s58, v2")
        if g: a("v_add_u32 v4, 28, v4")
        a("v_and_b32 v5, 15, v4")
        for j in range(2):
            a(f"v_add_u32 v6, {2*j}, v3")
            a("v_xor_b32 v6, v6, v5")
            a("v_lshlrev_b32 v6, 4, v6")
            a("v_lshl_add_u32 v6, v4, 8, v6")
            a(f"ds_write_b128 v6, {vr(64+8*g+4*j,4)}")
    a("s_mov_b64 exec, s[64:65]")
    a("s_waitcnt lgkmcnt(0)")
    a("s_barrier")
    a("s_mul_i32 s58, s49, 112")
    a("s_lshl_b32 s58, s58, 12")
    a("s_lshr_b32 s59, s46, 1")
    a("s_lshl_b32 s59, s59, 9")
    a("s_add_u32 s58, s58, s59")
    a("s_and_b32 s59, s46, 1")
    a("s_lshl_b32 s59, s59, 8")
    a("s_add_u32 s58, s58, s59")
    a(f"s_add_u32 s58, s58, {X1}")
    a("v_lshrrev_b32 v2, 4, v0")
    a("v_and_b32 v3, 15, v0")
    def rb(it):
        a(f"v_add_u32 v4, {32*it}, v2")
        a("v_and_b32 v5, 15, v4")
        a("v_xor_b32 v5, v5, v3")
        a("v_lshlrev_b32 v5, 4, v5")
        a("v_lshl_add_u32 v5, v4, 8, v5")
        a(f"ds_read_b128 {vr(32+4*it,4)}, v5")
        a("v_lshlrev_b32 v6, 12, v4")
        a(f"v_lshl_add_u32 v{8+it}, v3, 4, v6")
    for it in range(3):
        rb(it)
    a("s_waitcnt lgkmcnt(0)")
    for it in range(3):
        a(f"buffer_store_dwordx4 {vr(32+4*it,4)}, v{8+it}, {ws}, s58 offen{SC}")
    a("v_add_u32 v4, 96, v2")
    a("v_cmp_gt_u32 vcc, 112, v4")
    a("s_and_saveexec_b64 s[64:65], vcc")
    a(f"s_cbranch_execz {N}_xfin")
    rb(3)
    a("s_waitcnt lgkmcnt(0)")
    a(f"buffer_store_dwordx4 {vr(32+12,4)}, v{8+3}, {ws}, s58 offen{SC}")
    a(f"{N}_xfin:")
    a("s_mov_b64 exec, s[64:65]")

def p1_loader(a, N, ST):
    SX, SW = 28, 32
    VX0, VX1, VW = 10, 11, 12
    PER = 4
    a("s_sub_u32 s51, s22, 8")
    a("s_getpc_b64 s[52:53]")
    a("s_add_u32 s52, s52, HTAB@rel32@lo+4")
    a("s_addc_u32 s53, s53, HTAB@rel32@hi+12")
    a("v_lshrrev_b32 v2, 3, v1")
    a("s_cmp_eq_u32 s48, 3")
    a(f"s_cbranch_scc0 {N}_lp")
    a("v_and_b32 v3, 3, v2")
    a("v_lshlrev_b32 v3, 5, v3")
    a("v_lshrrev_b32 v2, 5, v1")
    a("v_add_u32 v2, v2, v3")
    a(f"{N}_lp:")
    a("v_mul_u32_u24 v2, 896, v2")
    a("v_and_b32 v3, 7, v1")
    a("v_lshrrev_b32 v4, 4, v1")
    a("v_xor_b32 v5, v3, v4")
    a(f"v_lshl_add_u32 v{VX0}, v5, 4, v2")
    a("v_xor_b32 v5, 4, v5")
    a(f"v_lshl_add_u32 v{VX1}, v5, 4, v2")
    TK = 56
    a("s_cmp_eq_u32 s48, 3")
    a(f"s_cbranch_scc1 {N}_ltX")
    a("s_lshl_b32 s66, s46, 7")
    a(f"s_mul_i32 s67, s51, {8*PER}")
    a("s_add_u32 s66, s66, s67")
    for ii in range(PER):
        a(f"s_add_u32 s{TK+ii}, s66, {8*ii}")
    a(f"s_branch {N}_ltd")
    a(f"{N}_ltX:")
    a("s_lshr_b32 s66, s46, 1")
    a("s_lshl_b32 s66, s66, 8")
    a("s_and_b32 s67, s46, 1")
    a("s_lshl_b32 s67, s67, 4")
    a("s_add_u32 s66, s66, s67")
    a(f"s_mul_i32 s67, s51, {PER}")
    a("s_add_u32 s66, s66, s67")
    for ii in range(PER):
        a(f"s_add_u32 s{TK+ii}, s66, {128*(ii&1) + 4*(ii>>2) + 2*((ii>>1)&1)}")
    a(f"{N}_ltd:")
    for ii in range(PER):
        a(f"s_mulk_i32 s{TK+ii}, 896")
    a("s_cmp_eq_u32 s48, 3")
    a(f"s_movk_i32 s64, 2688")
    a(f"s_cselect_b32 s64, 896, s64")
    a("s_mul_i32 s65, s48, 896")
    a("s_cselect_b32 s65, 0, s65")
    a("s_mul_i32 s66, s49, 224")
    a("s_add_u32 s65, s65, s66")
    a("v_lshrrev_b32 v2, 4, v1")
    a("v_mul_lo_u32 v3, v2, s64")
    a("v_lshlrev_b32 v4, 2, v2")
    a("v_and_b32 v5, 15, v1")
    a("v_xor_b32 v4, v4, v5")
    a(f"v_lshl_add_u32 v{VW}, v4, 4, v3")
    a(f"v_add_u32 v{VW}, s65, v{VW}")
    a("s_lshl_b32 s65, s64, 2")
    a(f"s_mul_i32 s66, s64, {4*PER}")
    a("s_mul_i32 s66, s66, s51")
    a("s_lshl_b32 s67, s64, 6")
    a(f"s_mul_i32 s68, s51, {PER*1024}")
    a("s_lshr_b32 s69, s45, 3")
    a("s_add_u32 s69, s69, s45")
    a("s_and_b32 s69, s69, 3")
    a("s_lshl_b32 s69, s69, 1")
    a("s_waitcnt lgkmcnt(0)")
    ST.n = 2; ST.stamp()
    srd(a, SWS, 20, 21, WS_SIZE)
    a("s_cmp_eq_u32 s48, 3")
    a("s_cselect_b32 s54, s10, s4")
    a("s_cselect_b32 s55, s11, s5")
    srd(a, SX, 54, 55, 2048*896)
    a("s_cmp_eq_u32 s48, 3")
    a("s_cselect_b32 s54, s52, s6")
    a("s_cselect_b32 s55, s53, s7")
    a(f"s_mov_b32 s{SW}, s54")
    a(f"s_and_b32 s{SW+1}, s55, 0xffff")
    a("s_cmp_eq_u32 s48, 3")
    a(f"s_mov_b32 s70, {448*2688}")
    a(f"s_cselect_b32 s{SW+2}, {448*896}, s70")
    a(f"s_mov_b32 s{SW+3}, 0x20000")
    def dma(c):
        slot = c % NS1
        a("s_lshl_b32 s70, s69, 7")
        a("s_mul_i32 s71, s69, s67")
        a("s_add_u32 s71, s71, s66")
        for ii in range(PER):
            a(f"s_add_u32 m0, s68, {slot*32768 + ii*1024}")
            a(f"s_add_u32 s54, s{TK+ii}, s70")
            a(f"buffer_load_dwordx4 v{VX0 if ii % 2 == 0 else VX1}, s[{SX}:{SX+3}], s54 offen lds")
            a(f"s_add_u32 m0, s68, {slot*32768 + 16384 + ii*1024}")
            if ii: a("s_add_u32 s71, s71, s65")
            else: a("s_nop 0")
            a(f"buffer_load_dwordx4 v{VW}, s[{SW}:{SW+3}], s71 offen lds")
        a("s_add_u32 s69, s69, 1")
        a("s_cmp_eq_u32 s69, 7")
        a("s_cselect_b32 s69, 0, s69")
    dma(0); dma(1)
    NSD = 16
    for c in range(7):
        n = {5: 2*PER + NSD, 6: NSD}.get(c, 2*PER)
        a(f"s_waitcnt vmcnt({n})")
        a("s_barrier")
        if c + 2 <= 6: dma(c + 2)
        if c == 4: p1_side_loads(a)
    a("s_cmp_eq_u32 s48, 3")
    a(f"s_cbranch_scc0 {N}_noxe")
    a("s_barrier")
    a("s_barrier")
    a(f"{N}_noxe:")

SJ = 16
def p1_side_loads(a):
    SWR, SWI = 36, 40
    srd(a, SWR, 12, 13, 2048*450)
    srd(a, SWI, 14, 15, 2048*450)
    a("v_lshlrev_b32 v13, 1, v1")
    a("s_lshl_b32 s63, s51, 7")
    for q in range(2):
        a("s_lshl_b32 s56, s2, 1")
        if q: a("s_add_u32 s56, s56, 1")
        a("s_and_b32 s57, s56, 15")
        a("s_lshr_b32 s58, s56, 7")
        a("s_lshl_b32 s58, s58, 4")
        a("s_add_u32 s57, s57, s58")
        a("s_bfe_u32 s58, s56, 0x10006")
        a("s_lshl_b32 s58, s58, 4")
        a("s_bfe_u32 s59, s56, 0x20004")
        a("s_lshl_b32 s59, s59, 2")
        a("s_add_u32 s58, s58, s59")
        a("s_lshl_b32 s58, s58, 6")
        a("s_add_u32 s57, s57, s58")
        a("s_mulk_i32 s57, 450")
        a("s_add_u32 s57, s57, s63")
        for i in range(4):
            a(f"s_add_u32 s58, s57, {i*28800}")
            a(f"buffer_load_ushort v{SJ+8*q+i}, v13, s[{SWR}:{SWR+3}], s58 offen")
            a(f"buffer_load_ushort v{SJ+8*q+4+i}, v13, s[{SWI}:{SWI+3}], s58 offen")

def p1_side_finish(a, N):
    a("s_waitcnt vmcnt(0)")
    for q in range(2):
        for i in range(4):
            a(f"v_lshl_or_b32 v{SJ+8*q+i}, v{SJ+8*q+4+i}, 16, v{SJ+8*q+i}")
    a("v_lshlrev_b32 v14, 13, v1")
    a("s_lshl_b32 s62, s51, 6")
    a("v_add_u32 v15, s62, v1")
    a("s_lshl_b32 s58, s62, 13")
    a("s_lshl_b32 s59, s2, 5")
    a("s_add_u32 s58, s58, s59")
    a(f"s_add_u32 s58, s58, {WT}")
    a("v_cmp_gt_u32 vcc, 225, v15")
    a("s_and_saveexec_b64 s[60:61], vcc")
    a(f"buffer_store_dwordx4 {vr(SJ,4)}, v14, {ws}, s58 offen{SC}")
    a(f"buffer_store_dwordx4 {vr(SJ+8,4)}, v14, {ws}, s58 offen offset:16{SC}")
    a("s_mov_b64 exec, s[60:61]")
    get_tag(a)
    a("s_waitcnt vmcnt(0)")
    a("s_lshl_b32 s50, s51, 10")
    a("s_lshl_b32 s52, s2, 2")
    a("s_add_u32 s50, s50, s52")
    a(f"s_add_u32 s50, s50, {FW}")
    signal(a, 50)

RING = 131072
XB = RING
FLAG = RING + 9216
def p2_attn(a, N, ST):
    QR = 4
    SA, SB = 16, 32
    PR = 48
    OR_ = 56
    KF = [72, 80]; VF = [88, 96]
    VL, VC, VN = 12, 13, 14
    MR = 15
    T0, T1, T2, T3 = 104, 105, 106, 107
    a("s_and_b32 s41, s2, 7")
    a("s_lshl_b32 s41, s41, 1")
    a("s_bfe_u32 s42, s2, 0x10003")
    a("s_add_u32 s41, s41, s42")
    a("s_lshr_b32 s42, s2, 4")
    a("s_and_b32 s43, s22, 3")
    a("s_lshr_b32 s44, s22, 2")
    a(f"v_lshlrev_b32 v{VL}, 4, v1")
    a("s_lshl_b32 s45, s41, 6")
    a("s_lshl_b32 s46, s42, 2")
    a("s_add_u32 s46, s46, s43")
    a("s_add_u32 s47, s45, s46")
    a("s_lshl_b32 s47, s47, 11")
    a(f"s_add_u32 s47, s47, {QF}")
    a("s_lshl_b32 s48, s44, 5")
    a("s_add_u32 s48, s48, s45")
    a("s_add_u32 s48, s48, s43")
    a("s_lshl_b32 s48, s48, 12")
    a(f"s_add_u32 s48, s48, {KV}")
    a("s_lshl_b32 s49, s44, 14")
    a("s_lshl_b32 s50, s43, 12")
    a("s_add_u32 s49, s49, s50")
    a("s_lshl_b32 s50, s44, 14")
    a(f"v_add_u32 v{VC}, s50, v{VL}")
    a("s_mov_b32 s51, 0")
    a("s_and_b32 s59, s42, 7")
    def dma1(goff_s, slot_s, i):
        a(f"s_add_u32 m0, s{slot_s}, {i*1024}")
        a(f"s_add_u32 s54, s{goff_s}, {i*1024}")
        a(f"buffer_load_dwordx4 v{VL}, {ws}, s54 offen{SC} lds")
    def step_goff(dst, s_imm):
        a(f"s_add_u32 s{dst}, s59, {s_imm}")
        a(f"s_and_b32 s{dst}, s{dst}, 7")
        a(f"s_lshl_b32 s{dst}, s{dst}, 14")
        a(f"s_add_u32 s{dst}, s{dst}, s48")
    a(f"buffer_load_dwordx4 {vr(QR,4)}, v{VL}, {ws}, s47 offen{SC}")
    a(f"buffer_load_dwordx4 {vr(QR+4,4)}, v{VL}, {ws}, s47 offen offset:1024{SC}")
    a("s_cmp_lg_u32 s22, 0")
    a(f"s_cbranch_scc1 {N}_noflag")
    a(f"v_mov_b32 v{T0}, {FLAG}")
    a(f"v_mov_b32 v{T1}, 0")
    a(f"ds_write_b32 v{T0}, v{T1}")
    a(f"{N}_noflag:")
    a(f"{N}_restart:")
    step_goff(52, 0)
    a("s_mov_b32 s53, s49")
    for i in range(4): dma1(52, 53, i)
    a(f"v_xor_b32 v{VN}, 0x10000, v{VC}")
    for r in range(OR_, OR_+16):
        a(f"v_mov_b32 v{r}, 0")
    for r in list(range(PR+4, PR+8)) + list(range(VF[1]+4, VF[1]+8)):
        a(f"v_mov_b32 v{r}, 0")
    a("s_waitcnt vmcnt(0) lgkmcnt(0)")
    a("s_barrier")
    def rd(dst, base, off):
        a(f"ds_read_b128 {vr(dst,4)}, v{base} offset:{off}")
    def smf1(S, kb): return f"{MF32} {vr(S,16)}, {vr(KF[kb],4)}, {vr(QR,4)}, 0"
    def smf2(S, kb): return f"{MF32} {vr(S,16)}, {vr(KF[kb]+4,4)}, {vr(QR+4,4)}, {vr(S,16)}"
    rd(KF[0], VC, 0); rd(KF[0]+4, VC, 1024)
    rd(VF[0], VC, 2048); rd(VF[0]+4, VC, 3072)
    rd(KF[1], VC, 4096); rd(KF[1]+4, VC, 4096+1024)
    a("s_cmp_lg_u32 s51, 0")
    a(f"s_cbranch_scc1 {N}_havem")
    a("s_waitcnt lgkmcnt(4)")
    a(smf1(SA, 0)); a(smf2(SA, 0))
    a("s_nop 15")
    s = SA
    a(f"v_max3_f32 v{T0}, v{s}, v{s+1}, v{s+2}")
    a(f"v_max3_f32 v{T1}, v{s+3}, v{s+4}, v{s+5}")
    a(f"v_max3_f32 v{T2}, v{s+6}, v{s+7}, v{s+8}")
    a(f"v_max3_f32 v{T3}, v{s+9}, v{s+10}, v{s+11}")
    a(f"v_max3_f32 v{T0}, v{T0}, v{s+12}, v{s+13}")
    a(f"v_max3_f32 v{T1}, v{T1}, v{s+14}, v{s+15}")
    a(f"v_max3_f32 v{T0}, v{T0}, v{T1}, v{T2}")
    a(f"v_max_f32 v{T0}, v{T0}, v{T3}")
    set_m(a, QR, MR, T0, T1)
    a(f"{N}_havem:")
    a("s_waitcnt lgkmcnt(0)")
    a("s_nop 1")
    a(smf1(SA, 0)); a(smf2(SA, 0))
    a("s_nop 11")
    ST.n = 6; ST.stamp()
    def off(b): return (b // 4) * 32768 + (b % 4) * 4096
    Ex = lambda S, i: a(f"v_exp_f32 v{S+i}, v{S+i}")
    C = lambda S, i: a(f"v_cvt_pk_bf16_f32 v{PR+i}, v{S+2*i}, v{S+2*i+1}")
    def body(first):
        for b in range(8):
            S, Sn = (SA, SB) if b % 2 == 0 else (SB, SA)
            kb = (b + 1) % 2
            vb = b % 2
            pvb = (b + 1) % 2
            refill = False
            if first and b in (0, 1):
                step_goff(52, b + 1)
                a(f"s_add_u32 s53, s49, {(b+1)*32768}")
                refill = True
            if b in (2, 6):
                a("s_lshl_b32 s53, s55, 1")
                a(f"s_add_u32 s53, s53, {3 if b == 2 else 4}")
                a("s_add_u32 s52, s53, s59")
                a("s_and_b32 s52, s52, 7")
                a("s_lshl_b32 s52, s52, 14")
                a("s_add_u32 s52, s52, s48")
                a("s_cmp_gt_u32 s53, 7")
                a(f"s_cselect_b32 s52, {OOB}, s52")
                a("s_and_b32 s53, s53, 3")
                a("s_lshl_b32 s53, s53, 15")
                a("s_add_u32 s53, s53, s49")
                a("s_waitcnt vmcnt(4)")
                a("s_barrier")
                refill = True
            def dm(i):
                if refill: dma1(52, 53, i)
            kbase, koff = (VC, off(b + 2)) if b + 2 < 8 else (VN, off(b + 2 - 8))
            vbase, voff = (VC, off(b + 1)) if b + 1 < 8 else (VN, off(b + 1 - 8))
            Ex(S, 0); Ex(S, 1)
            a(f"{MF32} {vr(OR_,16)}, {vr(VF[pvb]+4,4)}, {vr(PR+4,4)}, {vr(OR_,16)}")
            rd(VF[pvb], vbase, voff + 2048)
            dm(0)
            Ex(S, 2); Ex(S, 3); Ex(S, 4); C(S, 0); C(S, 1)
            a("s_waitcnt lgkmcnt(1)")
            a(smf1(Sn, kb))
            rd(VF[pvb]+4, vbase, voff + 3072)
            dm(1)
            Ex(S, 5); Ex(S, 6); Ex(S, 7); Ex(S, 8); C(S, 2)
            a(smf2(Sn, kb))
            rd(KF[b % 2], kbase, koff)
            dm(2)
            C(S, 3); Ex(S, 9); Ex(S, 10); Ex(S, 11)
            a(f"{MF32} {vr(OR_,16)}, {vr(VF[vb],4)}, {vr(PR,4)}, {vr(OR_,16)}")
            rd(KF[b % 2]+4, kbase, koff + 1024)
            dm(3)
            Ex(S, 12); Ex(S, 13); C(S, 4); Ex(S, 14); Ex(S, 15); C(S, 5); C(S, 6); C(S, 7)
        a(f"v_xor_b32 v{VC}, 0x10000, v{VC}")
        a(f"v_xor_b32 v{VN}, 0x10000, v{VN}")
    a("s_mov_b32 s55, 0")
    body(True)
    a("s_mov_b32 s55, 1")
    a(f"{N}_loop:")
    body(False)
    a("s_add_u32 s55, s55, 1")
    a("s_cmp_lt_u32 s55, 4")
    a(f"s_cbranch_scc1 {N}_loop")
    a(f"{MF32} {vr(OR_,16)}, {vr(VF[1]+4,4)}, {vr(PR+4,4)}, {vr(OR_,16)}")
    a("s_nop 15")
    a("s_waitcnt lgkmcnt(0)")
    LL = T0
    a(f"v_mov_b32 v{T1}, v{OR_+12}")
    a(f"v_mov_b32 v{LL}, v{OR_+12}")
    a("s_nop 1")
    a(f"v_permlane32_swap_b32 v{T1}, v{LL}")
    a("s_cmp_lg_u32 s51, 0")
    a(f"s_cbranch_scc1 {N}_nochk")
    a(f"s_mov_b32 s56, {f32bits(2.0**64):#x}")
    a(f"v_cmp_ngt_f32 vcc, s56, v{LL}")
    a("s_nop 4")
    a(f"s_cbranch_vccz {N}_nochk")
    a(f"v_mov_b32 v{T1}, {FLAG}")
    a(f"v_mov_b32 v{T2}, 1")
    a(f"ds_write_b32 v{T1}, v{T2}")
    a(f"{N}_nochk:")
    a("s_mul_i32 s56, s43, 5120")
    a("s_mul_i32 s57, s44, 2560")
    a("s_add_u32 s57, s57, s56")
    a("s_xor_b32 s58, s44, 1")
    a("s_mul_i32 s58, s58, 2560")
    a("s_add_u32 s58, s58, s56")
    a(f"v_add_u32 v{T1}, s57, v{VL}")
    a(f"v_lshlrev_b32 v{T2}, 3, v1")
    a(f"v_add_u32 v{T2}, s57, v{T2}")
    a(f"v_mov_b32 v{T3+1}, v{MR}")
    a(f"v_mov_b32 v{T3+2}, v{LL}")
    a("s_cmp_eq_u32 s44, 0")
    a(f"s_cbranch_scc1 {N}_send1")
    a(f"ds_write_b128 v{T1}, {vr(OR_,4)}")
    a(f"ds_write_b128 v{T1}, {vr(OR_+4,4)} offset:1024")
    for i in range(8): a(f"v_mov_b32 v{SA+i}, v{OR_+8+i}")
    a(f"s_branch {N}_sent")
    a(f"{N}_send1:")
    a(f"ds_write_b128 v{T1}, {vr(OR_+8,4)}")
    a(f"ds_write_b128 v{T1}, {vr(OR_+12,4)} offset:1024")
    for i in range(8): a(f"v_mov_b32 v{SA+i}, v{OR_+i}")
    a(f"{N}_sent:")
    a(f"ds_write_b64 v{T2}, {vr(T3+1,2)} offset:2048")
    a("s_waitcnt vmcnt(0) lgkmcnt(0)")
    a("s_barrier")
    a(f"v_add_u32 v{T1}, s58, v{VL}")
    a(f"v_lshlrev_b32 v{T2}, 3, v1")
    a(f"v_add_u32 v{T2}, s58, v{T2}")
    a(f"v_mov_b32 v{T3}, {FLAG}")
    a(f"ds_read_b32 v{T3}, v{T3}")
    a(f"ds_read_b128 {vr(SB,4)}, v{T1}")
    a(f"ds_read_b128 {vr(SB+4,4)}, v{T1} offset:1024")
    a(f"ds_read_b64 {vr(SB+8,2)}, v{T2} offset:2048")
    a("s_waitcnt lgkmcnt(0)")
    a("s_cmp_lg_u32 s51, 0")
    a(f"s_cbranch_scc1 {N}_merge")
    a(f"v_readfirstlane_b32 s56, v{T3}")
    a("s_nop 3")
    a("s_cmp_lg_u32 s56, 0")
    a(f"s_cbranch_scc1 {N}_slow")
    a(f"{N}_merge:")
    MP, LP = SB+8, SB+9
    a(f"v_max_f32 v{T1}, v{MR}, v{MP}")
    a(f"v_sub_f32 v{T2}, v{MR}, v{T1}")
    a(f"v_sub_f32 v{T3}, v{MP}, v{T1}")
    a(f"v_exp_f32 v{T2}, v{T2}")
    a(f"v_exp_f32 v{T3}, v{T3}")
    a("s_nop 0")
    a(f"v_mul_f32 v{T1}, v{T2}, v{LL}")
    a(f"v_fmac_f32 v{T1}, v{T3}, v{LP}")
    a(f"v_rcp_f32 v{T1}, v{T1}")
    a("s_nop 0")
    a(f"v_mul_f32 v{T2}, v{T2}, v{T1}")
    a(f"v_mul_f32 v{T3}, v{T3}, v{T1}")
    for i in range(8):
        a(f"v_mul_f32 v{SA+i}, v{T2}, v{SA+i}")
    for i in range(8):
        a(f"v_fmac_f32 v{SA+i}, v{T3}, v{SB+i}")
    a("s_cmp_eq_u32 s44, 0")
    a(f"s_cbranch_scc1 {N}_nopad")
    a("s_mov_b32 exec_lo, 0")
    for i in range(4, 8): a(f"v_mov_b32 v{SA+i}, 0")
    a("s_mov_b32 exec_lo, -1")
    a(f"{N}_nopad:")
    for i in range(4): a(f"v_cvt_pk_bf16_f32 v{PR+i}, v{SA+2*i}, v{SA+2*i+1}")
    a("s_lshl_b32 s56, s46, 4")
    a("s_add_u32 s56, s56, s41")
    a("s_lshl_b32 s56, s56, 1")
    a("s_add_u32 s56, s56, s44")
    a("s_lshl_b32 s56, s56, 10")
    a(f"s_add_u32 s56, s56, {OF}")
    a(f"buffer_store_dwordx4 {vr(PR,4)}, v{VL}, {ws}, s56 offen{SC}")
    a(f"s_branch {N}_p2done")
    a(f"{N}_slow:")
    a("s_mov_b32 s51, 1")
    a("s_mov_b32 exec_lo, 0")
    a(f"v_mov_b32 v{QR+6}, 0")
    a("s_mov_b32 exec_lo, -1")
    a(f"v_mov_b32 v{T0}, 0xff7fffff")
    a("s_lshl_b32 s56, s44, 5")
    a("s_add_u32 s56, s56, s45")
    a("s_lshl_b32 s56, s56, 12")
    a(f"s_add_u32 s56, s56, {KV}")
    a("s_mov_b32 s57, 0")
    a(f"{N}_sloop:")
    a(f"buffer_load_dwordx4 {vr(KF[0],4)}, v{VL}, {ws}, s56 offen{SC}")
    a(f"buffer_load_dwordx4 {vr(KF[0]+4,4)}, v{VL}, {ws}, s56 offen offset:1024{SC}")
    a("s_waitcnt vmcnt(0)")
    a(smf1(SA, 0)); a(smf2(SA, 0))
    a("s_nop 15")
    for i in range(0, 16, 2):
        a(f"v_max3_f32 v{T0}, v{T0}, v{SA+i}, v{SA+i+1}")
    a("s_add_u32 s56, s56, 4096")
    a("s_add_u32 s57, s57, 1")
    a("s_cmp_lt_u32 s57, 32")
    a(f"s_cbranch_scc1 {N}_sloop")
    set_m(a, QR, MR, T0, T1)
    a(f"v_and_b32 v{VC}, 0xffff, v{VC}")
    a("s_barrier")
    a(f"s_branch {N}_restart")
    a(f"{N}_p2done:")

def set_m(a, QR, MR, T0, T1):
    a(f"v_mov_b32 v{T1}, v{T0}")
    a("s_nop 1")
    a(f"v_permlane32_swap_b32 v{T0}, v{T1}")
    a("s_nop 0")
    a(f"v_max_f32 v{T0}, v{T0}, v{T1}")
    a(f"v_cvt_pk_bf16_f32 v{T1}, -v{T0}, 0")
    a(f"v_lshlrev_b32 v{MR}, 16, v{T1}")
    a(f"v_xor_b32 v{MR}, 0x80000000, v{MR}")
    a("s_mov_b32 exec_lo, 0")
    a(f"v_mov_b32 v{QR+6}, v{T1}")
    a("s_mov_b32 exec_lo, -1")

A_, B_ = 4, 20
C1, C3, TW, WW = 36, 60, 84, 100
TW2R = 108
TR, TI = 124, 132
PK = 140
T = 148
SFT = 28
ft = "s[28:31]"
def fft_ld(a, dst, n, sreg, srd_, flag=""):
    for i in range(n):
        if i and i % 4 == 0:
            a(f"s_add_u32 s{sreg}, s{sreg}, 4096")
        a(f"buffer_load_dwordx4 {vr(dst+4*i,4)}, v2, {srd_}, s{sreg} offen offset:{(i%4)*1024}{flag}")
def fft_consts(a, N):
    offs, blob = tables.build()
    a("s_cmp_ge_u32 s2, 225")
    a(f"s_cbranch_scc1 {N}_noconst")
    a("s_getpc_b64 s[28:29]")
    a("s_add_u32 s28, s28, FTAB@rel32@lo+4")
    a("s_addc_u32 s29, s29, FTAB@rel32@hi+12")
    a("s_and_b32 s29, s29, 0xffff")
    a(f"s_mov_b32 s30, {blob.size*2}")
    a(f"s_mov_b32 s31, 0x20000")
    a("s_sub_u32 s41, s22, 8")
    a("v_lshlrev_b32 v2, 4, v1")
    a("s_mul_i32 s45, s41, 6144")
    a(f"s_add_u32 s46, s45, {offs['C1']}")
    fft_ld(a, C1, 6, 46, ft)
    a("s_lshl_b32 s47, s41, 12")
    a(f"s_add_u32 s46, s47, {offs['TW1']}")
    fft_ld(a, TW, 4, 46, ft)
    a(f"s_mov_b32 s46, {offs['C3']}")
    fft_ld(a, C3, 6, 46, ft)
    a(f"s_add_u32 s46, s47, {offs['TW2']}")
    fft_ld(a, TW2R, 4, 46, ft)
    a(f"{N}_noconst:")

def p2_fft(a, N, ST):
    a("s_cmp_ge_u32 s2, 225")
    a(f"s_cbranch_scc1 {N}_nofft")
    a("s_setprio 2")
    a("s_sub_u32 s41, s22, 8")
    a("v_lshlrev_b32 v2, 4, v1")
    a("v_lshrrev_b32 v3, 4, v1")
    a("v_lshlrev_b32 v3, 9, v3")
    a(f"v_and_b32 v{T}, 15, v1")
    a(f"v_lshl_add_u32 v3, v{T}, 4, v3")
    a("s_lshl_b32 s42, s2, 12")
    a(f"s_add_u32 s42, s42, {X1}")
    a("s_sub_u32 s43, 448, s2")
    a("s_cmp_eq_u32 s2, 0")
    a("s_cselect_b32 s43, 0, s43")
    a("s_lshl_b32 s44, s43, 12")
    a(f"s_add_u32 s44, s44, {X1}")
    for t in range(2):
        for ks in range(2):
            a(f"buffer_load_dwordx4 {vr(A_+4*(2*t+ks),4)}, v3, {ws}, s42 offen offset:{ks*2048+t*256}{SC}")
            a(f"buffer_load_dwordx4 {vr(B_+4*(2*t+ks),4)}, v3, {ws}, s44 offen offset:{ks*2048+t*256}{SC}")
    a("s_lshl_b32 s46, s2, 13")
    a("s_lshl_b32 s48, s41, 11")
    a("s_add_u32 s46, s46, s48")
    a(f"s_add_u32 s46, s46, {WT}")
    fft_ld(a, WW, 2, 46, ws, SC)
    a("s_barrier")
    a("s_waitcnt vmcnt(2)")
    P = lambda ks: vr(C1+4*ks, 4); Q = lambda ks: vr(C1+8+4*ks, 4); NQ = lambda ks: vr(C1+16+4*ks, 4)
    da = lambda t, ks: vr(A_+4*(2*t+ks), 4); db = lambda t, ks: vr(B_+4*(2*t+ks), 4)
    tr = lambda t: vr(TR+4*t, 4); ti = lambda t: vr(TI+4*t, 4)
    for step in range(4):
        ks = step % 2
        for t in range(2):
            cr = "0" if step == 0 else tr(t); ci = "0" if step == 0 else ti(t)
            if step < 2:
                a(f"{MF16} {tr(t)}, {da(t,ks)}, {P(ks)}, {cr}")
                a(f"{MF16} {ti(t)}, {da(t,ks)}, {NQ(ks)}, {ci}")
            else:
                a(f"{MF16} {tr(t)}, {db(t,ks)}, {Q(ks)}, {cr}")
                a(f"{MF16} {ti(t)}, {db(t,ks)}, {P(ks)}, {ci}")
    a("s_nop 7")
    def cmul(xr, xi, c, s, outr, outi):
        for p in range(0, 4, 2):
            a(f"v_pk_mul_f32 {vr(T+p,2)}, {vr(xi+p,2)}, {vr(s+p,2)}")
            a(f"v_pk_mul_f32 {vr(T+4+p,2)}, {vr(xi+p,2)}, {vr(c+p,2)}")
        for p in range(0, 4, 2):
            a(f"v_pk_fma_f32 {vr(outr+p,2)}, {vr(xr+p,2)}, {vr(c+p,2)}, {vr(T+p,2)} neg_lo:[0,0,1] neg_hi:[0,0,1]")
            a(f"v_pk_fma_f32 {vr(outi+p,2)}, {vr(xr+p,2)}, {vr(s+p,2)}, {vr(T+4+p,2)}")
    O1 = T + 8
    def packRI(t):
        a(f"v_cvt_pk_bf16_f32 v{PK+2*t}, v{O1}, v{O1+1}")
        a(f"v_cvt_pk_bf16_f32 v{PK+2*t+1}, v{O1+2}, v{O1+3}")
        a(f"v_cvt_pk_bf16_f32 v{PK+4+2*t}, v{O1+4}, v{O1+5}")
        a(f"v_cvt_pk_bf16_f32 v{PK+4+2*t+1}, v{O1+6}, v{O1+7}")
    for t in range(2):
        cmul(TR+4*t, TI+4*t, TW+8*t, TW+8*t+4, O1, O1+4)
        packRI(t)
    a("s_nop 1")
    Fr = lambda u: vr(C3+4*u, 4); Fi = lambda u: vr(C3+8+4*u, 4); NFi = lambda u: vr(C3+16+4*u, 4)
    BR, BI = vr(PK, 4), vr(PK+4, 4)
    for u in range(2):
        a(f"{MF16} {tr(u)}, {Fr(u)}, {BR}, 0")
        a(f"{MF16} {ti(u)}, {Fi(u)}, {BR}, 0")
    for u in range(2):
        a(f"{MF16} {tr(u)}, {NFi(u)}, {BI}, {tr(u)}")
        a(f"{MF16} {ti(u)}, {Fr(u)}, {BI}, {ti(u)}")
    a("s_barrier")
    a("s_waitcnt vmcnt(0)")
    for u in range(2):
        for i in range(4):
            a(f"v_lshlrev_b32 v{A_+8*u+i}, 16, v{WW+4*u+i}")
            a(f"v_and_b32 v{A_+8*u+4+i}, 0xffff0000, v{WW+4*u+i}")
    for u in range(2):
        cmul(TR+4*u, TI+4*u, A_+8*u, A_+8*u+4, O1, O1+4)
        packRI(u)
    a("s_nop 1")
    AR, AI = vr(PK, 4), vr(PK+4, 4)
    for t in range(2):
        a(f"{MF16} {tr(t)}, {AR}, {Fr(t)}, 0")
        a(f"{MF16} {ti(t)}, {AR}, {NFi(t)}, 0")
    for t in range(2):
        a(f"{MF16} {tr(t)}, {AI}, {Fi(t)}, {tr(t)}")
        a(f"{MF16} {ti(t)}, {AI}, {Fr(t)}, {ti(t)}")
    a(f"v_and_b32 v{B_}, 15, v1")
    a(f"v_mul_u32_u24 v{B_}, 144, v{B_}")
    a(f"v_lshrrev_b32 v{B_+1}, 4, v1")
    a(f"v_lshl_add_u32 v{B_+2}, v{B_+1}, 3, v{B_}")
    a("s_lshl_b32 s46, s41, 5")
    a(f"s_add_u32 s46, s46, {XB}")
    a(f"v_add_u32 v{B_+2}, s46, v{B_+2}")
    a(f"v_lshl_add_u32 v{B_+3}, v{B_+1}, 4, v{B_}")
    a(f"v_add_u32 v{B_+3}, {XB}, v{B_+3}")
    a("s_nop 1")
    for t in range(2):
        cmul(TR+4*t, TI+4*t, TW2R+8*t, TW2R+8*t+4, O1, O1+4)
        packRI(t)
        a(f"ds_write_b64 v{B_+2}, {vr(PK+2*t,2)} offset:{t*16*144}")
        a(f"ds_write_b64 v{B_+2}, {vr(PK+4+2*t,2)} offset:{4608+t*16*144}")
    a("s_waitcnt lgkmcnt(0)")
    a("s_barrier")
    DR = 60
    for part in range(2):
        for t in range(2):
            for ks in range(2):
                a(f"ds_read_b128 {vr(DR+4*(part*4+t*2+ks),4)}, v{B_+3} offset:{part*4608+t*16*144+ks*64}")
    A1, A2, NA2 = P, Q, NQ
    br = lambda t, ks: vr(DR+4*(t*2+ks), 4); bi = lambda t, ks: vr(DR+4*(4+t*2+ks), 4)
    a("s_waitcnt lgkmcnt(0)")
    for step in range(4):
        ks = step % 2
        for t in range(2):
            cm = "0" if step == 0 else tr(t); cp = "0" if step == 0 else ti(t)
            if step < 2:
                a(f"{MF16} {tr(t)}, {A1(ks)}, {br(t,ks)}, {cm}")
                a(f"{MF16} {ti(t)}, {A2(ks)}, {br(t,ks)}, {cp}")
            else:
                a(f"{MF16} {tr(t)}, {NA2(ks)}, {bi(t,ks)}, {cm}")
                a(f"{MF16} {ti(t)}, {A1(ks)}, {bi(t,ks)}, {cp}")
    a("s_nop 7")
    a("s_cmp_eq_u32 s2, 0")
    a(f"s_cbranch_scc1 {N}_avg")
    a("s_cmp_eq_u32 s2, 224")
    a(f"s_cbranch_scc0 {N}_noavg")
    a(f"{N}_avg:")
    for i in range(8):
        a(f"v_add_f32 v{TR+i}, v{TR+i}, v{TI+i}")
        a(f"v_mul_f32 v{TR+i}, 0.5, v{TR+i}")
        a(f"v_mov_b32 v{TI+i}, v{TR+i}")
    a(f"{N}_noavg:")
    for t in range(2):
        a(f"v_cvt_pk_bf16_f32 v{PK+2*t}, v{TR+4*t}, v{TR+4*t+1}")
        a(f"v_cvt_pk_bf16_f32 v{PK+2*t+1}, v{TR+4*t+2}, v{TR+4*t+3}")
        a(f"v_cvt_pk_bf16_f32 v{PK+4+2*t}, v{TI+4*t}, v{TI+4*t+1}")
        a(f"v_cvt_pk_bf16_f32 v{PK+4+2*t+1}, v{TI+4*t+2}, v{TI+4*t+3}")
    a("v_lshlrev_b32 v2, 3, v1")
    a("s_lshl_b32 s46, s41, 10")
    a("s_lshl_b32 s47, s2, 12")
    a("s_add_u32 s47, s47, s46")
    a(f"s_add_u32 s47, s47, {UT}")
    a("s_lshl_b32 s48, s43, 12")
    a("s_add_u32 s48, s48, s46")
    a(f"s_add_u32 s48, s48, {UT}")
    for t in range(2):
        a(f"buffer_store_dwordx2 {vr(PK+2*t,2)}, v2, {ws}, s47 offen offset:{t*512}{SC}")
        a(f"buffer_store_dwordx2 {vr(PK+4+2*t,2)}, v2, {ws}, s48 offen offset:{t*512}{SC}")
    a("s_setprio 0")
    a("s_barrier")
    a("s_waitcnt vmcnt(0)")
    a("s_barrier")
    a("s_cmp_lg_u32 s22, 8")
    a(f"s_cbranch_scc1 {N}_fftd")
    a("s_lshl_b32 s50, s2, 2")
    a(f"s_add_u32 s50, s50, {FU}")
    signal(a, 50)
    a(f"{N}_fftd:")
    for i in range(4): a("s_barrier")
    a(f"s_branch {N}_fftmb")
    a(f"{N}_nofft:")
    for i in range(9): a("s_barrier")
    a(f"{N}_fftmb:")
    a("s_barrier")
    a(f"v_mov_b32 v2, {FLAG}")
    a("ds_read_b32 v2, v2")
    a("s_waitcnt lgkmcnt(0)")
    a("v_readfirstlane_b32 s56, v2")
    a("s_nop 3")
    a("s_cmp_eq_u32 s56, 0")
    a(f"s_cbranch_scc1 {N}_fftok")
    for i in range(11): a("s_barrier")
    a(f"{N}_fftok:")

WREG = 0
TREG = 131072
def p3_decode(a):
    a("s_and_b32 s60, s2, 7")
    a("s_lshr_b32 s45, s2, 3")
    a("s_and_b32 s48, s60, 1")
    a("s_lshr_b32 s46, s60, 1")
    a("s_lshl_b32 s46, s46, 3")
    a("s_and_b32 s47, s45, 7")
    a("s_add_u32 s46, s46, s47")
    a("s_lshr_b32 s49, s45, 3")

def p3_loader(a, N, ST):
    SW = 28
    VT, VW = 10, 12
    a("s_sub_u32 s51, s22, 8")
    a("s_getpc_b64 s[52:53]")
    a("s_add_u32 s52, s52, HTAB@rel32@lo+4")
    a("s_addc_u32 s53, s53, HTAB@rel32@hi+12")
    a("s_cmp_eq_u32 s48, 1")
    a("s_cselect_b32 s54, s52, s8")
    a("s_cselect_b32 s55, s53, s9")
    srd(a, SW, 54, 55, 448*896)
    a("v_lshrrev_b32 v2, 4, v1")
    a("v_mul_u32_u24 v3, 896, v2")
    a("v_lshlrev_b32 v4, 2, v2")
    a("v_and_b32 v5, 15, v1")
    a("v_xor_b32 v4, v4, v5")
    a(f"v_lshl_add_u32 v{VW}, v4, 4, v3")
    a("s_mul_i32 s57, s49, 224")
    a(f"v_add_u32 v{VW}, s57, v{VW}")
    a("s_cmp_eq_u32 s48, 1")
    a(f"s_cbranch_scc1 {N}_wrB")
    a("s_lshr_b32 s61, s51, 1")
    a("s_mul_i32 s61, s61, 28")
    a("s_and_b32 s62, s51, 1")
    a("s_lshl_b32 s63, s62, 4")
    a("s_add_u32 s61, s61, s63")
    a("s_add_u32 s56, s61, 0")
    a("s_add_u32 s57, s61, 4")
    a("s_add_u32 s58, s61, 8")
    a("s_add_u32 s59, s61, 12")
    a("s_cmp_eq_u32 s62, 1")
    a("s_cselect_b32 s59, s58, s59")
    a("s_mov_b32 s60, 56")
    a("s_mov_b32 s64, 8")
    a(f"s_branch {N}_wrd")
    a(f"{N}_wrB:")
    a("s_lshl_b32 s61, s51, 4")
    for ii in range(4): a(f"s_add_u32 s{56+ii}, s61, {4*ii}")
    a("s_mov_b32 s60, 64")
    a("s_mov_b32 s64, 7")
    a(f"{N}_wrd:")
    for ii in range(4): a(f"s_mulk_i32 s{56+ii}, 896")
    a("s_mulk_i32 s60, 896")
    a("s_lshl_b32 s61, s51, 12")
    for c in range(8):
        for ii in range(4):
            a(f"s_add_u32 m0, s61, {WREG + c*16384 + ii*1024}")
            a(f"s_mul_i32 s62, s60, {c}")
            a(f"s_add_u32 s62, s62, s{56+ii}")
            a(f"buffer_load_dwordx4 v{VW}, s[{SW}:{SW+3}], s62 offen lds")
    a("s_cmp_eq_u32 s48, 1")
    a(f"s_cbranch_scc1 {N}_tB")
    a("s_lshl_b32 s56, s46, 1")
    a("s_lshr_b32 s57, s51, 1")
    a("s_add_u32 s56, s56, s57")
    a("s_lshl_b32 s56, s56, 4")
    a("s_and_b32 s57, s51, 1")
    a("s_add_u32 s56, s56, s57")
    a("s_lshl_b32 s56, s56, 11")
    a(f"s_add_u32 s56, s56, {OF}")
    a(f"v_lshlrev_b32 v{VT}, 4, v1")
    a("s_movk_i32 s57, 4096")
    a("s_movk_i32 s58, 1024")
    a(f"s_branch {N}_tD")
    a(f"{N}_tB:")
    a("v_lshrrev_b32 v2, 3, v1")
    a("v_bfe_u32 v3, v1, 4, 1")
    a("v_lshlrev_b32 v3, 2, v3")
    a("v_and_b32 v4, 7, v1")
    a("v_xor_b32 v3, v3, v4")
    a("v_lshlrev_b32 v3, 4, v3")
    a(f"v_lshl_add_u32 v{VT}, v2, 12, v3")
    a("s_lshl_b32 s56, s51, 16")
    a("s_lshl_b32 s57, s46, 7")
    a("s_add_u32 s56, s56, s57")
    a(f"s_add_u32 s56, s56, {UT}")
    a(f"s_mov_b32 s57, {64*4096}")
    a(f"s_mov_b32 s58, {8*4096}")
    a(f"{N}_tD:")
    a("s_lshl_b32 s59, s51, 11")
    a("s_barrier")
    def tok(c):
        slot = c % 4
        a(f"s_add_u32 m0, s59, {TREG + slot*8192}")
        a("s_add_u32 s62, s56, s58")
        a(f"buffer_load_dwordx4 v{VT}, {ws}, s56 offen{SC} lds")
        a(f"s_add_u32 m0, s59, {TREG + slot*8192 + 1024}")
        a("s_nop 0")
        a(f"buffer_load_dwordx4 v{VT}, {ws}, s62 offen{SC} lds")
        a("s_add_u32 s56, s56, s57")
    for c in range(4): tok(c)
    issued = 4
    for c in range(8):
        a(f"s_waitcnt vmcnt({2 * (issued - (c + 1))})")
        a("s_barrier")
        if c >= 1 and issued < 8:
            tok(issued); issued += 1
    fin(a, ST)

def p3_compute(a, N, ST):
    SO = 32
    ACC3 = 32
    TF = [48, 52]; WF3 = [56, 60]
    WA3, TA = 4, 5
    srd(a, SO, 16, 17, 2048*1792)
    a("v_lshrrev_b32 v2, 5, v1")
    a("v_bfe_u32 v3, v1, 2, 2")
    a("v_lshl_add_u32 v2, v2, 2, v3")
    a("v_lshlrev_b32 v16, 8, v2")
    a("v_bfe_u32 v15, v1, 4, 1")
    a("v_lshlrev_b32 v15, 5, v15")
    a("v_and_b32 v17, 3, v1")
    a("v_lshl_add_u32 v15, v17, 3, v15")
    a("s_lshr_b32 s65, s22, 1")
    a("s_mul_i32 s65, s65, 56")
    a("v_add_u32 v17, s65, v15")
    a("v_lshrrev_b32 v18, 4, v17")
    a("v_lshlrev_b32 v19, 2, v3")
    a("v_xor_b32 v18, v18, v19")
    a("v_and_b32 v17, 15, v17")
    a("v_lshl_add_u32 v17, v18, 4, v17")
    a(f"v_add_u32 v{WA3}, v16, v17")
    a("s_and_b32 s65, s22, 1")
    a("s_cmp_eq_u32 s48, 1")
    a(f"s_cbranch_scc1 {N}_raB")
    a("s_lshl_b32 s65, s65, 12")
    a(f"v_lshlrev_b32 v{TA}, 4, v1")
    a(f"v_add_u32 v{TA}, s65, v{TA}")
    a(f"s_branch {N}_radone")
    a(f"{N}_raB:")
    a("s_lshl_b32 s65, s65, 6")
    a("v_add_u32 v17, s65, v15")
    a("v_lshrrev_b32 v18, 4, v17")
    a("v_bfe_u32 v19, v2, 1, 1")
    a("v_lshlrev_b32 v19, 2, v19")
    a("v_xor_b32 v18, v18, v19")
    a("v_and_b32 v17, 15, v17")
    a("v_lshl_add_u32 v17, v18, 4, v17")
    a(f"v_lshl_add_u32 v{TA}, v2, 7, v17")
    a(f"{N}_radone:")
    a(f"v_add_u32 v{TA}, {TREG}, v{TA}")
    for r in range(ACC3, ACC3+16):
        a(f"v_mov_b32 v{r}, 0")
    def main(partB):
        nch = 7 if partB else 8
        nst = nch * 4
        base = [0]
        def reads(n):
            c, kk = n // 4, n % 4
            want = (c // 4) * 65536
            if want != base[0]:
                a(f"v_add_u32 v{WA3}, {want - base[0]:#x}, v{WA3}")
                base[0] = want
            woff = c * 16384 - want
            toff = (c % 4) * 8192
            b = n % 2
            if partB:
                a(f"ds_read_b64_tr_b16 {vr(TF[b],2)}, v{TA} offset:{toff + kk*16*128}")
                a(f"ds_read_b64_tr_b16 {vr(TF[b]+2,2)}, v{TA} offset:{toff + kk*16*128 + 8*128}")
            else:
                a(f"ds_read_b128 {vr(TF[b],4)}, v{TA} offset:{toff + kk*1024}")
            a(f"ds_read_b64_tr_b16 {vr(WF3[b],2)}, v{WA3} offset:{woff + kk*16*256}")
            a(f"ds_read_b64_tr_b16 {vr(WF3[b]+2,2)}, v{WA3} offset:{woff + kk*16*256 + 8*256}")
        nr = 4 if partB else 3
        a("s_barrier")
        reads(0)
        for n in range(nst):
            b = n % 2
            if n + 1 < nst:
                if (n + 1) % 4 == 0:
                    a(f"s_waitcnt lgkmcnt(0)")
                    a("s_barrier")
                    reads(n + 1)
                else:
                    reads(n + 1)
                    a(f"s_waitcnt lgkmcnt({nr})")
            else:
                a("s_waitcnt lgkmcnt(0)")
            d = vr(ACC3, 16)
            a(f"{MF32} {d}, {vr(WF3[b],4)}, {vr(TF[b],4)}, {d}")
        if partB: a("s_barrier")
        a("s_nop 15")
    a("s_cmp_eq_u32 s48, 1")
    a(f"s_cbranch_scc1 {N}_mainB")
    main(False)
    a(f"s_branch {N}_epi")
    a(f"{N}_mainB:")
    main(True)
    a(f"{N}_epi:")
    ST.n = 9; ST.stamp()
    a("s_cmp_eq_u32 s48, 1")
    a(f"s_mov_b32 s65, {f32bits(2.0/(2048*448)):#x}")
    a("s_cselect_b32 s65, s65, 1.0")
    for i in range(16):
        a(f"v_mul_f32 v{ACC3+i}, s65, v{ACC3+i}")
    for i in range(8):
        a(f"v_cvt_pk_bf16_f32 v{48+i}, v{ACC3+2*i}, v{ACC3+2*i+1}")
    a("s_barrier")
    a("v_and_b32 v2, 31, v1")
    a("s_and_b32 s65, s22, 1")
    a("s_lshl_b32 s65, s65, 5")
    a("v_add_u32 v2, s65, v2")
    a("v_mul_u32_u24 v2, 240, v2")
    a("v_lshrrev_b32 v3, 5, v1")
    a("v_lshl_add_u32 v2, v3, 3, v2")
    a("s_lshr_b32 s65, s22, 1")
    a("s_mul_i32 s65, s65, 56")
    a("v_add_u32 v2, s65, v2")
    for jp in range(3):
        a(f"ds_write_b64 v2, {vr(48+2*jp,2)} offset:{jp*16}")
    a("s_mov_b32 exec_hi, 0")
    a(f"ds_write_b64 v2, {vr(48+6,2)} offset:48")
    a("s_mov_b32 exec_hi, -1")
    a("s_waitcnt lgkmcnt(0)")
    a("s_barrier")
    a("s_mul_i32 s65, s48, 896")
    a("s_mul_i32 s66, s49, 224")
    a("s_add_u32 s65, s65, s66")
    def rb(it):
        a("s_lshl_b32 s66, s46, 6")
        a(f"v_add_u32 v4, {512*it}, v0")
        a("v_mul_u32_u24 v5, 4682, v4")
        a("v_lshrrev_b32 v5, 16, v5")
        a("v_mul_u32_u24 v6, 14, v5")
        a("v_sub_u32 v6, v4, v6")
        a("v_mul_u32_u24 v7, 240, v5")
        a("v_lshl_add_u32 v7, v6, 4, v7")
        a(f"ds_read_b128 {vr(32+4*it,4)}, v7")
        a("v_add_u32 v5, s66, v5")
        a("s_cmp_eq_u32 s48, 0")
        a(f"s_cbranch_scc1 {N}_tk{it}")
        a("v_and_b32 v8, 3, v5")
        a("v_bfe_u32 v9, v5, 6, 2")
        a("v_lshl_add_u32 v8, v9, 2, v8")
        a("v_lshrrev_b32 v9, 9, v5")
        a("v_lshl_add_u32 v8, v9, 4, v8")
        a("v_lshlrev_b32 v8, 5, v8")
        a("v_bfe_u32 v9, v5, 8, 1")
        a("v_lshl_add_u32 v8, v9, 4, v8")
        a("v_bfe_u32 v9, v5, 2, 4")
        a("v_add_u32 v5, v8, v9")
        a(f"{N}_tk{it}:")
        a("v_mul_u32_u24 v5, 1792, v5")
        a(f"v_lshl_add_u32 v{20+it}, v6, 4, v5")
    rb(0)
    a("s_waitcnt lgkmcnt(0)")
    a(f"buffer_store_dwordx4 {vr(32,4)}, v20, s[{SO}:{SO+3}], s65 offen")
    a("v_cmp_gt_u32 vcc, 384, v0")
    a("s_and_saveexec_b64 s[66:67], vcc")
    a(f"s_cbranch_execz {N}_fin")
    rb(1)
    a("s_waitcnt lgkmcnt(0)")
    a(f"buffer_store_dwordx4 {vr(36,4)}, v21, s[{SO}:{SO+3}], s65 offen")
    a(f"{N}_fin:")
    fin(a, ST)
```

```python
import sys, os
from asmlib import *
import tables, importlib
fused = importlib.import_module(os.environ.get('FMOD', 'fused'))
NAME = "concat_heads__softmax_full_mha__spectral_gfnet__prompt_kernel"
def build(out):
    a = fused.gen(NAME)
    pr = check(a.lines, "fused")
    for p in pr: print(p)
    s = """; Kernarg layout (72 bytes): 0 A_x, 8 A_wqkv, 16 A_wo, 24 B_x, 32 B_w_r, 40 B_w_i, 48 d_out, 56 d_debug, 64 d_ws
"""
    s += f"; @launch grid=(256,1,1) block=({fused.BLOCK},1,1) lds={fused.LDS}\n"
    s += '.amdgcn_target "amdgcn-amd-amdhsa--gfx950"\n'
    s += f".text\n.globl {NAME}\n.p2align 8\n.type {NAME},@function\n{NAME}:\n" + a.text()
    s += f""".section .rodata,"a"
.p2align 6
.amdhsa_kernel {NAME}
  .amdhsa_next_free_vgpr 168
  .amdhsa_next_free_sgpr 102
  .amdhsa_accum_offset 168
  .amdhsa_group_segment_fixed_size 0
  .amdhsa_kernarg_size 72
  .amdhsa_user_sgpr_count 2
  .amdhsa_user_sgpr_kernarg_segment_ptr 1
  .amdhsa_system_sgpr_workgroup_id_x 1
.end_amdhsa_kernel
"""
    offs, blob = tables.build()
    s += '.section .rodata,"a"\n.p2align 8\n'
    s += tables.htab_asm("HTAB")
    s += ".p2align 8\n" + tables.emit_blob(blob, "FTAB")
    open(out, "w").write(s)
    print("hazard problems:", len(pr), "size:", len(s))
build(sys.argv[1])
```

```python
from asmlib import *
import struct, math, os
import tables
QF, KV, X1, WT, OF, UT, FL = 0x000000, 0x200000, 0x600000, 0x800000, 0xA00000, 0xC00000, 0xE00000
WS_SIZE = 0xE10000
F1, FW, FO, FU = FL, FL + 0x1000, FL + 0x2000, FL + 0x3000
OOB = 0xF00000 + 0x100000
def f32bits(x): return struct.unpack("<I", struct.pack("<f", x))[0]
QSCALE = f32bits((28 ** -0.5) * math.log2(math.e))
BLOCK = 768
LDS = 163840
MF32 = "v_mfma_f32_32x32x16_bf16"
MF16 = "v_mfma_f32_16x16x32_bf16"
SWS = 24
ws = "s[24:27]"
SC = " sc1"
SPIN = int(os.environ.get('SPIN', '400000'))
E = os.environ.get

def srd(a, d, lo, hi, size):
    a(f"s_mov_b32 s{d}, s{lo}")
    a(f"s_and_b32 s{d+1}, s{hi}, 0xffff")
    a(f"s_mov_b32 s{d+2}, {size}")
    a(f"s_mov_b32 s{d+3}, 0x20000")
def pack(a, src, dst, n=8):
    for i in range(n):
        a(f"v_cvt_pk_bf16_f32 v{dst+i}, v{src+2*i}, v{src+2*i+1}")

_uid = [0]
def uid():
    _uid[0] += 1
    return _uid[0]

def get_tag(a):
    n = uid()
    srd(a, 72, 18, 19, 256)
    a("v_mov_b32 v2, 0")
    a("s_mov_b32 s70, 0")
    a(f"tagL{n}:")
    a("buffer_load_dword v3, v2, s[72:75], 0 offen sc1")
    a("s_waitcnt vmcnt(0)")
    a("v_readfirstlane_b32 s23, v3")
    a("s_nop 3")
    a("s_cmp_lg_u32 s23, 0")
    a(f"s_cbranch_scc1 tagD{n}")
    a("s_add_u32 s70, s70, 1")
    a(f"s_cmp_lt_u32 s70, {SPIN}")
    a("s_sleep 1")
    a(f"s_cbranch_scc1 tagL{n}")
    a(f"tagD{n}:")

def poll(a, voffs, masks=None):
    n = uid()
    a("s_mov_b32 s70, 0")
    a("s_mov_b64 s[68:69], exec")
    a(f"plL{n}:")
    for i, vo in enumerate(voffs):
        if masks and masks[i] is not None: a(f"s_mov_b64 exec, {masks[i]}")
        else: a("s_mov_b64 exec, -1")
        a(f"buffer_load_dword v{160+i}, v{vo}, {ws}, 0 offen sc1")
    a("s_waitcnt vmcnt(0)")
    a("s_mov_b64 s[66:67], 0")
    for i, vo in enumerate(voffs):
        if masks and masks[i] is not None: a(f"s_mov_b64 exec, {masks[i]}")
        else: a("s_mov_b64 exec, -1")
        a(f"v_cmp_ne_u32 vcc, s23, v{160+i}")
        a("s_nop 1")
        a("s_or_b64 s[66:67], s[66:67], vcc")
    a("s_mov_b64 exec, s[68:69]")
    a("s_cmp_eq_u64 s[66:67], 0")
    a(f"s_cbranch_scc1 plD{n}")
    a("s_add_u32 s70, s70, 1")
    a(f"s_cmp_lt_u32 s70, {SPIN}")
    a("s_sleep 2")
    a(f"s_cbranch_scc1 plL{n}")
    a(f"plD{n}:")

def signal(a, off_sgpr):
    a("s_mov_b64 s[68:69], exec")
    a("s_mov_b64 exec, 1")
    a("v_mov_b32 v2, 0")
    a("v_mov_b32 v3, s23")
    a(f"buffer_store_dword v3, v2, {ws}, s{off_sgpr} offen sc1")
    a("s_mov_b64 exec, s[68:69]")

TAGL = 163840 - 16
def signal2(a, off_sgpr):
    a("s_mov_b64 s[62:63], exec")
    a("s_mov_b64 exec, 1")
    a("v_mov_b32 v2, 0")
    a("v_mov_b32 v3, s23")
    a(f"buffer_store_dword v3, v2, {ws}, s{off_sgpr} offen sc1")
    a("s_mov_b64 exec, s[62:63]")

def gen(name):
    a = Asm()
    N = "F"
    ST = Stamps(a, 0, 22)
    a("s_cmp_ge_u32 s2, 256")
    a(f"s_cbranch_scc1 {N}_end")
    if STAMP:
        for i in range(76, 100): a(f"s_mov_b32 s{i}, 0")
    ST.stamp(); ST.stamp(True)
    a("s_load_dwordx16 s[4:19], s[0:1], 0")
    a("s_load_dwordx2 s[20:21], s[0:1], 64")
    a("v_and_b32 v1, 63, v0")
    a("v_lshrrev_b32 v2, 6, v0")
    a("s_nop 0")
    a("v_readfirstlane_b32 s22, v2")
    a("s_and_b32 s44, s2, 7")
    a("s_lshr_b32 s45, s2, 3")
    a("s_and_b32 s48, s44, 3")
    a("s_lshr_b32 s46, s44, 2")
    a("s_lshl_b32 s46, s46, 3")
    a("s_and_b32 s47, s45, 7")
    a("s_add_u32 s46, s46, s47")
    a("s_lshr_b32 s49, s45, 3")
    a("s_cmp_ge_u32 s22, 8")
    a(f"s_cbranch_scc1 {N}_aux")
    p1_addr(a)
    a("s_waitcnt lgkmcnt(0)")
    ST.stamp()
    srd(a, SWS, 20, 21, WS_SIZE)
    a("s_cmp_lg_u32 s22, 0")
    a(f"s_cbranch_scc1 {N}_notag")
    a("s_cmp_lg_u32 s2, 0")
    a(f"s_cbranch_scc1 {N}_gettag")
    a("s_memrealtime s[70:71]")
    srd(a, 72, 18, 19, 256)
    a("v_mov_b32 v2, 0")
    a("buffer_load_dword v3, v2, s[72:75], 0 offen sc1")
    a("s_waitcnt vmcnt(0) lgkmcnt(0)")
    a("v_readfirstlane_b32 s23, v3")
    a("s_nop 3")
    a("s_cmp_lg_u32 s23, 0")
    a(f"s_cbranch_scc1 {N}_pubtag")
    a("s_or_b32 s23, s70, 1")
    a("s_mov_b64 exec, 1")
    a("v_mov_b32 v3, s23")
    a("buffer_store_dword v3, v2, s[72:75], 0 offen sc1")
    a("s_mov_b64 exec, -1")
    a(f"s_branch {N}_pubtag")
    a(f"{N}_gettag:")
    get_tag(a)
    a(f"{N}_pubtag:")
    a(f"v_mov_b32 v2, {TAGL}")
    a("v_mov_b32 v3, s23")
    a("ds_write_b32 v2, v3")
    a("v_mov_b32 v3, 0")
    a("ds_write_b32 v2, v3 offset:4")
    a("ds_write_b32 v2, v3 offset:8")
    a("ds_write_b32 v2, v3 offset:12")
    a("s_waitcnt lgkmcnt(0)")
    a(f"{N}_notag:")
    p1_compute(a, N, ST)
    a(f"{N}_p1done:")
    a("s_waitcnt vmcnt(0)")
    a(f"v_mov_b32 v2, {TAGL}")
    a("v_mov_b32 v3, 1")
    a("s_mov_b64 exec, 1")
    a("ds_add_rtn_u32 v4, v2, v3 offset:4")
    a("ds_read_b32 v5, v2")
    a("s_mov_b64 exec, -1")
    a("s_waitcnt lgkmcnt(0)")
    a("v_readfirstlane_b32 s50, v4")
    a("v_readfirstlane_b32 s23, v5")
    ST.n = 4; ST.stamp()
    a("s_nop 3")
    a("s_cmp_lg_u32 s50, 7")
    a(f"s_cbranch_scc1 {N}_nosig1")
    a("s_lshl_b32 s50, s48, 2")
    a("s_add_u32 s50, s50, s49")
    a("s_lshl_b32 s50, s50, 7")
    a("s_lshl_b32 s51, s46, 2")
    a("s_add_u32 s50, s50, s51")
    a(f"s_add_u32 s50, s50, {F1}")
    signal(a, 50)
    a(f"{N}_nosig1:")
    a("s_cmp_lg_u32 s22, 0")
    a(f"s_cbranch_scc1 {N}_p2s")
    a("s_and_b32 s41, s2, 7")
    a("s_lshl_b32 s41, s41, 1")
    a("s_bfe_u32 s42, s2, 0x10003")
    a("s_add_u32 s41, s41, s42")
    a("s_lshr_b32 s42, s2, 4")
    a("s_lshr_b32 s43, s41, 2")
    a("v_and_b32 v4, 15, v1")
    a("v_lshlrev_b32 v4, 2, v4")
    a("v_lshrrev_b32 v5, 4, v1")
    a("v_add_u32 v5, 1, v5")
    a("v_cmp_eq_u32 vcc, 3, v5")
    a("s_lshl_b32 s50, s42, 2")
    a("v_mov_b32 v6, s50")
    a("v_cndmask_b32 v5, v5, 0, vcc")
    a("v_cndmask_b32 v4, v4, v6, vcc")
    a("v_lshlrev_b32 v5, 9, v5")
    a("s_lshl_b32 s50, s43, 7")
    a(f"s_add_u32 s50, s50, {F1}")
    a("v_add3_u32 v4, v4, v5, s50")
    a("s_mov_b32 s52, -1")
    a("s_mov_b32 s53, 1")
    poll(a, [4], ["s[52:53]"])
    a(f"{N}_p2s:")
    a("s_barrier")
    ST.stamp()
    p2_attn(a, N, ST)
    a("s_waitcnt vmcnt(0)")
    a("s_barrier")
    ST.n = 7; ST.stamp()
    p3_decode(a)
    a("s_cmp_lg_u32 s22, 0")
    a(f"s_cbranch_scc1 {N}_p3s")
    a("s_lshl_b32 s50, s42, 7")
    a("s_lshl_b32 s51, s41, 2")
    a("s_add_u32 s50, s50, s51")
    a(f"s_add_u32 s50, s50, {FO}")
    signal(a, 50)
    a("s_cmp_eq_u32 s48, 1")
    a(f"s_cbranch_scc1 {N}_pollU")
    a("s_lshr_b32 s50, s46, 1")
    a("s_lshl_b32 s50, s50, 7")
    a(f"s_add_u32 s50, s50, {FO}")
    a("v_lshlrev_b32 v4, 2, v1")
    a("v_add_u32 v4, s50, v4")
    a("s_mov_b32 s52, 0xffff")
    a("s_mov_b32 s53, 0")
    poll(a, [4], ["s[52:53]"])
    a(f"s_branch {N}_p3s")
    a(f"{N}_pollU:")
    a("v_lshlrev_b32 v4, 2, v1")
    a(f"v_add_u32 v4, {FU}, v4")
    for i in range(1, 4): a(f"v_add_u32 v{4+i}, {256*i}, v4")
    a("s_mov_b32 s52, -1")
    a("s_mov_b32 s53, 1")
    poll(a, [4, 5, 6, 7], [None, None, None, "s[52:53]"])
    a(f"{N}_p3s:")
    a("s_barrier")
    ST.stamp()
    p3_compute(a, N, ST)
    a(f"{N}_aux:")
    p1_loader(a, N, ST)
    ST.n = 3; ST.stamp()
    a("s_cmp_lg_u32 s22, 8")
    a(f"s_cbranch_scc1 {N}_ap2s")
    a("s_cmp_gt_u32 s40, 224")
    a(f"s_cbranch_scc1 {N}_ap2s")
    a("s_mul_i32 s50, s40, 586")
    a("s_lshr_b32 s50, s50, 16")
    a("s_sub_u32 s51, 448, s40")
    a("s_cmp_eq_u32 s40, 0")
    a("s_cselect_b32 s51, 0, s51")
    a("s_mul_i32 s51, s51, 586")
    a("s_lshr_b32 s51, s51, 16")
    a("v_and_b32 v150, 15, v1")
    a("v_lshlrev_b32 v150, 2, v150")
    a("v_cmp_lt_u32 vcc, 15, v1")
    a("v_mov_b32 v151, s50")
    a("v_mov_b32 v152, s51")
    a("v_cndmask_b32 v151, v151, v152, vcc")
    a("v_lshlrev_b32 v151, 7, v151")
    a("v_add_u32 v150, v150, v151")
    a(f"v_add_u32 v150, {F1 + 12*128}, v150")
    a("s_lshr_b32 s50, s40, 6")
    a("s_lshl_b32 s50, s50, 8")
    a(f"s_add_u32 s50, s50, {FW}")
    a("v_lshlrev_b32 v151, 2, v1")
    a("v_add_u32 v151, s50, v151")
    a("s_mov_b32 s52, -1")
    a("s_mov_b32 s53, 0")
    poll(a, [150, 151], ["s[52:53]", None])
    a(f"{N}_ap2s:")
    ST.n = 4; ST.stamp()
    a("s_barrier")
    p2_fft(a, N, ST)
    a("s_barrier")
    p3_decode(a)
    p3_loader(a, N, ST)
    a(f"{N}_end:")
    a("s_endpgm")
    return a

def fin(a, ST):
    if STAMP:
        a("s_waitcnt vmcnt(0)")
        ST.end()
        ST.flush(0)
    a("s_endpgm")

ACC = 32
XF = [64, 68]; WF = [[72, 76], [80, 84]]
XA = [4, 5, 6, 7]; WA = [8, 9]
NS1 = 4
def p1_addr(a):
    a("s_and_b32 s62, s22, 3")
    a("s_lshl_b32 s62, s62, 12")
    a("v_and_b32 v2, 31, v1")
    a("v_lshlrev_b32 v3, 7, v2")
    a("v_bfe_u32 v15, v1, 1, 3")
    a("v_lshrrev_b32 v25, 5, v1")
    a("v_xor_b32 v15, v15, v25")
    a("v_lshl_add_u32 v3, v15, 4, v3")
    a(f"v_add_u32 v{XA[0]}, s62, v3")
    for kk in range(1, 4):
        a(f"v_xor_b32 v{XA[kk]}, {kk*32}, v{XA[0]}")
    a("v_lshrrev_b32 v2, 5, v1")
    a("v_bfe_u32 v3, v1, 2, 2")
    a("v_lshl_add_u32 v2, v2, 3, v3")
    a("v_lshlrev_b32 v2, 8, v2")
    a("v_add_u32 v2, 16384, v2")
    a("v_bfe_u32 v15, v1, 4, 1")
    a("v_lshlrev_b32 v15, 5, v15")
    a("v_and_b32 v25, 3, v1")
    a("v_lshl_add_u32 v15, v25, 3, v15")
    a("s_lshr_b32 s62, s22, 2")
    a("s_mul_i32 s62, s62, 112")
    a("v_lshlrev_b32 v26, 2, v3")
    for g in range(2):
        a(f"v_add_u32 v25, s62, v15")
        if g: a(f"v_add_u32 v25, 56, v25")
        a(f"v_lshrrev_b32 v27, 4, v25")
        a(f"v_xor_b32 v27, v27, v26")
        a(f"v_and_b32 v25, 15, v25")
        a(f"v_lshl_add_u32 v25, v27, 4, v25")
        a(f"v_add_u32 v{WA[g]}, v2, v25")
    for r in range(ACC, ACC+32):
        a(f"v_mov_b32 v{r}, 0")

def p1_main(a, ST, qk):
    base = [0]
    def reads(n):
        c, kk = n // 4, n % 4
        slot = c % NS1
        want = (slot // 2) * 65536
        if want != base[0]:
            d = want - base[0]
            for r in XA + WA:
                a(f"v_add_u32 v{r}, {d & 0xffffffff:#x}, v{r}")
            base[0] = want
        off = slot * 32768 - want
        b = n % 2
        a(f"ds_read_b128 {vr(XF[b],4)}, v{XA[kk]} offset:{off}")
        for g in range(2):
            a(f"ds_read_b64_tr_b16 {vr(WF[b][g],2)}, v{WA[g]} offset:{off + kk*16*256}")
            a(f"ds_read_b64_tr_b16 {vr(WF[b][g]+2,2)}, v{WA[g]} offset:{off + kk*16*256 + 4*256}")
    a("s_barrier")
    reads(0)
    for n in range(28):
        b = n % 2
        if n + 1 < 28:
            if (n + 1) % 4 == 0:
                a(f"s_waitcnt lgkmcnt(0)")
                a("s_barrier")
                reads(n + 1)
            else:
                reads(n + 1)
                a("s_waitcnt lgkmcnt(5)")
        else:
            a("s_waitcnt lgkmcnt(0)")
        for g in range(2):
            d = vr(ACC + 16*g, 16)
            if qk: a(f"{MF32} {d}, {vr(WF[b][g],4)}, {vr(XF[b],4)}, {d}")
            else:  a(f"{MF32} {d}, {vr(XF[b],4)}, {vr(WF[b][g],4)}, {d}")
    a("s_nop 15")

def p1_compute(a, N, ST):
    a("s_cmp_ge_u32 s48, 2")
    a(f"s_cbranch_scc1 {N}_vx")
    p1_main(a, ST, True)
    ST.n = 3; ST.stamp()
    def headtile():
        a("s_lshl_b32 s58, s49, 2")
        a("s_lshr_b32 s59, s22, 2")
        a("s_lshl_b32 s59, s59, 1")
        a("s_add_u32 s58, s58, s59")
        a("s_lshl_b32 s58, s58, 6")
        a("s_lshl_b32 s59, s46, 2")
        a("s_add_u32 s58, s58, s59")
        a("s_and_b32 s59, s22, 3")
        a("s_add_u32 s58, s58, s59")
    def stores(gstride):
        for g in range(2):
            for j in range(2):
                a(f"s_add_u32 s59, s58, {g*64*gstride + j*1024}")
                a(f"buffer_store_dwordx4 {vr(64+8*g+4*j,4)}, v2, {ws}, s59 offen{SC}")
    headtile()
    a("v_lshlrev_b32 v2, 4, v1")
    a("s_cmp_eq_u32 s48, 1")
    a(f"s_cbranch_scc1 {N}_kep")
    a(f"s_mov_b32 s62, {QSCALE:#x}")
    for r in range(ACC, ACC+32):
        a(f"v_mul_f32 v{r}, s62, v{r}")
    a("s_mov_b32 exec_lo, 0")
    for g in range(2):
        for r in range(12, 16):
            a(f"v_mov_b32 v{ACC+16*g+r}, 0")
    a("s_mov_b32 exec_lo, -1")
    pack(a, ACC, 64, 16)
    a("s_lshl_b32 s58, s58, 11")
    a(f"s_add_u32 s58, s58, {QF}")
    stores(2048)
    a(f"s_branch {N}_p1done")
    a(f"{N}_kep:")
    a("s_mov_b32 exec_lo, 0")
    for g in range(2):
        a(f"v_mov_b32 v{ACC+16*g+12}, 1.0")
        for r in range(13, 16):
            a(f"v_mov_b32 v{ACC+16*g+r}, 0")
    a("s_mov_b32 exec_lo, -1")
    pack(a, ACC, 64, 16)
    a("s_lshl_b32 s58, s58, 12")
    a(f"s_add_u32 s58, s58, {KV}")
    stores(4096)
    a(f"s_branch {N}_p1done")
    a(f"{N}_vx:")
    p1_main(a, ST, False)
    ST.n = 3; ST.stamp()
    a("s_cmp_eq_u32 s48, 3")
    a(f"s_cbranch_scc1 {N}_xep")
    a("v_and_b32 v2, 31, v1")
    a("v_cmp_lt_u32 vcc, 27, v2")
    a("s_and_saveexec_b64 s[64:65], vcc")
    a("v_cmp_eq_u32 vcc, 28, v2")
    a("s_nop 1")
    a("v_cndmask_b32 v3, 0, 1.0, vcc")
    for r in range(ACC, ACC+32):
        a(f"v_mov_b32 v{r}, v3")
    a("s_mov_b64 exec, s[64:65]")
    pack(a, ACC, 64, 16)
    headtile()
    a("s_lshl_b32 s58, s58, 12")
    a(f"s_add_u32 s58, s58, {KV+2048}")
    a("v_lshlrev_b32 v2, 4, v1")
    stores(4096)
    a(f"s_branch {N}_p1done")
    a(f"{N}_xep:")
    pack(a, ACC, 64, 16)
    a("s_barrier")
    a("s_lshr_b32 s58, s22, 2")
    a("s_mul_i32 s58, s58, 56")
    a("v_and_b32 v2, 31, v1")
    a("v_lshrrev_b32 v3, 5, v1")
    a("s_and_b32 s59, s22, 3")
    a("s_lshl_b32 s59, s59, 2")
    a("v_add_u32 v3, s59, v3")
    a("v_cmp_gt_u32 vcc, 28, v2")
    a("s_and_saveexec_b64 s[64:65], vcc")
    for g in range(2):
        a(f"v_add_u32 v4, s58, v2")
        if g: a("v_add_u32 v4, 28, v4")
        a("v_and_b32 v5, 15, v4")
        for j in range(2):
            a(f"v_add_u32 v6, {2*j}, v3")
            a("v_xor_b32 v6, v6, v5")
            a("v_lshlrev_b32 v6, 4, v6")
            a("v_lshl_add_u32 v6, v4, 8, v6")
            a(f"ds_write_b128 v6, {vr(64+8*g+4*j,4)}")
    a("s_mov_b64 exec, s[64:65]")
    a("s_waitcnt lgkmcnt(0)")
    a("s_barrier")
    a("s_mul_i32 s58, s49, 112")
    a("s_lshl_b32 s58, s58, 12")
    a("s_lshr_b32 s59, s46, 1")
    a("s_lshl_b32 s59, s59, 9")
    a("s_add_u32 s58, s58, s59")
    a("s_and_b32 s59, s46, 1")
    a("s_lshl_b32 s59, s59, 8")
    a("s_add_u32 s58, s58, s59")
    a(f"s_add_u32 s58, s58, {X1}")
    a("v_lshrrev_b32 v2, 4, v0")
    a("v_and_b32 v3, 15, v0")
    def rb(it):
        a(f"v_add_u32 v4, {32*it}, v2")
        a("v_and_b32 v5, 15, v4")
        a("v_xor_b32 v5, v5, v3")
        a("v_lshlrev_b32 v5, 4, v5")
        a("v_lshl_add_u32 v5, v4, 8, v5")
        a(f"ds_read_b128 {vr(32+4*it,4)}, v5")
        a("v_lshlrev_b32 v6, 12, v4")
        a(f"v_lshl_add_u32 v{8+it}, v3, 4, v6")
    for it in range(3):
        rb(it)
    a("s_waitcnt lgkmcnt(0)")
    for it in range(3):
        a(f"buffer_store_dwordx4 {vr(32+4*it,4)}, v{8+it}, {ws}, s58 offen{SC}")
    a("v_add_u32 v4, 96, v2")
    a("v_cmp_gt_u32 vcc, 112, v4")
    a("s_and_saveexec_b64 s[64:65], vcc")
    a(f"s_cbranch_execz {N}_xfin")
    rb(3)
    a("s_waitcnt lgkmcnt(0)")
    a(f"buffer_store_dwordx4 {vr(32+12,4)}, v{8+3}, {ws}, s58 offen{SC}")
    a(f"{N}_xfin:")
    a("s_mov_b64 exec, s[64:65]")

def p1_loader(a, N, ST):
    SX, SW = 28, 32
    VX0, VX1, VW = 10, 11, 12
    PER = 4
    a("s_sub_u32 s51, s22, 8")
    a("s_getpc_b64 s[52:53]")
    a("s_add_u32 s52, s52, HTAB@rel32@lo+4")
    a("s_addc_u32 s53, s53, HTAB@rel32@hi+12")
    a("v_lshrrev_b32 v2, 3, v1")
    a("s_cmp_eq_u32 s48, 3")
    a(f"s_cbranch_scc0 {N}_lp")
    a("v_and_b32 v3, 3, v2")
    a("v_lshlrev_b32 v3, 5, v3")
    a("v_lshrrev_b32 v2, 5, v1")
    a("v_add_u32 v2, v2, v3")
    a(f"{N}_lp:")
    a("v_mul_u32_u24 v2, 896, v2")
    a("v_and_b32 v3, 7, v1")
    a("v_lshrrev_b32 v4, 4, v1")
    a("v_xor_b32 v5, v3, v4")
    a(f"v_lshl_add_u32 v{VX0}, v5, 4, v2")
    a("v_xor_b32 v5, 4, v5")
    a(f"v_lshl_add_u32 v{VX1}, v5, 4, v2")
    TK = 56
    a("s_cmp_eq_u32 s48, 3")
    a(f"s_cbranch_scc1 {N}_ltX")
    a("s_lshl_b32 s66, s46, 7")
    a(f"s_mul_i32 s67, s51, {8*PER}")
    a("s_add_u32 s66, s66, s67")
    for ii in range(PER):
        a(f"s_add_u32 s{TK+ii}, s66, {8*ii}")
    a(f"s_branch {N}_ltd")
    a(f"{N}_ltX:")
    a("s_lshr_b32 s66, s46, 1")
    a("s_lshl_b32 s66, s66, 8")
    a("s_and_b32 s67, s46, 1")
    a("s_lshl_b32 s67, s67, 4")
    a("s_add_u32 s66, s66, s67")
    a(f"s_mul_i32 s67, s51, {PER}")
    a("s_add_u32 s66, s66, s67")
    for ii in range(PER):
        a(f"s_add_u32 s{TK+ii}, s66, {128*(ii&1) + 4*(ii>>2) + 2*((ii>>1)&1)}")
    a(f"{N}_ltd:")
    for ii in range(PER):
        a(f"s_mulk_i32 s{TK+ii}, 896")
    a("s_cmp_eq_u32 s48, 3")
    a(f"s_movk_i32 s64, 2688")
    a(f"s_cselect_b32 s64, 896, s64")
    a("s_mul_i32 s65, s48, 896")
    a("s_cselect_b32 s65, 0, s65")
    a("s_mul_i32 s66, s49, 224")
    a("s_add_u32 s65, s65, s66")
    a("v_lshrrev_b32 v2, 4, v1")
    a("v_mul_lo_u32 v3, v2, s64")
    a("v_lshlrev_b32 v4, 2, v2")
    a("v_and_b32 v5, 15, v1")
    a("v_xor_b32 v4, v4, v5")
    a(f"v_lshl_add_u32 v{VW}, v4, 4, v3")
    a(f"v_add_u32 v{VW}, s65, v{VW}")
    a("s_lshl_b32 s65, s64, 2")
    a(f"s_mul_i32 s66, s64, {4*PER}")
    a("s_mul_i32 s66, s66, s51")
    a("s_lshl_b32 s67, s64, 6")
    a(f"s_mul_i32 s68, s51, {PER*1024}")
    a("s_lshr_b32 s69, s45, 3")
    a("s_add_u32 s69, s69, s45")
    a("s_and_b32 s69, s69, 3")
    a("s_lshl_b32 s69, s69, 1")
    a("s_waitcnt lgkmcnt(0)")
    ST.n = 2; ST.stamp()
    srd(a, SWS, 20, 21, WS_SIZE)
    a("s_cmp_eq_u32 s48, 3")
    a("s_cselect_b32 s54, s10, s4")
    a("s_cselect_b32 s55, s11, s5")
    srd(a, SX, 54, 55, 2048*896)
    a("s_cmp_eq_u32 s48, 3")
    a("s_cselect_b32 s54, s52, s6")
    a("s_cselect_b32 s55, s53, s7")
    a(f"s_mov_b32 s{SW}, s54")
    a(f"s_and_b32 s{SW+1}, s55, 0xffff")
    a("s_cmp_eq_u32 s48, 3")
    a(f"s_mov_b32 s70, {448*2688}")
    a(f"s_cselect_b32 s{SW+2}, {448*896}, s70")
    a(f"s_mov_b32 s{SW+3}, 0x20000")
    def dma(c):
        slot = c % NS1
        a("s_lshl_b32 s70, s69, 7")
        a("s_mul_i32 s71, s69, s67")
        a("s_add_u32 s71, s71, s66")
        for ii in range(PER):
            a(f"s_add_u32 m0, s68, {slot*32768 + ii*1024}")
            a(f"s_add_u32 s54, s{TK+ii}, s70")
            a(f"buffer_load_dwordx4 v{VX0 if ii % 2 == 0 else VX1}, s[{SX}:{SX+3}], s54 offen lds")
            a(f"s_add_u32 m0, s68, {slot*32768 + 16384 + ii*1024}")
            if ii: a("s_add_u32 s71, s71, s65")
            else: a("s_nop 0")
            a(f"buffer_load_dwordx4 v{VW}, s[{SW}:{SW+3}], s71 offen lds")
        a("s_add_u32 s69, s69, 1")
        a("s_cmp_eq_u32 s69, 7")
        a("s_cselect_b32 s69, 0, s69")
    dma(0); dma(1)
    P2 = 2*PER
    waits = {5: P2 + 16, 6: 16}
    for c in range(7):
        a(f"s_waitcnt vmcnt({waits.get(c, P2)})")
        a("s_barrier")
        if c + 2 <= 6: dma(c + 2)
        if c == 4: p1_side_loads(a)
    fft_col(a, 40)
    a("s_mov_b32 s39, s48")
    a("s_cmp_eq_u32 s39, 3")
    a(f"s_cbranch_scc0 {N}_noxe")
    a("s_barrier")
    a("s_barrier")
    a(f"{N}_noxe:")
    p1_side_finish(a, N)
    a("s_cmp_gt_u32 s40, 224")
    a(f"s_cbranch_scc1 {N}_nocol")
    fft_consts(a, N)
    a(f"{N}_nocol:")

SJ = 16
SXB = 131072
def p1_side_loads(a):
    srd(a, 36, 12, 13, 2048*450)
    srd(a, 72, 14, 15, 2048*450)
    a("v_lshlrev_b32 v13, 1, v1")
    a("s_and_b32 s63, s2, 3")
    a("s_lshl_b32 s63, s63, 7")
    for q in range(2):
        a("s_lshr_b32 s60, s2, 2")
        a("s_lshl_b32 s60, s60, 3")
        a("s_lshl_b32 s61, s51, 1")
        a("s_add_u32 s60, s60, s61")
        if q: a("s_add_u32 s60, s60, 1")
        a("s_and_b32 s61, s60, 15")
        a("s_lshr_b32 s62, s60, 7")
        a("s_lshl_b32 s62, s62, 4")
        a("s_add_u32 s61, s61, s62")
        a("s_bfe_u32 s62, s60, 0x10006")
        a("s_lshl_b32 s62, s62, 4")
        a("s_bfe_u32 s54, s60, 0x20004")
        a("s_lshl_b32 s54, s54, 2")
        a("s_add_u32 s62, s62, s54")
        a("s_lshl_b32 s62, s62, 6")
        a("s_add_u32 s61, s61, s62")
        a("s_mulk_i32 s61, 450")
        a("s_add_u32 s61, s61, s63")
        for i in range(4):
            a(f"s_add_u32 s62, s61, {i*28800}")
            a(f"buffer_load_ushort v{SJ+8*q+i}, v13, s[36:39], s62 offen")
            a(f"buffer_load_ushort v{SJ+8*q+4+i}, v13, s[72:75], s62 offen")

def p1_side_finish(a, N):
    a("s_waitcnt vmcnt(0)")
    for q in range(2):
        for i in range(4):
            a(f"v_lshl_or_b32 v{SJ+8*q+i}, v{SJ+8*q+4+i}, 16, v{SJ+8*q+i}")
    a("v_mul_u32_u24 v14, 144, v1")
    a("s_lshl_b32 s60, s51, 5")
    a(f"s_add_u32 s60, s60, {SXB}")
    a("v_add_u32 v14, s60, v14")
    a(f"ds_write_b128 v14, {vr(SJ,4)}")
    a(f"ds_write_b128 v14, {vr(SJ+8,4)} offset:16")
    a(f"v_mov_b32 v2, {TAGL}")
    a("v_mov_b32 v3, 1")
    a("s_waitcnt lgkmcnt(0)")
    a("s_mov_b64 exec, 1")
    a("ds_add_u32 v2, v3 offset:8")
    a("s_mov_b64 exec, -1")
    a("s_mov_b32 s60, 0")
    a(f"{N}_sjw:")
    a("ds_read_b32 v4, v2 offset:8")
    a("ds_read_b32 v5, v2")
    a("s_waitcnt lgkmcnt(0)")
    a("v_readfirstlane_b32 s61, v4")
    a("v_readfirstlane_b32 s23, v5")
    a("s_nop 3")
    a("s_cmp_ge_u32 s61, 4")
    a(f"s_cbranch_scc1 {N}_sjd")
    a("s_add_u32 s60, s60, 1")
    a(f"s_cmp_lt_u32 s60, {SPIN}")
    a("s_sleep 1")
    a(f"s_cbranch_scc1 {N}_sjw")
    a(f"{N}_sjd:")
    a("v_lshrrev_b32 v4, 3, v1")
    a("s_lshl_b32 s60, s51, 4")
    a("v_add_u32 v4, s60, v4")
    a("v_and_b32 v5, 7, v1")
    a("v_mul_u32_u24 v6, 144, v4")
    a("v_lshl_add_u32 v6, v5, 4, v6")
    a(f"v_add_u32 v6, {SXB}, v6")
    a(f"ds_read_b128 {vr(SJ,4)}, v6")
    a(f"ds_read_b128 {vr(SJ+4,4)}, v6 offset:{8*144}")
    a("s_and_b32 s60, s2, 3")
    a("s_lshl_b32 s60, s60, 6")
    a("v_add_u32 v4, s60, v4")
    a("v_lshlrev_b32 v7, 13, v4")
    a("v_lshl_add_u32 v7, v5, 4, v7")
    a("s_lshr_b32 s61, s2, 2")
    a("s_lshl_b32 s61, s61, 7")
    a(f"s_add_u32 s61, s61, {WT}")
    a("s_waitcnt lgkmcnt(0)")
    a("v_cmp_gt_u32 vcc, 225, v4")
    a("s_and_saveexec_b64 s[62:63], vcc")
    a(f"buffer_store_dwordx4 {vr(SJ,4)}, v7, {ws}, s61 offen{SC}")
    a("s_mov_b64 exec, s[62:63]")
    a("v_add_u32 v4, 8, v4")
    a(f"s_add_u32 s61, s61, {8*8192}")
    a("v_cmp_gt_u32 vcc, 225, v4")
    a("s_and_saveexec_b64 s[62:63], vcc")
    a(f"buffer_store_dwordx4 {vr(SJ+4,4)}, v7, {ws}, s61 offen{SC}")
    a("s_mov_b64 exec, s[62:63]")
    a("s_waitcnt vmcnt(0)")
    a("s_mov_b64 exec, 1")
    a("ds_add_rtn_u32 v4, v2, v3 offset:12")
    a("s_mov_b64 exec, -1")
    a("s_waitcnt lgkmcnt(0)")
    a("v_readfirstlane_b32 s60, v4")
    a("s_nop 3")
    a("s_cmp_lg_u32 s60, 3")
    a(f"s_cbranch_scc1 {N}_sjn")
    a("s_and_b32 s60, s2, 3")
    a("s_lshl_b32 s60, s60, 8")
    a("s_lshr_b32 s61, s2, 2")
    a("s_lshl_b32 s61, s61, 2")
    a("s_add_u32 s60, s60, s61")
    a(f"s_add_u32 s60, s60, {FW}")
    signal2(a, 60)
    a(f"{N}_sjn:")

RING = 131072
XB = RING
FLAG = RING + 9216
def p2_attn(a, N, ST):
    QR = 4
    SA, SB = 16, 32
    PR = 48
    OR_ = 56
    KF = [72, 80]; VF = [88, 96]
    VL, VC, VN = 12, 13, 14
    MR = 15
    T0, T1, T2, T3 = 104, 105, 106, 107
    a("s_and_b32 s41, s2, 7")
    a("s_lshl_b32 s41, s41, 1")
    a("s_bfe_u32 s42, s2, 0x10003")
    a("s_add_u32 s41, s41, s42")
    a("s_lshr_b32 s42, s2, 4")
    a("s_and_b32 s43, s22, 3")
    a("s_lshr_b32 s44, s22, 2")
    a(f"v_lshlrev_b32 v{VL}, 4, v1")
    a("s_lshl_b32 s45, s41, 6")
    a("s_lshl_b32 s46, s42, 2")
    a("s_add_u32 s46, s46, s43")
    a("s_add_u32 s47, s45, s46")
    a("s_lshl_b32 s47, s47, 11")
    a(f"s_add_u32 s47, s47, {QF}")
    a("s_lshl_b32 s48, s44, 5")
    a("s_add_u32 s48, s48, s45")
    a("s_add_u32 s48, s48, s43")
    a("s_lshl_b32 s48, s48, 12")
    a(f"s_add_u32 s48, s48, {KV}")
    a("s_lshl_b32 s49, s44, 14")
    a("s_lshl_b32 s50, s43, 12")
    a("s_add_u32 s49, s49, s50")
    a("s_lshl_b32 s50, s44, 14")
    a(f"v_add_u32 v{VC}, s50, v{VL}")
    a("s_mov_b32 s51, 0")
    a("s_and_b32 s59, s42, 7")
    def dma1(goff_s, slot_s, i):
        a(f"s_add_u32 m0, s{slot_s}, {i*1024}")
        a(f"s_add_u32 s54, s{goff_s}, {i*1024}")
        a(f"buffer_load_dwordx4 v{VL}, {ws}, s54 offen{SC} lds")
    def step_goff(dst, s_imm):
        a(f"s_add_u32 s{dst}, s59, {s_imm}")
        a(f"s_and_b32 s{dst}, s{dst}, 7")
        a(f"s_lshl_b32 s{dst}, s{dst}, 14")
        a(f"s_add_u32 s{dst}, s{dst}, s48")
    a(f"buffer_load_dwordx4 {vr(QR,4)}, v{VL}, {ws}, s47 offen{SC}")
    a(f"buffer_load_dwordx4 {vr(QR+4,4)}, v{VL}, {ws}, s47 offen offset:1024{SC}")
    a("s_cmp_lg_u32 s22, 0")
    a(f"s_cbranch_scc1 {N}_noflag")
    a(f"v_mov_b32 v{T0}, {FLAG}")
    a(f"v_mov_b32 v{T1}, 0")
    a(f"ds_write_b32 v{T0}, v{T1}")
    a(f"{N}_noflag:")
    a(f"{N}_restart:")
    step_goff(52, 0)
    a("s_mov_b32 s53, s49")
    for i in range(4): dma1(52, 53, i)
    a(f"v_xor_b32 v{VN}, 0x10000, v{VC}")
    for r in range(OR_, OR_+16):
        a(f"v_mov_b32 v{r}, 0")
    for r in list(range(PR+4, PR+8)) + list(range(VF[1]+4, VF[1]+8)):
        a(f"v_mov_b32 v{r}, 0")
    a("s_waitcnt vmcnt(0) lgkmcnt(0)")
    a("s_barrier")
    def rd(dst, base, off):
        a(f"ds_read_b128 {vr(dst,4)}, v{base} offset:{off}")
    def smf1(S, kb): return f"{MF32} {vr(S,16)}, {vr(KF[kb],4)}, {vr(QR,4)}, 0"
    def smf2(S, kb): return f"{MF32} {vr(S,16)}, {vr(KF[kb]+4,4)}, {vr(QR+4,4)}, {vr(S,16)}"
    rd(KF[0], VC, 0); rd(KF[0]+4, VC, 1024)
    rd(VF[0], VC, 2048); rd(VF[0]+4, VC, 3072)
    rd(KF[1], VC, 4096); rd(KF[1]+4, VC, 4096+1024)
    a("s_cmp_lg_u32 s51, 0")
    a(f"s_cbranch_scc1 {N}_havem")
    a("s_waitcnt lgkmcnt(4)")
    a(smf1(SA, 0)); a(smf2(SA, 0))
    a("s_nop 15")
    s = SA
    a(f"v_max3_f32 v{T0}, v{s}, v{s+1}, v{s+2}")
    a(f"v_max3_f32 v{T1}, v{s+3}, v{s+4}, v{s+5}")
    a(f"v_max3_f32 v{T2}, v{s+6}, v{s+7}, v{s+8}")
    a(f"v_max3_f32 v{T3}, v{s+9}, v{s+10}, v{s+11}")
    a(f"v_max3_f32 v{T0}, v{T0}, v{s+12}, v{s+13}")
    a(f"v_max3_f32 v{T1}, v{T1}, v{s+14}, v{s+15}")
    a(f"v_max3_f32 v{T0}, v{T0}, v{T1}, v{T2}")
    a(f"v_max_f32 v{T0}, v{T0}, v{T3}")
    set_m(a, QR, MR, T0, T1)
    a(f"{N}_havem:")
    a("s_waitcnt lgkmcnt(0)")
    a("s_nop 1")
    a(smf1(SA, 0)); a(smf2(SA, 0))
    a("s_nop 11")
    ST.n = 6; ST.stamp()
    def off(b): return (b // 4) * 32768 + (b % 4) * 4096
    Ex = lambda S, i: a(f"v_exp_f32 v{S+i}, v{S+i}")
    C = lambda S, i: a(f"v_cvt_pk_bf16_f32 v{PR+i}, v{S+2*i}, v{S+2*i+1}")
    def body(first):
        for b in range(8):
            S, Sn = (SA, SB) if b % 2 == 0 else (SB, SA)
            kb = (b + 1) % 2
            vb = b % 2
            pvb = (b + 1) % 2
            refill = False
            if first and b in (0, 1):
                step_goff(52, b + 1)
                a(f"s_add_u32 s53, s49, {(b+1)*32768}")
                refill = True
            if b in (2, 6):
                a("s_lshl_b32 s53, s55, 1")
                a(f"s_add_u32 s53, s53, {3 if b == 2 else 4}")
                a("s_add_u32 s52, s53, s59")
                a("s_and_b32 s52, s52, 7")
                a("s_lshl_b32 s52, s52, 14")
                a("s_add_u32 s52, s52, s48")
                a("s_cmp_gt_u32 s53, 7")
                a(f"s_cselect_b32 s52, {OOB}, s52")
                a("s_and_b32 s53, s53, 3")
                a("s_lshl_b32 s53, s53, 15")
                a("s_add_u32 s53, s53, s49")
                a("s_waitcnt vmcnt(4)")
                a("s_barrier")
                refill = True
            def dm(i):
                if refill: dma1(52, 53, i)
            kbase, koff = (VC, off(b + 2)) if b + 2 < 8 else (VN, off(b + 2 - 8))
            vbase, voff = (VC, off(b + 1)) if b + 1 < 8 else (VN, off(b + 1 - 8))
            Ex(S, 0); Ex(S, 1)
            a(f"{MF32} {vr(OR_,16)}, {vr(VF[pvb]+4,4)}, {vr(PR+4,4)}, {vr(OR_,16)}")
            rd(VF[pvb], vbase, voff + 2048)
            dm(0)
            Ex(S, 2); Ex(S, 3); Ex(S, 4); C(S, 0); C(S, 1)
            a("s_waitcnt lgkmcnt(1)")
            a(smf1(Sn, kb))
            rd(VF[pvb]+4, vbase, voff + 3072)
            dm(1)
            Ex(S, 5); Ex(S, 6); Ex(S, 7); Ex(S, 8); C(S, 2)
            a(smf2(Sn, kb))
            rd(KF[b % 2], kbase, koff)
            dm(2)
            C(S, 3); Ex(S, 9); Ex(S, 10); Ex(S, 11)
            a(f"{MF32} {vr(OR_,16)}, {vr(VF[vb],4)}, {vr(PR,4)}, {vr(OR_,16)}")
            rd(KF[b % 2]+4, kbase, koff + 1024)
            dm(3)
            Ex(S, 12); Ex(S, 13); C(S, 4); Ex(S, 14); Ex(S, 15); C(S, 5); C(S, 6); C(S, 7)
        a(f"v_xor_b32 v{VC}, 0x10000, v{VC}")
        a(f"v_xor_b32 v{VN}, 0x10000, v{VN}")
    a("s_mov_b32 s55, 0")
    body(True)
    a("s_mov_b32 s55, 1")
    a(f"{N}_loop:")
    body(False)
    a("s_add_u32 s55, s55, 1")
    a("s_cmp_lt_u32 s55, 4")
    a(f"s_cbranch_scc1 {N}_loop")
    a(f"{MF32} {vr(OR_,16)}, {vr(VF[1]+4,4)}, {vr(PR+4,4)}, {vr(OR_,16)}")
    a("s_nop 15")
    a("s_waitcnt lgkmcnt(0)")
    LL = T0
    a(f"v_mov_b32 v{T1}, v{OR_+12}")
    a(f"v_mov_b32 v{LL}, v{OR_+12}")
    a("s_nop 1")
    a(f"v_permlane32_swap_b32 v{T1}, v{LL}")
    a("s_cmp_lg_u32 s51, 0")
    a(f"s_cbranch_scc1 {N}_nochk")
    a(f"s_mov_b32 s56, {f32bits(2.0**64):#x}")
    a(f"v_cmp_ngt_f32 vcc, s56, v{LL}")
    a("s_nop 4")
    a(f"s_cbranch_vccz {N}_nochk")
    a(f"v_mov_b32 v{T1}, {FLAG}")
    a(f"v_mov_b32 v{T2}, 1")
    a(f"ds_write_b32 v{T1}, v{T2}")
    a(f"{N}_nochk:")
    a("s_mul_i32 s56, s43, 5120")
    a("s_mul_i32 s57, s44, 2560")
    a("s_add_u32 s57, s57, s56")
    a("s_xor_b32 s58, s44, 1")
    a("s_mul_i32 s58, s58, 2560")
    a("s_add_u32 s58, s58, s56")
    a(f"v_add_u32 v{T1}, s57, v{VL}")
    a(f"v_lshlrev_b32 v{T2}, 3, v1")
    a(f"v_add_u32 v{T2}, s57, v{T2}")
    a(f"v_mov_b32 v{T3+1}, v{MR}")
    a(f"v_mov_b32 v{T3+2}, v{LL}")
    a("s_cmp_eq_u32 s44, 0")
    a(f"s_cbranch_scc1 {N}_send1")
    a(f"ds_write_b128 v{T1}, {vr(OR_,4)}")
    a(f"ds_write_b128 v{T1}, {vr(OR_+4,4)} offset:1024")
    for i in range(8): a(f"v_mov_b32 v{SA+i}, v{OR_+8+i}")
    a(f"s_branch {N}_sent")
    a(f"{N}_send1:")
    a(f"ds_write_b128 v{T1}, {vr(OR_+8,4)}")
    a(f"ds_write_b128 v{T1}, {vr(OR_+12,4)} offset:1024")
    for i in range(8): a(f"v_mov_b32 v{SA+i}, v{OR_+i}")
    a(f"{N}_sent:")
    a(f"ds_write_b64 v{T2}, {vr(T3+1,2)} offset:2048")
    a("s_waitcnt vmcnt(0) lgkmcnt(0)")
    a("s_barrier")
    a(f"v_add_u32 v{T1}, s58, v{VL}")
    a(f"v_lshlrev_b32 v{T2}, 3, v1")
    a(f"v_add_u32 v{T2}, s58, v{T2}")
    a(f"v_mov_b32 v{T3}, {FLAG}")
    a(f"ds_read_b32 v{T3}, v{T3}")
    a(f"ds_read_b128 {vr(SB,4)}, v{T1}")
    a(f"ds_read_b128 {vr(SB+4,4)}, v{T1} offset:1024")
    a(f"ds_read_b64 {vr(SB+8,2)}, v{T2} offset:2048")
    a("s_waitcnt lgkmcnt(0)")
    a("s_cmp_lg_u32 s51, 0")
    a(f"s_cbranch_scc1 {N}_merge")
    a(f"v_readfirstlane_b32 s56, v{T3}")
    a("s_nop 3")
    a("s_cmp_lg_u32 s56, 0")
    a(f"s_cbranch_scc1 {N}_slow")
    a(f"{N}_merge:")
    MP, LP = SB+8, SB+9
    a(f"v_max_f32 v{T1}, v{MR}, v{MP}")
    a(f"v_sub_f32 v{T2}, v{MR}, v{T1}")
    a(f"v_sub_f32 v{T3}, v{MP}, v{T1}")
    a(f"v_exp_f32 v{T2}, v{T2}")
    a(f"v_exp_f32 v{T3}, v{T3}")
    a("s_nop 0")
    a(f"v_mul_f32 v{T1}, v{T2}, v{LL}")
    a(f"v_fmac_f32 v{T1}, v{T3}, v{LP}")
    a(f"v_rcp_f32 v{T1}, v{T1}")
    a("s_nop 0")
    a(f"v_mul_f32 v{T2}, v{T2}, v{T1}")
    a(f"v_mul_f32 v{T3}, v{T3}, v{T1}")
    for i in range(8):
        a(f"v_mul_f32 v{SA+i}, v{T2}, v{SA+i}")
    for i in range(8):
        a(f"v_fmac_f32 v{SA+i}, v{T3}, v{SB+i}")
    a("s_cmp_eq_u32 s44, 0")
    a(f"s_cbranch_scc1 {N}_nopad")
    a("s_mov_b32 exec_lo, 0")
    for i in range(4, 8): a(f"v_mov_b32 v{SA+i}, 0")
    a("s_mov_b32 exec_lo, -1")
    a(f"{N}_nopad:")
    for i in range(4): a(f"v_cvt_pk_bf16_f32 v{PR+i}, v{SA+2*i}, v{SA+2*i+1}")
    a("s_lshl_b32 s56, s46, 4")
    a("s_add_u32 s56, s56, s41")
    a("s_lshl_b32 s56, s56, 1")
    a("s_add_u32 s56, s56, s44")
    a("s_lshl_b32 s56, s56, 10")
    a(f"s_add_u32 s56, s56, {OF}")
    a(f"buffer_store_dwordx4 {vr(PR,4)}, v{VL}, {ws}, s56 offen{SC}")
    a(f"s_branch {N}_p2done")
    a(f"{N}_slow:")
    a("s_mov_b32 s51, 1")
    a("s_mov_b32 exec_lo, 0")
    a(f"v_mov_b32 v{QR+6}, 0")
    a("s_mov_b32 exec_lo, -1")
    a(f"v_mov_b32 v{T0}, 0xff7fffff")
    a("s_lshl_b32 s56, s44, 5")
    a("s_add_u32 s56, s56, s45")
    a("s_lshl_b32 s56, s56, 12")
    a(f"s_add_u32 s56, s56, {KV}")
    a("s_mov_b32 s57, 0")
    a(f"{N}_sloop:")
    a(f"buffer_load_dwordx4 {vr(KF[0],4)}, v{VL}, {ws}, s56 offen{SC}")
    a(f"buffer_load_dwordx4 {vr(KF[0]+4,4)}, v{VL}, {ws}, s56 offen offset:1024{SC}")
    a("s_waitcnt vmcnt(0)")
    a(smf1(SA, 0)); a(smf2(SA, 0))
    a("s_nop 15")
    for i in range(0, 16, 2):
        a(f"v_max3_f32 v{T0}, v{T0}, v{SA+i}, v{SA+i+1}")
    a("s_add_u32 s56, s56, 4096")
    a("s_add_u32 s57, s57, 1")
    a("s_cmp_lt_u32 s57, 32")
    a(f"s_cbranch_scc1 {N}_sloop")
    set_m(a, QR, MR, T0, T1)
    a(f"v_and_b32 v{VC}, 0xffff, v{VC}")
    a("s_barrier")
    a(f"s_branch {N}_restart")
    a(f"{N}_p2done:")

def set_m(a, QR, MR, T0, T1):
    a(f"v_mov_b32 v{T1}, v{T0}")
    a("s_nop 1")
    a(f"v_permlane32_swap_b32 v{T0}, v{T1}")
    a("s_nop 0")
    a(f"v_max_f32 v{T0}, v{T0}, v{T1}")
    a(f"v_cvt_pk_bf16_f32 v{T1}, -v{T0}, 0")
    a(f"v_lshlrev_b32 v{MR}, 16, v{T1}")
    a(f"v_xor_b32 v{MR}, 0x80000000, v{MR}")
    a("s_mov_b32 exec_lo, 0")
    a(f"v_mov_b32 v{QR+6}, v{T1}")
    a("s_mov_b32 exec_lo, -1")

A_, B_ = 4, 20
C1, C3, TW, WW = 36, 60, 84, 100
WI = 108
TW2R = 20
AD = 116
TR, TI = 124, 132
PK = 140
T = 148
SFT = 28
ft = "s[28:31]"
def fft_ld(a, dst, n, sreg, srd_, flag=""):
    for i in range(n):
        if i and i % 4 == 0:
            a(f"s_add_u32 s{sreg}, s{sreg}, 4096")
        a(f"buffer_load_dwordx4 {vr(dst+4*i,4)}, v2, {srd_}, s{sreg} offen offset:{(i%4)*1024}{flag}")
def fft_col(a, d):
    a(f"s_and_b32 s{d}, s2, 7")
    a(f"s_mul_i32 s{d}, s{d}, 28")
    a("s_lshr_b32 s41, s2, 3")
    a(f"s_add_u32 s{d}, s{d}, s41")
    a("s_cmp_lt_u32 s41, 28")
    a(f"s_cselect_b32 s{d}, s{d}, 255")
    a("s_cmp_eq_u32 s2, 224")
    a(f"s_cselect_b32 s{d}, 224, s{d}")
def fft_consts(a, N):
    offs, blob = tables.build()
    a("s_getpc_b64 s[28:29]")
    a("s_add_u32 s28, s28, FTAB@rel32@lo+4")
    a("s_addc_u32 s29, s29, FTAB@rel32@hi+12")
    a("s_and_b32 s29, s29, 0xffff")
    a(f"s_mov_b32 s30, {blob.size*2}")
    a(f"s_mov_b32 s31, 0x20000")
    a("s_sub_u32 s41, s22, 8")
    a("v_lshlrev_b32 v2, 4, v1")
    a("s_mul_i32 s45, s41, 6144")
    a(f"s_add_u32 s46, s45, {offs['C1']}")
    fft_ld(a, C1, 6, 46, ft)
    a("s_lshl_b32 s47, s41, 12")
    a(f"s_add_u32 s46, s47, {offs['TW1']}")
    fft_ld(a, TW, 4, 46, ft)
    a(f"s_mov_b32 s46, {offs['C3']}")
    fft_ld(a, C3, 6, 46, ft)

def p2_fft(a, N, ST):
    a("s_cmp_gt_u32 s40, 224")
    a(f"s_cbranch_scc1 {N}_nofft")
    a("s_setprio 2")
    a("s_sub_u32 s41, s22, 8")
    a("v_lshlrev_b32 v2, 4, v1")
    a("v_lshrrev_b32 v3, 4, v1")
    a("v_lshlrev_b32 v3, 9, v3")
    a(f"v_and_b32 v{T}, 15, v1")
    a(f"v_lshl_add_u32 v3, v{T}, 4, v3")
    a("s_lshl_b32 s42, s40, 12")
    a(f"s_add_u32 s42, s42, {X1}")
    a("s_sub_u32 s43, 448, s40")
    a("s_cmp_eq_u32 s40, 0")
    a("s_cselect_b32 s43, 0, s43")
    a("s_lshl_b32 s44, s43, 12")
    a(f"s_add_u32 s44, s44, {X1}")
    for t in range(2):
        for ks in range(2):
            a(f"buffer_load_dwordx4 {vr(A_+4*(2*t+ks),4)}, v3, {ws}, s42 offen offset:{ks*2048+t*256}{SC}")
            a(f"buffer_load_dwordx4 {vr(B_+4*(2*t+ks),4)}, v3, {ws}, s44 offen offset:{ks*2048+t*256}{SC}")
    a("s_lshl_b32 s46, s40, 13")
    a("s_lshl_b32 s48, s41, 11")
    a("s_add_u32 s46, s46, s48")
    a(f"s_add_u32 s46, s46, {WT}")
    fft_ld(a, WW, 2, 46, ws, SC)
    a("s_barrier")
    a("s_waitcnt vmcnt(2)")
    P = lambda ks: vr(C1+4*ks, 4); Q = lambda ks: vr(C1+8+4*ks, 4); NQ = lambda ks: vr(C1+16+4*ks, 4)
    da = lambda t, ks: vr(A_+4*(2*t+ks), 4); db = lambda t, ks: vr(B_+4*(2*t+ks), 4)
    tr = lambda t: vr(TR+4*t, 4); ti = lambda t: vr(TI+4*t, 4)
    for step in range(4):
        ks = step % 2
        for t in range(2):
            cr = "0" if step == 0 else tr(t); ci = "0" if step == 0 else ti(t)
            if step < 2:
                a(f"{MF16} {tr(t)}, {da(t,ks)}, {P(ks)}, {cr}")
                a(f"{MF16} {ti(t)}, {da(t,ks)}, {NQ(ks)}, {ci}")
            else:
                a(f"{MF16} {tr(t)}, {db(t,ks)}, {Q(ks)}, {cr}")
                a(f"{MF16} {ti(t)}, {db(t,ks)}, {P(ks)}, {ci}")
    offs, _ = tables.build()
    a("v_lshlrev_b32 v2, 4, v1")
    a("s_lshl_b32 s47, s41, 12")
    a(f"s_add_u32 s46, s47, {offs['TW2']}")
    a("s_nop 4")
    fft_ld(a, TW2R, 4, 46, ft)
    def cmul(xr, xi, c, s, outr, outi):
        for p in range(0, 4, 2):
            a(f"v_pk_mul_f32 {vr(T+p,2)}, {vr(xi+p,2)}, {vr(s+p,2)}")
            a(f"v_pk_mul_f32 {vr(T+4+p,2)}, {vr(xi+p,2)}, {vr(c+p,2)}")
        for p in range(0, 4, 2):
            a(f"v_pk_fma_f32 {vr(outr+p,2)}, {vr(xr+p,2)}, {vr(c+p,2)}, {vr(T+p,2)} neg_lo:[0,0,1] neg_hi:[0,0,1]")
            a(f"v_pk_fma_f32 {vr(outi+p,2)}, {vr(xr+p,2)}, {vr(s+p,2)}, {vr(T+4+p,2)}")
    O1 = T + 8
    def packRI(t):
        a(f"v_cvt_pk_bf16_f32 v{PK+2*t}, v{O1}, v{O1+1}")
        a(f"v_cvt_pk_bf16_f32 v{PK+2*t+1}, v{O1+2}, v{O1+3}")
        a(f"v_cvt_pk_bf16_f32 v{PK+4+2*t}, v{O1+4}, v{O1+5}")
        a(f"v_cvt_pk_bf16_f32 v{PK+4+2*t+1}, v{O1+6}, v{O1+7}")
    for t in range(2):
        cmul(TR+4*t, TI+4*t, TW+8*t, TW+8*t+4, O1, O1+4)
        packRI(t)
    a("s_nop 1")
    Fr = lambda u: vr(C3+4*u, 4); Fi = lambda u: vr(C3+8+4*u, 4); NFi = lambda u: vr(C3+16+4*u, 4)
    BR, BI = vr(PK, 4), vr(PK+4, 4)
    for u in range(2):
        a(f"{MF16} {tr(u)}, {Fr(u)}, {BR}, 0")
        a(f"{MF16} {ti(u)}, {Fi(u)}, {BR}, 0")
    for u in range(2):
        a(f"{MF16} {tr(u)}, {NFi(u)}, {BI}, {tr(u)}")
        a(f"{MF16} {ti(u)}, {Fr(u)}, {BI}, {ti(u)}")
    ST.n = 5; ST.stamp()
    a("s_barrier")
    a("s_waitcnt vmcnt(4)")
    for u in range(2):
        for i in range(4):
            a(f"v_lshlrev_b32 v{A_+8*u+i}, 16, v{WW+4*u+i}")
            a(f"v_and_b32 v{A_+8*u+4+i}, 0xffff0000, v{WW+4*u+i}")
    for u in range(2):
        cmul(TR+4*u, TI+4*u, A_+8*u, A_+8*u+4, O1, O1+4)
        packRI(u)
    a("s_nop 1")
    AR, AI = vr(PK, 4), vr(PK+4, 4)
    for t in range(2):
        a(f"{MF16} {tr(t)}, {AR}, {Fr(t)}, 0")
        a(f"{MF16} {ti(t)}, {AR}, {NFi(t)}, 0")
    for t in range(2):
        a(f"{MF16} {tr(t)}, {AI}, {Fi(t)}, {tr(t)}")
        a(f"{MF16} {ti(t)}, {AI}, {Fr(t)}, {ti(t)}")
    a(f"v_and_b32 v{AD}, 15, v1")
    a(f"v_mul_u32_u24 v{AD}, 144, v{AD}")
    a(f"v_lshrrev_b32 v{AD+1}, 4, v1")
    a(f"v_lshl_add_u32 v{AD+2}, v{AD+1}, 3, v{AD}")
    a("s_lshl_b32 s46, s41, 5")
    a(f"s_add_u32 s46, s46, {XB}")
    a(f"v_add_u32 v{AD+2}, s46, v{AD+2}")
    a(f"v_lshl_add_u32 v{AD+3}, v{AD+1}, 4, v{AD}")
    a(f"v_add_u32 v{AD+3}, {XB}, v{AD+3}")
    a("s_waitcnt vmcnt(0)")
    for t in range(2):
        cmul(TR+4*t, TI+4*t, TW2R+8*t, TW2R+8*t+4, O1, O1+4)
        packRI(t)
        a(f"ds_write_b64 v{AD+2}, {vr(PK+2*t,2)} offset:{t*16*144}")
        a(f"ds_write_b64 v{AD+2}, {vr(PK+4+2*t,2)} offset:{4608+t*16*144}")
    a("s_waitcnt lgkmcnt(0)")
    a("s_barrier")
    DR = 60
    for part in range(2):
        for t in range(2):
            for ks in range(2):
                a(f"ds_read_b128 {vr(DR+4*(part*4+t*2+ks),4)}, v{AD+3} offset:{part*4608+t*16*144+ks*64}")
    A1, A2, NA2 = P, Q, NQ
    br = lambda t, ks: vr(DR+4*(t*2+ks), 4); bi = lambda t, ks: vr(DR+4*(4+t*2+ks), 4)
    a("s_waitcnt lgkmcnt(0)")
    for step in range(4):
        ks = step % 2
        for t in range(2):
            cm = "0" if step == 0 else tr(t); cp = "0" if step == 0 else ti(t)
            if step < 2:
                a(f"{MF16} {tr(t)}, {A1(ks)}, {br(t,ks)}, {cm}")
                a(f"{MF16} {ti(t)}, {A2(ks)}, {br(t,ks)}, {cp}")
            else:
                a(f"{MF16} {tr(t)}, {NA2(ks)}, {bi(t,ks)}, {cm}")
                a(f"{MF16} {ti(t)}, {A1(ks)}, {bi(t,ks)}, {cp}")
    a("s_nop 7")
    a("s_cmp_eq_u32 s40, 0")
    a(f"s_cbranch_scc1 {N}_avg")
    a("s_cmp_eq_u32 s40, 224")
    a(f"s_cbranch_scc0 {N}_noavg")
    a(f"{N}_avg:")
    for i in range(8):
        a(f"v_add_f32 v{TR+i}, v{TR+i}, v{TI+i}")
        a(f"v_mul_f32 v{TR+i}, 0.5, v{TR+i}")
        a(f"v_mov_b32 v{TI+i}, v{TR+i}")
    a(f"{N}_noavg:")
    for t in range(2):
        a(f"v_cvt_pk_bf16_f32 v{PK+2*t}, v{TR+4*t}, v{TR+4*t+1}")
        a(f"v_cvt_pk_bf16_f32 v{PK+2*t+1}, v{TR+4*t+2}, v{TR+4*t+3}")
        a(f"v_cvt_pk_bf16_f32 v{PK+4+2*t}, v{TI+4*t}, v{TI+4*t+1}")
        a(f"v_cvt_pk_bf16_f32 v{PK+4+2*t+1}, v{TI+4*t+2}, v{TI+4*t+3}")
    a("v_lshlrev_b32 v2, 3, v1")
    a("s_lshl_b32 s46, s41, 10")
    a("s_lshl_b32 s47, s40, 12")
    a("s_add_u32 s47, s47, s46")
    a(f"s_add_u32 s47, s47, {UT}")
    a("s_lshl_b32 s48, s43, 12")
    a("s_add_u32 s48, s48, s46")
    a(f"s_add_u32 s48, s48, {UT}")
    for t in range(2):
        a(f"buffer_store_dwordx2 {vr(PK+2*t,2)}, v2, {ws}, s47 offen offset:{t*512}{SC}")
        a(f"buffer_store_dwordx2 {vr(PK+4+2*t,2)}, v2, {ws}, s48 offen offset:{t*512}{SC}")
    a("s_setprio 0")
    ST.n = 6; ST.stamp()
    a("s_barrier")
    a("s_waitcnt vmcnt(0)")
    a("s_barrier")
    a("s_cmp_lg_u32 s22, 8")
    a(f"s_cbranch_scc1 {N}_fftd")
    a("s_lshl_b32 s50, s40, 2")
    a(f"s_add_u32 s50, s50, {FU}")
    signal(a, 50)
    a(f"{N}_fftd:")
    for i in range(4): a("s_barrier")
    a(f"s_branch {N}_fftmb")
    a(f"{N}_nofft:")
    for i in range(9): a("s_barrier")
    a(f"{N}_fftmb:")
    a("s_barrier")
    a(f"v_mov_b32 v2, {FLAG}")
    a("ds_read_b32 v2, v2")
    a("s_waitcnt lgkmcnt(0)")
    a("v_readfirstlane_b32 s56, v2")
    a("s_nop 3")
    a("s_cmp_eq_u32 s56, 0")
    a(f"s_cbranch_scc1 {N}_fftok")
    for i in range(11): a("s_barrier")
    a(f"{N}_fftok:")

WREG = 0
TREG = 131072
def p3_decode(a):
    a("s_and_b32 s60, s2, 7")
    a("s_lshr_b32 s45, s2, 3")
    a("s_and_b32 s48, s60, 1")
    a("s_lshr_b32 s46, s60, 1")
    a("s_lshl_b32 s46, s46, 3")
    a("s_and_b32 s47, s45, 7")
    a("s_add_u32 s46, s46, s47")
    a("s_lshr_b32 s49, s45, 3")

def p3_loader(a, N, ST):
    SW = 28
    VT, VW = 10, 12
    a("s_sub_u32 s51, s22, 8")
    a("s_getpc_b64 s[52:53]")
    a("s_add_u32 s52, s52, HTAB@rel32@lo+4")
    a("s_addc_u32 s53, s53, HTAB@rel32@hi+12")
    a("s_cmp_eq_u32 s48, 1")
    a("s_cselect_b32 s54, s52, s8")
    a("s_cselect_b32 s55, s53, s9")
    srd(a, SW, 54, 55, 448*896)
    a("v_lshrrev_b32 v2, 4, v1")
    a("v_mul_u32_u24 v3, 896, v2")
    a("v_lshlrev_b32 v4, 2, v2")
    a("v_and_b32 v5, 15, v1")
    a("v_xor_b32 v4, v4, v5")
    a(f"v_lshl_add_u32 v{VW}, v4, 4, v3")
    a("s_mul_i32 s57, s49, 224")
    a(f"v_add_u32 v{VW}, s57, v{VW}")
    a("s_cmp_eq_u32 s48, 1")
    a(f"s_cbranch_scc1 {N}_wrB")
    a("s_lshr_b32 s61, s51, 1")
    a("s_mul_i32 s61, s61, 28")
    a("s_and_b32 s62, s51, 1")
    a("s_lshl_b32 s63, s62, 4")
    a("s_add_u32 s61, s61, s63")
    a("s_add_u32 s56, s61, 0")
    a("s_add_u32 s57, s61, 4")
    a("s_add_u32 s58, s61, 8")
    a("s_add_u32 s59, s61, 12")
    a("s_cmp_eq_u32 s62, 1")
    a("s_cselect_b32 s59, s58, s59")
    a("s_mov_b32 s60, 56")
    a("s_mov_b32 s64, 8")
    a(f"s_branch {N}_wrd")
    a(f"{N}_wrB:")
    a("s_lshl_b32 s61, s51, 4")
    for ii in range(4): a(f"s_add_u32 s{56+ii}, s61, {4*ii}")
    a("s_mov_b32 s60, 64")
    a("s_mov_b32 s64, 7")
    a(f"{N}_wrd:")
    for ii in range(4): a(f"s_mulk_i32 s{56+ii}, 896")
    a("s_mulk_i32 s60, 896")
    a("s_lshl_b32 s61, s51, 12")
    for c in range(8):
        for ii in range(4):
            a(f"s_add_u32 m0, s61, {WREG + c*16384 + ii*1024}")
            a(f"s_mul_i32 s62, s60, {c}")
            a(f"s_add_u32 s62, s62, s{56+ii}")
            a(f"buffer_load_dwordx4 v{VW}, s[{SW}:{SW+3}], s62 offen lds")
    a("s_cmp_eq_u32 s48, 1")
    a(f"s_cbranch_scc1 {N}_tB")
    a("s_lshl_b32 s56, s46, 1")
    a("s_lshr_b32 s57, s51, 1")
    a("s_add_u32 s56, s56, s57")
    a("s_lshl_b32 s56, s56, 4")
    a("s_and_b32 s57, s51, 1")
    a("s_add_u32 s56, s56, s57")
    a("s_lshl_b32 s56, s56, 11")
    a(f"s_add_u32 s56, s56, {OF}")
    a(f"v_lshlrev_b32 v{VT}, 4, v1")
    a("s_movk_i32 s57, 4096")
    a("s_movk_i32 s58, 1024")
    a(f"s_branch {N}_tD")
    a(f"{N}_tB:")
    a("v_lshrrev_b32 v2, 3, v1")
    a("v_bfe_u32 v3, v1, 4, 1")
    a("v_lshlrev_b32 v3, 2, v3")
    a("v_and_b32 v4, 7, v1")
    a("v_xor_b32 v3, v3, v4")
    a("v_lshlrev_b32 v3, 4, v3")
    a(f"v_lshl_add_u32 v{VT}, v2, 12, v3")
    a("s_lshl_b32 s56, s51, 16")
    a("s_lshl_b32 s57, s46, 7")
    a("s_add_u32 s56, s56, s57")
    a(f"s_add_u32 s56, s56, {UT}")
    a(f"s_mov_b32 s57, {64*4096}")
    a(f"s_mov_b32 s58, {8*4096}")
    a(f"{N}_tD:")
    a("s_lshl_b32 s59, s51, 11")
    a("s_barrier")
    def tok(c):
        slot = c % 4
        a(f"s_add_u32 m0, s59, {TREG + slot*8192}")
        a("s_add_u32 s62, s56, s58")
        a(f"buffer_load_dwordx4 v{VT}, {ws}, s56 offen{SC} lds")
        a(f"s_add_u32 m0, s59, {TREG + slot*8192 + 1024}")
        a("s_nop 0")
        a(f"buffer_load_dwordx4 v{VT}, {ws}, s62 offen{SC} lds")
        a("s_add_u32 s56, s56, s57")
    for c in range(4): tok(c)
    issued = 4
    for c in range(8):
        a(f"s_waitcnt vmcnt({2 * (issued - (c + 1))})")
        a("s_barrier")
        if c >= 1 and issued < 8:
            tok(issued); issued += 1
    fin(a, ST)

def p3_compute(a, N, ST):
    SO = 32
    ACC3 = 32
    TF = [48, 52]; WF3 = [56, 60]
    WA3, TA = 4, 5
    srd(a, SO, 16, 17, 2048*1792)
    a("v_lshrrev_b32 v2, 5, v1")
    a("v_bfe_u32 v3, v1, 2, 2")
    a("v_lshl_add_u32 v2, v2, 2, v3")
    a("v_lshlrev_b32 v16, 8, v2")
    a("v_bfe_u32 v15, v1, 4, 1")
    a("v_lshlrev_b32 v15, 5, v15")
    a("v_and_b32 v17, 3, v1")
    a("v_lshl_add_u32 v15, v17, 3, v15")
    a("s_lshr_b32 s65, s22, 1")
    a("s_mul_i32 s65, s65, 56")
    a("v_add_u32 v17, s65, v15")
    a("v_lshrrev_b32 v18, 4, v17")
    a("v_lshlrev_b32 v19, 2, v3")
    a("v_xor_b32 v18, v18, v19")
    a("v_and_b32 v17, 15, v17")
    a("v_lshl_add_u32 v17, v18, 4, v17")
    a(f"v_add_u32 v{WA3}, v16, v17")
    a("s_and_b32 s65, s22, 1")
    a("s_cmp_eq_u32 s48, 1")
    a(f"s_cbranch_scc1 {N}_raB")
    a("s_lshl_b32 s65, s65, 12")
    a(f"v_lshlrev_b32 v{TA}, 4, v1")
    a(f"v_add_u32 v{TA}, s65, v{TA}")
    a(f"s_branch {N}_radone")
    a(f"{N}_raB:")
    a("s_lshl_b32 s65, s65, 6")
    a("v_add_u32 v17, s65, v15")
    a("v_lshrrev_b32 v18, 4, v17")
    a("v_bfe_u32 v19, v2, 1, 1")
    a("v_lshlrev_b32 v19, 2, v19")
    a("v_xor_b32 v18, v18, v19")
    a("v_and_b32 v17, 15, v17")
    a("v_lshl_add_u32 v17, v18, 4, v17")
    a(f"v_lshl_add_u32 v{TA}, v2, 7, v17")
    a(f"{N}_radone:")
    a(f"v_add_u32 v{TA}, {TREG}, v{TA}")
    for r in range(ACC3, ACC3+16):
        a(f"v_mov_b32 v{r}, 0")
    def main(partB):
        nch = 7 if partB else 8
        nst = nch * 4
        base = [0]
        def reads(n):
            c, kk = n // 4, n % 4
            want = (c // 4) * 65536
            if want != base[0]:
                a(f"v_add_u32 v{WA3}, {want - base[0]:#x}, v{WA3}")
                base[0] = want
            woff = c * 16384 - want
            toff = (c % 4) * 8192
            b = n % 2
            if partB:
                a(f"ds_read_b64_tr_b16 {vr(TF[b],2)}, v{TA} offset:{toff + kk*16*128}")
                a(f"ds_read_b64_tr_b16 {vr(TF[b]+2,2)}, v{TA} offset:{toff + kk*16*128 + 8*128}")
            else:
                a(f"ds_read_b128 {vr(TF[b],4)}, v{TA} offset:{toff + kk*1024}")
            a(f"ds_read_b64_tr_b16 {vr(WF3[b],2)}, v{WA3} offset:{woff + kk*16*256}")
            a(f"ds_read_b64_tr_b16 {vr(WF3[b]+2,2)}, v{WA3} offset:{woff + kk*16*256 + 8*256}")
        nr = 4 if partB else 3
        a("s_barrier")
        reads(0)
        for n in range(nst):
            b = n % 2
            if n + 1 < nst:
                if (n + 1) % 4 == 0:
                    a(f"s_waitcnt lgkmcnt(0)")
                    a("s_barrier")
                    reads(n + 1)
                else:
                    reads(n + 1)
                    a(f"s_waitcnt lgkmcnt({nr})")
            else:
                a("s_waitcnt lgkmcnt(0)")
            d = vr(ACC3, 16)
            a(f"{MF32} {d}, {vr(WF3[b],4)}, {vr(TF[b],4)}, {d}")
        if partB: a("s_barrier")
        a("s_nop 15")
    a("s_cmp_eq_u32 s48, 1")
    a(f"s_cbranch_scc1 {N}_mainB")
    main(False)
    a(f"s_branch {N}_epi")
    a(f"{N}_mainB:")
    main(True)
    a(f"{N}_epi:")
    ST.n = 9; ST.stamp()
    a("s_cmp_eq_u32 s48, 1")
    a(f"s_mov_b32 s65, {f32bits(2.0/(2048*448)):#x}")
    a("s_cselect_b32 s65, s65, 1.0")
    for i in range(16):
        a(f"v_mul_f32 v{ACC3+i}, s65, v{ACC3+i}")
    for i in range(8):
        a(f"v_cvt_pk_bf16_f32 v{48+i}, v{ACC3+2*i}, v{ACC3+2*i+1}")
    a("s_barrier")
    a("v_and_b32 v2, 31, v1")
    a("s_and_b32 s65, s22, 1")
    a("s_lshl_b32 s65, s65, 5")
    a("v_add_u32 v2, s65, v2")
    a("v_mul_u32_u24 v2, 240, v2")
    a("v_lshrrev_b32 v3, 5, v1")
    a("v_lshl_add_u32 v2, v3, 3, v2")
    a("s_lshr_b32 s65, s22, 1")
    a("s_mul_i32 s65, s65, 56")
    a("v_add_u32 v2, s65, v2")
    for jp in range(3):
        a(f"ds_write_b64 v2, {vr(48+2*jp,2)} offset:{jp*16}")
    a("s_mov_b32 exec_hi, 0")
    a(f"ds_write_b64 v2, {vr(48+6,2)} offset:48")
    a("s_mov_b32 exec_hi, -1")
    a("s_waitcnt lgkmcnt(0)")
    a("s_barrier")
    a("s_mul_i32 s65, s48, 896")
    a("s_mul_i32 s66, s49, 224")
    a("s_add_u32 s65, s65, s66")
    def rb(it):
        a("s_lshl_b32 s66, s46, 6")
        a(f"v_add_u32 v4, {512*it}, v0")
        a("v_mul_u32_u24 v5, 4682, v4")
        a("v_lshrrev_b32 v5, 16, v5")
        a("v_mul_u32_u24 v6, 14, v5")
        a("v_sub_u32 v6, v4, v6")
        a("v_mul_u32_u24 v7, 240, v5")
        a("v_lshl_add_u32 v7, v6, 4, v7")
        a(f"ds_read_b128 {vr(32+4*it,4)}, v7")
        a("v_add_u32 v5, s66, v5")
        a("s_cmp_eq_u32 s48, 0")
        a(f"s_cbranch_scc1 {N}_tk{it}")
        a("v_and_b32 v8, 3, v5")
        a("v_bfe_u32 v9, v5, 6, 2")
        a("v_lshl_add_u32 v8, v9, 2, v8")
        a("v_lshrrev_b32 v9, 9, v5")
        a("v_lshl_add_u32 v8, v9, 4, v8")
        a("v_lshlrev_b32 v8, 5, v8")
        a("v_bfe_u32 v9, v5, 8, 1")
        a("v_lshl_add_u32 v8, v9, 4, v8")
        a("v_bfe_u32 v9, v5, 2, 4")
        a("v_add_u32 v5, v8, v9")
        a(f"{N}_tk{it}:")
        a("v_mul_u32_u24 v5, 1792, v5")
        a(f"v_lshl_add_u32 v{20+it}, v6, 4, v5")
    rb(0)
    a("s_waitcnt lgkmcnt(0)")
    a(f"buffer_store_dwordx4 {vr(32,4)}, v20, s[{SO}:{SO+3}], s65 offen")
    a("v_cmp_gt_u32 vcc, 384, v0")
    a("s_and_saveexec_b64 s[66:67], vcc")
    a(f"s_cbranch_execz {N}_fin")
    rb(1)
    a("s_waitcnt lgkmcnt(0)")
    a(f"buffer_store_dwordx4 {vr(36,4)}, v21, s[{SO}:{SO+3}], s65 offen")
    a(f"{N}_fin:")
    fin(a, ST)
```

```python
from asmlib import *
import struct, math, os
import tables
QF, KV, X1, WT, OF, UT, FL = 0x000000, 0x200000, 0x600000, 0x800000, 0xA00000, 0xC00000, 0xE00000
WS_SIZE = 0xE10000
F1, FW, FO, FU = FL, FL + 0x1000, FL + 0x2000, FL + 0x3000
OOB = 0xF00000 + 0x100000
def f32bits(x): return struct.unpack("<I", struct.pack("<f", x))[0]
QSCALE = f32bits((28 ** -0.5) * math.log2(math.e))
BLOCK = 768
LDS = 163840
MF32 = "v_mfma_f32_32x32x16_bf16"
MF16 = "v_mfma_f32_16x16x32_bf16"
SWS = 24
ws = "s[24:27]"
SC = " sc1"
SPIN = int(os.environ.get('SPIN', '400000'))
E = os.environ.get

def srd(a, d, lo, hi, size):
    a(f"s_mov_b32 s{d}, s{lo}")
    a(f"s_and_b32 s{d+1}, s{hi}, 0xffff")
    a(f"s_mov_b32 s{d+2}, {size}")
    a(f"s_mov_b32 s{d+3}, 0x20000")
def pack(a, src, dst, n=8):
    for i in range(n):
        a(f"v_cvt_pk_bf16_f32 v{dst+i}, v{src+2*i}, v{src+2*i+1}")

_uid = [0]
def uid():
    _uid[0] += 1
    return _uid[0]

def get_tag(a):
    n = uid()
    srd(a, 72, 18, 19, 256)
    a("v_mov_b32 v2, 0")
    a("s_mov_b32 s70, 0")
    a(f"tagL{n}:")
    a("buffer_load_dword v3, v2, s[72:75], 0 offen sc1")
    a("s_waitcnt vmcnt(0)")
    a("v_readfirstlane_b32 s23, v3")
    a("s_nop 3")
    a("s_cmp_lg_u32 s23, 0")
    a(f"s_cbranch_scc1 tagD{n}")
    a("s_add_u32 s70, s70, 1")
    a(f"s_cmp_lt_u32 s70, {SPIN}")
    a("s_sleep 1")
    a(f"s_cbranch_scc1 tagL{n}")
    a(f"tagD{n}:")

def poll(a, voffs, masks=None):
    n = uid()
    a("s_mov_b32 s70, 0")
    a("s_mov_b64 s[68:69], exec")
    a(f"plL{n}:")
    for i, vo in enumerate(voffs):
        if masks and masks[i] is not None: a(f"s_mov_b64 exec, {masks[i]}")
        else: a("s_mov_b64 exec, -1")
        a(f"buffer_load_dword v{160+i}, v{vo}, {ws}, 0 offen sc1")
    a("s_waitcnt vmcnt(0)")
    a("s_mov_b64 s[66:67], 0")
    for i, vo in enumerate(voffs):
        if masks and masks[i] is not None: a(f"s_mov_b64 exec, {masks[i]}")
        else: a("s_mov_b64 exec, -1")
        a(f"v_cmp_ne_u32 vcc, s23, v{160+i}")
        a("s_nop 1")
        a("s_or_b64 s[66:67], s[66:67], vcc")
    a("s_mov_b64 exec, s[68:69]")
    a("s_cmp_eq_u64 s[66:67], 0")
    a(f"s_cbranch_scc1 plD{n}")
    a("s_add_u32 s70, s70, 1")
    a(f"s_cmp_lt_u32 s70, {SPIN}")
    a("s_sleep 2")
    a(f"s_cbranch_scc1 plL{n}")
    a(f"plD{n}:")

def signal(a, off_sgpr):
    a("s_mov_b64 s[68:69], exec")
    a("s_mov_b64 exec, 1")
    a("v_mov_b32 v2, 0")
    a("v_mov_b32 v3, s23")
    a(f"buffer_store_dword v3, v2, {ws}, s{off_sgpr} offen sc1")
    a("s_mov_b64 exec, s[68:69]")

TAGL = 163840 - 16
def signal2(a, off_sgpr):
    a("s_mov_b64 s[62:63], exec")
    a("s_mov_b64 exec, 1")
    a("v_mov_b32 v2, 0")
    a("v_mov_b32 v3, s23")
    a(f"buffer_store_dword v3, v2, {ws}, s{off_sgpr} offen sc1")
    a("s_mov_b64 exec, s[62:63]")

DBGT = os.environ.get("DBGT")
def dbgt(a, idx, mn=False):
    if not DBGT: return
    n = uid()
    a("s_cmp_lg_u32 s22, 0")
    a(f"s_cbranch_scc1 dbt{n}")
    a("s_memrealtime s[64:65]")
    srd(a, 72, 18, 19, 256)
    a("s_waitcnt lgkmcnt(0)")
    a("s_sub_u32 s64, s64, s23")
    a("s_mov_b64 s[66:67], exec")
    a("s_mov_b64 exec, 1")
    a(f"v_mov_b32 v160, {idx*4}")
    a("v_mov_b32 v161, s64")
    a(f"buffer_atomic_umax v161, v160, s[72:75], 0 offen sc1")
    a("s_mov_b64 exec, s[66:67]")
    a(f"dbt{n}:")

def gen(name):
    a = Asm()
    N = "F"
    ST = Stamps(a, 0, 22)
    a("s_cmp_ge_u32 s2, 256")
    a(f"s_cbranch_scc1 {N}_end")
    if STAMP:
        for i in range(76, 100): a(f"s_mov_b32 s{i}, 0")
    ST.stamp(); ST.stamp(True)
    a("s_load_dwordx16 s[4:19], s[0:1], 0")
    a("s_load_dwordx2 s[20:21], s[0:1], 64")
    a("v_and_b32 v1, 63, v0")
    a("v_lshrrev_b32 v2, 6, v0")
    a("s_nop 0")
    a("v_readfirstlane_b32 s22, v2")
    a("s_and_b32 s44, s2, 7")
    a("s_lshr_b32 s45, s2, 3")
    a("s_and_b32 s48, s44, 3")
    a("s_lshr_b32 s46, s44, 2")
    a("s_lshl_b32 s46, s46, 3")
    a("s_and_b32 s47, s45, 7")
    a("s_add_u32 s46, s46, s47")
    a("s_lshr_b32 s49, s45, 3")
    a("s_cmp_ge_u32 s22, 8")
    a(f"s_cbranch_scc1 {N}_aux")
    p1_addr(a)
    a("s_waitcnt lgkmcnt(0)")
    ST.stamp()
    srd(a, SWS, 20, 21, WS_SIZE)
    a("s_cmp_lg_u32 s22, 0")
    a(f"s_cbranch_scc1 {N}_notag")
    a("s_cmp_lg_u32 s2, 0")
    a(f"s_cbranch_scc1 {N}_gettag")
    a("s_memrealtime s[70:71]")
    srd(a, 72, 18, 19, 256)
    a("v_mov_b32 v2, 0")
    a("buffer_load_dword v3, v2, s[72:75], 0 offen sc1")
    a("s_waitcnt vmcnt(0) lgkmcnt(0)")
    a("v_readfirstlane_b32 s23, v3")
    a("s_nop 3")
    a("s_cmp_lg_u32 s23, 0")
    a(f"s_cbranch_scc1 {N}_pubtag")
    a("s_or_b32 s23, s70, 1")
    a("s_mov_b64 exec, 1")
    a("v_mov_b32 v3, s23")
    a("buffer_store_dword v3, v2, s[72:75], 0 offen sc1")
    a("s_mov_b64 exec, -1")
    a(f"s_branch {N}_pubtag")
    a(f"{N}_gettag:")
    get_tag(a)
    a(f"{N}_pubtag:")
    a(f"v_mov_b32 v2, {TAGL}")
    a("v_mov_b32 v3, s23")
    a("ds_write_b32 v2, v3")
    a("v_mov_b32 v3, 0")
    a("ds_write_b32 v2, v3 offset:4")
    a("ds_write_b32 v2, v3 offset:8")
    a("ds_write_b32 v2, v3 offset:12")
    a("s_waitcnt lgkmcnt(0)")
    a(f"{N}_notag:")
    dbgt(a, 1)
    p1_compute(a, N, ST)
    a(f"{N}_p1done:")
    a("s_waitcnt vmcnt(0)")
    a(f"v_mov_b32 v2, {TAGL}")
    a("v_mov_b32 v3, 1")
    a("s_mov_b64 exec, 1")
    a("ds_add_rtn_u32 v4, v2, v3 offset:4")
    a("ds_read_b32 v5, v2")
    a("s_mov_b64 exec, -1")
    a("s_waitcnt lgkmcnt(0)")
    a("v_readfirstlane_b32 s50, v4")
    a("v_readfirstlane_b32 s23, v5")
    ST.n = 4; ST.stamp()
    a("s_nop 3")
    dbgt(a, 3)
    a("s_cmp_lg_u32 s50, 7")
    a(f"s_cbranch_scc1 {N}_nosig1")
    a("s_lshl_b32 s50, s48, 2")
    a("s_add_u32 s50, s50, s49")
    a("s_lshl_b32 s50, s50, 7")
    a("s_lshl_b32 s51, s46, 2")
    a("s_add_u32 s50, s50, s51")
    a(f"s_add_u32 s50, s50, {F1}")
    signal(a, 50)
    a(f"{N}_nosig1:")
    a("s_cmp_lg_u32 s22, 0")
    a(f"s_cbranch_scc1 {N}_p2s")
    a("s_and_b32 s41, s2, 7")
    a("s_lshl_b32 s41, s41, 1")
    a("s_bfe_u32 s42, s2, 0x10003")
    a("s_add_u32 s41, s41, s42")
    a("s_lshr_b32 s42, s2, 4")
    a("s_lshr_b32 s43, s41, 2")
    a("v_and_b32 v4, 15, v1")
    a("v_lshlrev_b32 v4, 2, v4")
    a("v_lshrrev_b32 v5, 4, v1")
    a("v_add_u32 v5, 1, v5")
    a("v_cmp_eq_u32 vcc, 3, v5")
    a("s_lshl_b32 s50, s42, 2")
    a("v_mov_b32 v6, s50")
    a("v_cndmask_b32 v5, v5, 0, vcc")
    a("v_cndmask_b32 v4, v4, v6, vcc")
    a("v_lshlrev_b32 v5, 9, v5")
    a("s_lshl_b32 s50, s43, 7")
    a(f"s_add_u32 s50, s50, {F1}")
    a("v_add3_u32 v4, v4, v5, s50")
    a("s_mov_b32 s52, -1")
    a("s_mov_b32 s53, 1")
    poll(a, [4], ["s[52:53]"])
    a(f"{N}_p2s:")
    a("s_barrier")
    ST.stamp()
    dbgt(a, 4)
    p2_attn(a, N, ST)
    a("s_waitcnt vmcnt(0)")
    a("s_barrier")
    ST.n = 7; ST.stamp()
    dbgt(a, 6)
    p3_decode(a)
    a("s_cmp_lg_u32 s22, 0")
    a(f"s_cbranch_scc1 {N}_p3s")
    a("s_lshl_b32 s50, s42, 7")
    a("s_lshl_b32 s51, s41, 2")
    a("s_add_u32 s50, s50, s51")
    a(f"s_add_u32 s50, s50, {FO}")
    signal(a, 50)
    a("s_cmp_eq_u32 s48, 1")
    a(f"s_cbranch_scc1 {N}_pollU")
    a("s_lshr_b32 s50, s46, 1")
    a("s_lshl_b32 s50, s50, 7")
    a(f"s_add_u32 s50, s50, {FO}")
    a("v_lshlrev_b32 v4, 2, v1")
    a("v_add_u32 v4, s50, v4")
    a("s_mov_b32 s52, 0xffff")
    a("s_mov_b32 s53, 0")
    poll(a, [4], ["s[52:53]"])
    a(f"s_branch {N}_p3s")
    a(f"{N}_pollU:")
    a("v_lshlrev_b32 v4, 2, v1")
    a(f"v_add_u32 v4, {FU}, v4")
    for i in range(1, 4): a(f"v_add_u32 v{4+i}, {256*i}, v4")
    a("s_mov_b32 s52, -1")
    a("s_mov_b32 s53, 1")
    poll(a, [4, 5, 6, 7], [None, None, None, "s[52:53]"])
    a(f"{N}_p3s:")
    a("s_barrier")
    ST.stamp()
    dbgt(a, 7)
    p3_compute(a, N, ST)
    a(f"{N}_aux:")
    p1_loader(a, N, ST)
    ST.n = 3; ST.stamp()
    a("s_cmp_lg_u32 s22, 8")
    a(f"s_cbranch_scc1 {N}_ap2s")
    a("s_cmp_gt_u32 s40, 224")
    a(f"s_cbranch_scc1 {N}_ap2s")
    a("s_mul_i32 s50, s40, 586")
    a("s_lshr_b32 s50, s50, 16")
    a("s_sub_u32 s51, 448, s40")
    a("s_cmp_eq_u32 s40, 0")
    a("s_cselect_b32 s51, 0, s51")
    a("s_mul_i32 s51, s51, 586")
    a("s_lshr_b32 s51, s51, 16")
    a("v_and_b32 v150, 15, v1")
    a("v_lshlrev_b32 v150, 2, v150")
    a("v_cmp_lt_u32 vcc, 15, v1")
    a("v_mov_b32 v151, s50")
    a("v_mov_b32 v152, s51")
    a("v_cndmask_b32 v151, v151, v152, vcc")
    a("v_lshlrev_b32 v151, 7, v151")
    a("v_add_u32 v150, v150, v151")
    a(f"v_add_u32 v150, {F1 + 12*128}, v150")
    a("s_lshr_b32 s50, s40, 6")
    a("s_lshl_b32 s50, s50, 8")
    a(f"s_add_u32 s50, s50, {FW}")
    a("v_lshlrev_b32 v151, 2, v1")
    a("v_add_u32 v151, s50, v151")
    a("s_mov_b32 s52, -1")
    a("s_mov_b32 s53, 0")
    poll(a, [150, 151], ["s[52:53]", None])
    a(f"{N}_ap2s:")
    ST.n = 4; ST.stamp()
    a("s_barrier")
    p2_fft(a, N, ST)
    a("s_barrier")
    p3_decode(a)
    p3_loader(a, N, ST)
    a(f"{N}_end:")
    a("s_endpgm")
    return a

def fin(a, ST):
    if STAMP:
        a("s_waitcnt vmcnt(0)")
        ST.end()
        ST.flush(0)
    a("s_endpgm")

ACC = 32
XF = [64, 68]; WF = [[72, 76], [80, 84]]
XA = [4, 5, 6, 7]; WA = [8, 9]
NS1 = 4
def p1_addr(a):
    a("s_and_b32 s62, s22, 3")
    a("s_lshl_b32 s62, s62, 12")
    a("v_and_b32 v2, 31, v1")
    a("v_lshlrev_b32 v3, 7, v2")
    a("v_bfe_u32 v15, v1, 1, 3")
    a("v_lshrrev_b32 v25, 5, v1")
    a("v_xor_b32 v15, v15, v25")
    a("v_lshl_add_u32 v3, v15, 4, v3")
    a(f"v_add_u32 v{XA[0]}, s62, v3")
    for kk in range(1, 4):
        a(f"v_xor_b32 v{XA[kk]}, {kk*32}, v{XA[0]}")
    a("v_lshrrev_b32 v2, 5, v1")
    a("v_bfe_u32 v3, v1, 2, 2")
    a("v_lshl_add_u32 v2, v2, 3, v3")
    a("v_lshlrev_b32 v2, 8, v2")
    a("v_add_u32 v2, 16384, v2")
    a("v_bfe_u32 v15, v1, 4, 1")
    a("v_lshlrev_b32 v15, 5, v15")
    a("v_and_b32 v25, 3, v1")
    a("v_lshl_add_u32 v15, v25, 3, v15")
    a("s_lshr_b32 s62, s22, 2")
    a("s_mul_i32 s62, s62, 112")
    a("v_lshlrev_b32 v26, 2, v3")
    for g in range(2):
        a(f"v_add_u32 v25, s62, v15")
        if g: a(f"v_add_u32 v25, 56, v25")
        a(f"v_lshrrev_b32 v27, 4, v25")
        a(f"v_xor_b32 v27, v27, v26")
        a(f"v_and_b32 v25, 15, v25")
        a(f"v_lshl_add_u32 v25, v27, 4, v25")
        a(f"v_add_u32 v{WA[g]}, v2, v25")
    for r in range(ACC, ACC+32):
        a(f"v_mov_b32 v{r}, 0")

def p1_main(a, ST, qk):
    base = [0]
    def reads(n):
        c, kk = n // 4, n % 4
        slot = c % NS1
        want = (slot // 2) * 65536
        if want != base[0]:
            d = want - base[0]
            for r in XA + WA:
                a(f"v_add_u32 v{r}, {d & 0xffffffff:#x}, v{r}")
            base[0] = want
        off = slot * 32768 - want
        b = n % 2
        a(f"ds_read_b128 {vr(XF[b],4)}, v{XA[kk]} offset:{off}")
        for g in range(2):
            a(f"ds_read_b64_tr_b16 {vr(WF[b][g],2)}, v{WA[g]} offset:{off + kk*16*256}")
            a(f"ds_read_b64_tr_b16 {vr(WF[b][g]+2,2)}, v{WA[g]} offset:{off + kk*16*256 + 4*256}")
    a("s_barrier")
    reads(0)
    for n in range(28):
        b = n % 2
        if n + 1 < 28:
            if (n + 1) % 4 == 0:
                a(f"s_waitcnt lgkmcnt(0)")
                a("s_barrier")
                reads(n + 1)
            else:
                reads(n + 1)
                a("s_waitcnt lgkmcnt(5)")
        else:
            a("s_waitcnt lgkmcnt(0)")
        for g in range(2):
            d = vr(ACC + 16*g, 16)
            if qk: a(f"{MF32} {d}, {vr(WF[b][g],4)}, {vr(XF[b],4)}, {d}")
            else:  a(f"{MF32} {d}, {vr(XF[b],4)}, {vr(WF[b][g],4)}, {d}")
    a("s_nop 15")

def p1_compute(a, N, ST):
    a("s_cmp_ge_u32 s48, 2")
    a(f"s_cbranch_scc1 {N}_vx")
    p1_main(a, ST, True)
    ST.n = 3; ST.stamp()
    dbgt(a, 2)
    def headtile():
        a("s_lshl_b32 s58, s49, 2")
        a("s_lshr_b32 s59, s22, 2")
        a("s_lshl_b32 s59, s59, 1")
        a("s_add_u32 s58, s58, s59")
        a("s_lshl_b32 s58, s58, 6")
        a("s_lshl_b32 s59, s46, 2")
        a("s_add_u32 s58, s58, s59")
        a("s_and_b32 s59, s22, 3")
        a("s_add_u32 s58, s58, s59")
    def stores(gstride):
        for g in range(2):
            for j in range(2):
                a(f"s_add_u32 s59, s58, {g*64*gstride + j*1024}")
                a(f"buffer_store_dwordx4 {vr(64+8*g+4*j,4)}, v2, {ws}, s59 offen{SC}")
    headtile()
    a("v_lshlrev_b32 v2, 4, v1")
    a("s_cmp_eq_u32 s48, 1")
    a(f"s_cbranch_scc1 {N}_kep")
    a(f"s_mov_b32 s62, {QSCALE:#x}")
    for r in range(ACC, ACC+32):
        a(f"v_mul_f32 v{r}, s62, v{r}")
    a("s_mov_b32 exec_lo, 0")
    for g in range(2):
        for r in range(12, 16):
            a(f"v_mov_b32 v{ACC+16*g+r}, 0")
    a("s_mov_b32 exec_lo, -1")
    pack(a, ACC, 64, 16)
    a("s_lshl_b32 s58, s58, 11")
    a(f"s_add_u32 s58, s58, {QF}")
    stores(2048)
    a(f"s_branch {N}_p1done")
    a(f"{N}_kep:")
    a("s_mov_b32 exec_lo, 0")
    for g in range(2):
        a(f"v_mov_b32 v{ACC+16*g+12}, 1.0")
        for r in range(13, 16):
            a(f"v_mov_b32 v{ACC+16*g+r}, 0")
    a("s_mov_b32 exec_lo, -1")
    pack(a, ACC, 64, 16)
    a("s_lshl_b32 s58, s58, 12")
    a(f"s_add_u32 s58, s58, {KV}")
    stores(4096)
    a(f"s_branch {N}_p1done")
    a(f"{N}_vx:")
    p1_main(a, ST, False)
    ST.n = 3; ST.stamp()
    dbgt(a, 2)
    a("s_cmp_eq_u32 s48, 3")
    a(f"s_cbranch_scc1 {N}_xep")
    a("v_and_b32 v2, 31, v1")
    a("v_cmp_lt_u32 vcc, 27, v2")
    a("s_and_saveexec_b64 s[64:65], vcc")
    a("v_cmp_eq_u32 vcc, 28, v2")
    a("s_nop 1")
    a("v_cndmask_b32 v3, 0, 1.0, vcc")
    for r in range(ACC, ACC+32):
        a(f"v_mov_b32 v{r}, v3")
    a("s_mov_b64 exec, s[64:65]")
    pack(a, ACC, 64, 16)
    headtile()
    a("s_lshl_b32 s58, s58, 12")
    a(f"s_add_u32 s58, s58, {KV+2048}")
    a("v_lshlrev_b32 v2, 4, v1")
    stores(4096)
    a(f"s_branch {N}_p1done")
    a(f"{N}_xep:")
    pack(a, ACC, 64, 16)
    a("s_barrier")
    a("s_lshr_b32 s58, s22, 2")
    a("s_mul_i32 s58, s58, 56")
    a("v_and_b32 v2, 31, v1")
    a("v_lshrrev_b32 v3, 5, v1")
    a("s_and_b32 s59, s22, 3")
    a("s_lshl_b32 s59, s59, 2")
    a("v_add_u32 v3, s59, v3")
    a("v_cmp_gt_u32 vcc, 28, v2")
    a("s_and_saveexec_b64 s[64:65], vcc")
    for g in range(2):
        a(f"v_add_u32 v4, s58, v2")
        if g: a("v_add_u32 v4, 28, v4")
        a("v_and_b32 v5, 15, v4")
        for j in range(2):
            a(f"v_add_u32 v6, {2*j}, v3")
            a("v_xor_b32 v6, v6, v5")
            a("v_lshlrev_b32 v6, 4, v6")
            a("v_lshl_add_u32 v6, v4, 8, v6")
            a(f"ds_write_b128 v6, {vr(64+8*g+4*j,4)}")
    a("s_mov_b64 exec, s[64:65]")
    a("s_waitcnt lgkmcnt(0)")
    a("s_barrier")
    a("s_mul_i32 s58, s49, 112")
    a("s_lshl_b32 s58, s58, 12")
    a("s_lshr_b32 s59, s46, 1")
    a("s_lshl_b32 s59, s59, 9")
    a("s_add_u32 s58, s58, s59")
    a("s_and_b32 s59, s46, 1")
    a("s_lshl_b32 s59, s59, 8")
    a("s_add_u32 s58, s58, s59")
    a(f"s_add_u32 s58, s58, {X1}")
    a("v_lshrrev_b32 v2, 4, v0")
    a("v_and_b32 v3, 15, v0")
    def rb(it):
        a(f"v_add_u32 v4, {32*it}, v2")
        a("v_and_b32 v5, 15, v4")
        a("v_xor_b32 v5, v5, v3")
        a("v_lshlrev_b32 v5, 4, v5")
        a("v_lshl_add_u32 v5, v4, 8, v5")
        a(f"ds_read_b128 {vr(32+4*it,4)}, v5")
        a("v_lshlrev_b32 v6, 12, v4")
        a(f"v_lshl_add_u32 v{8+it}, v3, 4, v6")
    for it in range(3):
        rb(it)
    a("s_waitcnt lgkmcnt(0)")
    for it in range(3):
        a(f"buffer_store_dwordx4 {vr(32+4*it,4)}, v{8+it}, {ws}, s58 offen{SC}")
    a("v_add_u32 v4, 96, v2")
    a("v_cmp_gt_u32 vcc, 112, v4")
    a("s_and_saveexec_b64 s[64:65], vcc")
    a(f"s_cbranch_execz {N}_xfin")
    rb(3)
    a("s_waitcnt lgkmcnt(0)")
    a(f"buffer_store_dwordx4 {vr(32+12,4)}, v{8+3}, {ws}, s58 offen{SC}")
    a(f"{N}_xfin:")
    a("s_mov_b64 exec, s[64:65]")

def p1_loader(a, N, ST):
    SX, SW = 28, 32
    VX0, VX1, VW = 10, 11, 12
    PER = 4
    a("s_sub_u32 s51, s22, 8")
    a("s_getpc_b64 s[52:53]")
    a("s_add_u32 s52, s52, HTAB@rel32@lo+4")
    a("s_addc_u32 s53, s53, HTAB@rel32@hi+12")
    a("v_lshrrev_b32 v2, 3, v1")
    a("s_cmp_eq_u32 s48, 3")
    a(f"s_cbranch_scc0 {N}_lp")
    a("v_and_b32 v3, 3, v2")
    a("v_lshlrev_b32 v3, 5, v3")
    a("v_lshrrev_b32 v2, 5, v1")
    a("v_add_u32 v2, v2, v3")
    a(f"{N}_lp:")
    a("v_mul_u32_u24 v2, 896, v2")
    a("v_and_b32 v3, 7, v1")
    a("v_lshrrev_b32 v4, 4, v1")
    a("v_xor_b32 v5, v3, v4")
    a(f"v_lshl_add_u32 v{VX0}, v5, 4, v2")
    a("v_xor_b32 v5, 4, v5")
    a(f"v_lshl_add_u32 v{VX1}, v5, 4, v2")
    TK = 56
    a("s_cmp_eq_u32 s48, 3")
    a(f"s_cbranch_scc1 {N}_ltX")
    a("s_lshl_b32 s66, s46, 7")
    a(f"s_mul_i32 s67, s51, {8*PER}")
    a("s_add_u32 s66, s66, s67")
    for ii in range(PER):
        a(f"s_add_u32 s{TK+ii}, s66, {8*ii}")
    a(f"s_branch {N}_ltd")
    a(f"{N}_ltX:")
    a("s_lshr_b32 s66, s46, 1")
    a("s_lshl_b32 s66, s66, 8")
    a("s_and_b32 s67, s46, 1")
    a("s_lshl_b32 s67, s67, 4")
    a("s_add_u32 s66, s66, s67")
    a(f"s_mul_i32 s67, s51, {PER}")
    a("s_add_u32 s66, s66, s67")
    for ii in range(PER):
        a(f"s_add_u32 s{TK+ii}, s66, {128*(ii&1) + 4*(ii>>2) + 2*((ii>>1)&1)}")
    a(f"{N}_ltd:")
    for ii in range(PER):
        a(f"s_mulk_i32 s{TK+ii}, 896")
    a("s_cmp_eq_u32 s48, 3")
    a(f"s_movk_i32 s64, 2688")
    a(f"s_cselect_b32 s64, 896, s64")
    a("s_mul_i32 s65, s48, 896")
    a("s_cselect_b32 s65, 0, s65")
    a("s_mul_i32 s66, s49, 224")
    a("s_add_u32 s65, s65, s66")
    a("v_lshrrev_b32 v2, 4, v1")
    a("v_mul_lo_u32 v3, v2, s64")
    a("v_lshlrev_b32 v4, 2, v2")
    a("v_and_b32 v5, 15, v1")
    a("v_xor_b32 v4, v4, v5")
    a(f"v_lshl_add_u32 v{VW}, v4, 4, v3")
    a(f"v_add_u32 v{VW}, s65, v{VW}")
    a("s_lshl_b32 s65, s64, 2")
    a(f"s_mul_i32 s66, s64, {4*PER}")
    a("s_mul_i32 s66, s66, s51")
    a("s_lshl_b32 s67, s64, 6")
    a(f"s_mul_i32 s68, s51, {PER*1024}")
    a("s_lshr_b32 s69, s45, 3")
    a("s_add_u32 s69, s69, s45")
    a("s_and_b32 s69, s69, 3")
    a("s_lshl_b32 s69, s69, 1")
    a("s_waitcnt lgkmcnt(0)")
    ST.n = 2; ST.stamp()
    srd(a, SWS, 20, 21, WS_SIZE)
    a("s_cmp_eq_u32 s48, 3")
    a("s_cselect_b32 s54, s10, s4")
    a("s_cselect_b32 s55, s11, s5")
    srd(a, SX, 54, 55, 2048*896)
    a("s_cmp_eq_u32 s48, 3")
    a("s_cselect_b32 s54, s52, s6")
    a("s_cselect_b32 s55, s53, s7")
    a(f"s_mov_b32 s{SW}, s54")
    a(f"s_and_b32 s{SW+1}, s55, 0xffff")
    a("s_cmp_eq_u32 s48, 3")
    a(f"s_mov_b32 s70, {448*2688}")
    a(f"s_cselect_b32 s{SW+2}, {448*896}, s70")
    a(f"s_mov_b32 s{SW+3}, 0x20000")
    def dma(c):
        slot = c % NS1
        a("s_lshl_b32 s70, s69, 7")
        a("s_mul_i32 s71, s69, s67")
        a("s_add_u32 s71, s71, s66")
        for ii in range(PER):
            a(f"s_add_u32 m0, s68, {slot*32768 + ii*1024}")
            a(f"s_add_u32 s54, s{TK+ii}, s70")
            a(f"buffer_load_dwordx4 v{VX0 if ii % 2 == 0 else VX1}, s[{SX}:{SX+3}], s54 offen lds")
            a(f"s_add_u32 m0, s68, {slot*32768 + 16384 + ii*1024}")
            if ii: a("s_add_u32 s71, s71, s65")
            else: a("s_nop 0")
            a(f"buffer_load_dwordx4 v{VW}, s[{SW}:{SW+3}], s71 offen lds")
        a("s_add_u32 s69, s69, 1")
        a("s_cmp_eq_u32 s69, 7")
        a("s_cselect_b32 s69, 0, s69")
    dma(0); dma(1)
    P2 = 2*PER
    waits = {5: P2 + 16, 6: 16}
    for c in range(7):
        a(f"s_waitcnt vmcnt({waits.get(c, P2)})")
        a("s_barrier")
        if c + 2 <= 6: dma(c + 2)
        if c == 4: p1_side_loads(a)
    fft_col(a, 40)
    a("s_mov_b32 s39, s48")
    a("s_cmp_eq_u32 s39, 3")
    a(f"s_cbranch_scc0 {N}_noxe")
    a("s_barrier")
    a("s_barrier")
    a(f"{N}_noxe:")
    p1_side_finish(a, N)
    a("s_cmp_gt_u32 s40, 224")
    a(f"s_cbranch_scc1 {N}_nocol")
    fft_consts(a, N)
    a(f"{N}_nocol:")

SJ = 16
SXB = 131072
def p1_side_loads(a):
    srd(a, 36, 12, 13, 2048*450)
    srd(a, 72, 14, 15, 2048*450)
    a("v_lshlrev_b32 v13, 1, v1")
    a("s_and_b32 s63, s2, 3")
    a("s_lshl_b32 s63, s63, 7")
    for q in range(2):
        a("s_lshr_b32 s60, s2, 2")
        a("s_lshl_b32 s60, s60, 3")
        a("s_lshl_b32 s61, s51, 1")
        a("s_add_u32 s60, s60, s61")
        if q: a("s_add_u32 s60, s60, 1")
        a("s_and_b32 s61, s60, 15")
        a("s_lshr_b32 s62, s60, 7")
        a("s_lshl_b32 s62, s62, 4")
        a("s_add_u32 s61, s61, s62")
        a("s_bfe_u32 s62, s60, 0x10006")
        a("s_lshl_b32 s62, s62, 4")
        a("s_bfe_u32 s54, s60, 0x20004")
        a("s_lshl_b32 s54, s54, 2")
        a("s_add_u32 s62, s62, s54")
        a("s_lshl_b32 s62, s62, 6")
        a("s_add_u32 s61, s61, s62")
        a("s_mulk_i32 s61, 450")
        a("s_add_u32 s61, s61, s63")
        for i in range(4):
            a(f"s_add_u32 s62, s61, {i*28800}")
            a(f"buffer_load_ushort v{SJ+8*q+i}, v13, s[36:39], s62 offen")
            a(f"buffer_load_ushort v{SJ+8*q+4+i}, v13, s[72:75], s62 offen")

def p1_side_finish(a, N):
    a("s_waitcnt vmcnt(0)")
    for q in range(2):
        for i in range(4):
            a(f"v_lshl_or_b32 v{SJ+8*q+i}, v{SJ+8*q+4+i}, 16, v{SJ+8*q+i}")
    a("v_mul_u32_u24 v14, 144, v1")
    a("s_lshl_b32 s60, s51, 5")
    a(f"s_add_u32 s60, s60, {SXB}")
    a("v_add_u32 v14, s60, v14")
    a(f"ds_write_b128 v14, {vr(SJ,4)}")
    a(f"ds_write_b128 v14, {vr(SJ+8,4)} offset:16")
    a(f"v_mov_b32 v2, {TAGL}")
    a("v_mov_b32 v3, 1")
    a("s_waitcnt lgkmcnt(0)")
    a("s_mov_b64 exec, 1")
    a("ds_add_u32 v2, v3 offset:8")
    a("s_mov_b64 exec, -1")
    a("s_mov_b32 s60, 0")
    a(f"{N}_sjw:")
    a("ds_read_b32 v4, v2 offset:8")
    a("ds_read_b32 v5, v2")
    a("s_waitcnt lgkmcnt(0)")
    a("v_readfirstlane_b32 s61, v4")
    a("v_readfirstlane_b32 s23, v5")
    a("s_nop 3")
    a("s_cmp_ge_u32 s61, 4")
    a(f"s_cbranch_scc1 {N}_sjd")
    a("s_add_u32 s60, s60, 1")
    a(f"s_cmp_lt_u32 s60, {SPIN}")
    a("s_sleep 1")
    a(f"s_cbranch_scc1 {N}_sjw")
    a(f"{N}_sjd:")
    a("v_lshrrev_b32 v4, 3, v1")
    a("s_lshl_b32 s60, s51, 4")
    a("v_add_u32 v4, s60, v4")
    a("v_and_b32 v5, 7, v1")
    a("v_mul_u32_u24 v6, 144, v4")
    a("v_lshl_add_u32 v6, v5, 4, v6")
    a(f"v_add_u32 v6, {SXB}, v6")
    a(f"ds_read_b128 {vr(SJ,4)}, v6")
    a(f"ds_read_b128 {vr(SJ+4,4)}, v6 offset:{8*144}")
    a("s_and_b32 s60, s2, 3")
    a("s_lshl_b32 s60, s60, 6")
    a("v_add_u32 v4, s60, v4")
    a("v_lshlrev_b32 v7, 13, v4")
    a("v_lshl_add_u32 v7, v5, 4, v7")
    a("s_lshr_b32 s61, s2, 2")
    a("s_lshl_b32 s61, s61, 7")
    a(f"s_add_u32 s61, s61, {WT}")
    a("s_waitcnt lgkmcnt(0)")
    a("v_cmp_gt_u32 vcc, 225, v4")
    a("s_and_saveexec_b64 s[62:63], vcc")
    a(f"buffer_store_dwordx4 {vr(SJ,4)}, v7, {ws}, s61 offen{SC}")
    a("s_mov_b64 exec, s[62:63]")
    a("v_add_u32 v4, 8, v4")
    a(f"s_add_u32 s61, s61, {8*8192}")
    a("v_cmp_gt_u32 vcc, 225, v4")
    a("s_and_saveexec_b64 s[62:63], vcc")
    a(f"buffer_store_dwordx4 {vr(SJ+4,4)}, v7, {ws}, s61 offen{SC}")
    a("s_mov_b64 exec, s[62:63]")
    a("s_waitcnt vmcnt(0)")
    a("s_mov_b64 exec, 1")
    a("ds_add_rtn_u32 v4, v2, v3 offset:12")
    a("s_mov_b64 exec, -1")
    a("s_waitcnt lgkmcnt(0)")
    a("v_readfirstlane_b32 s60, v4")
    a("s_nop 3")
    a("s_cmp_lg_u32 s60, 3")
    a(f"s_cbranch_scc1 {N}_sjn")
    a("s_and_b32 s60, s2, 3")
    a("s_lshl_b32 s60, s60, 8")
    a("s_lshr_b32 s61, s2, 2")
    a("s_lshl_b32 s61, s61, 2")
    a("s_add_u32 s60, s60, s61")
    a(f"s_add_u32 s60, s60, {FW}")
    signal2(a, 60)
    a(f"{N}_sjn:")

RING = 131072
XB = RING
FLAG = RING + 9216
def p2_attn(a, N, ST):
    QR = 4
    SA, SB = 16, 32
    PR = 48
    OR_ = 56
    KF = [72, 80]; VF = [88, 96]
    VL, VC, VN = 12, 13, 14
    MR = 15
    T0, T1, T2, T3 = 104, 105, 106, 107
    a("s_and_b32 s41, s2, 7")
    a("s_lshl_b32 s41, s41, 1")
    a("s_bfe_u32 s42, s2, 0x10003")
    a("s_add_u32 s41, s41, s42")
    a("s_lshr_b32 s42, s2, 4")
    a("s_and_b32 s43, s22, 3")
    a("s_lshr_b32 s44, s22, 2")
    a(f"v_lshlrev_b32 v{VL}, 4, v1")
    a("s_lshl_b32 s45, s41, 6")
    a("s_lshl_b32 s46, s42, 2")
    a("s_add_u32 s46, s46, s43")
    a("s_add_u32 s47, s45, s46")
    a("s_lshl_b32 s47, s47, 11")
    a(f"s_add_u32 s47, s47, {QF}")
    a("s_lshl_b32 s48, s44, 5")
    a("s_add_u32 s48, s48, s45")
    a("s_add_u32 s48, s48, s43")
    a("s_lshl_b32 s48, s48, 12")
    a(f"s_add_u32 s48, s48, {KV}")
    a("s_lshl_b32 s49, s44, 14")
    a("s_lshl_b32 s50, s43, 12")
    a("s_add_u32 s49, s49, s50")
    a("s_lshl_b32 s50, s44, 14")
    a(f"v_add_u32 v{VC}, s50, v{VL}")
    a("s_mov_b32 s51, 0")
    a("s_and_b32 s59, s42, 7")
    def dma1(goff_s, slot_s, i):
        a(f"s_add_u32 m0, s{slot_s}, {i*1024}")
        a(f"s_add_u32 s54, s{goff_s}, {i*1024}")
        a(f"buffer_load_dwordx4 v{VL}, {ws}, s54 offen{SC} lds")
    def step_goff(dst, s_imm):
        a(f"s_add_u32 s{dst}, s59, {s_imm}")
        a(f"s_and_b32 s{dst}, s{dst}, 7")
        a(f"s_lshl_b32 s{dst}, s{dst}, 14")
        a(f"s_add_u32 s{dst}, s{dst}, s48")
    a(f"buffer_load_dwordx4 {vr(QR,4)}, v{VL}, {ws}, s47 offen{SC}")
    a(f"buffer_load_dwordx4 {vr(QR+4,4)}, v{VL}, {ws}, s47 offen offset:1024{SC}")
    a("s_cmp_lg_u32 s22, 0")
    a(f"s_cbranch_scc1 {N}_noflag")
    a(f"v_mov_b32 v{T0}, {FLAG}")
    a(f"v_mov_b32 v{T1}, 0")
    a(f"ds_write_b32 v{T0}, v{T1}")
    a(f"{N}_noflag:")
    a(f"{N}_restart:")
    step_goff(52, 0)
    a("s_mov_b32 s53, s49")
    for i in range(4): dma1(52, 53, i)
    a(f"v_xor_b32 v{VN}, 0x10000, v{VC}")
    for r in range(OR_, OR_+16):
        a(f"v_mov_b32 v{r}, 0")
    for r in list(range(PR+4, PR+8)) + list(range(VF[1]+4, VF[1]+8)):
        a(f"v_mov_b32 v{r}, 0")
    a("s_waitcnt vmcnt(0) lgkmcnt(0)")
    a("s_barrier")
    def rd(dst, base, off):
        a(f"ds_read_b128 {vr(dst,4)}, v{base} offset:{off}")
    def smf1(S, kb): return f"{MF32} {vr(S,16)}, {vr(KF[kb],4)}, {vr(QR,4)}, 0"
    def smf2(S, kb): return f"{MF32} {vr(S,16)}, {vr(KF[kb]+4,4)}, {vr(QR+4,4)}, {vr(S,16)}"
    rd(KF[0], VC, 0); rd(KF[0]+4, VC, 1024)
    rd(VF[0], VC, 2048); rd(VF[0]+4, VC, 3072)
    rd(KF[1], VC, 4096); rd(KF[1]+4, VC, 4096+1024)
    a("s_cmp_lg_u32 s51, 0")
    a(f"s_cbranch_scc1 {N}_havem")
    a("s_waitcnt lgkmcnt(4)")
    a(smf1(SA, 0)); a(smf2(SA, 0))
    a("s_nop 15")
    s = SA
    a(f"v_max3_f32 v{T0}, v{s}, v{s+1}, v{s+2}")
    a(f"v_max3_f32 v{T1}, v{s+3}, v{s+4}, v{s+5}")
    a(f"v_max3_f32 v{T2}, v{s+6}, v{s+7}, v{s+8}")
    a(f"v_max3_f32 v{T3}, v{s+9}, v{s+10}, v{s+11}")
    a(f"v_max3_f32 v{T0}, v{T0}, v{s+12}, v{s+13}")
    a(f"v_max3_f32 v{T1}, v{T1}, v{s+14}, v{s+15}")
    a(f"v_max3_f32 v{T0}, v{T0}, v{T1}, v{T2}")
    a(f"v_max_f32 v{T0}, v{T0}, v{T3}")
    set_m(a, QR, MR, T0, T1)
    a(f"{N}_havem:")
    a("s_waitcnt lgkmcnt(0)")
    a("s_nop 1")
    a(smf1(SA, 0)); a(smf2(SA, 0))
    a("s_nop 11")
    ST.n = 6; ST.stamp()
    dbgt(a, 5)
    def off(b): return (b // 4) * 32768 + (b % 4) * 4096
    Ex = lambda S, i: a(f"v_exp_f32 v{S+i}, v{S+i}")
    C = lambda S, i: a(f"v_cvt_pk_bf16_f32 v{PR+i}, v{S+2*i}, v{S+2*i+1}")
    def body(first):
        for b in range(8):
            S, Sn = (SA, SB) if b % 2 == 0 else (SB, SA)
            kb = (b + 1) % 2
            vb = b % 2
            pvb = (b + 1) % 2
            refill = False
            if first and b in (0, 1):
                step_goff(52, b + 1)
                a(f"s_add_u32 s53, s49, {(b+1)*32768}")
                refill = True
            if b in (2, 6):
                a("s_lshl_b32 s53, s55, 1")
                a(f"s_add_u32 s53, s53, {3 if b == 2 else 4}")
                a("s_add_u32 s52, s53, s59")
                a("s_and_b32 s52, s52, 7")
                a("s_lshl_b32 s52, s52, 14")
                a("s_add_u32 s52, s52, s48")
                a("s_cmp_gt_u32 s53, 7")
                a(f"s_cselect_b32 s52, {OOB}, s52")
                a("s_and_b32 s53, s53, 3")
                a("s_lshl_b32 s53, s53, 15")
                a("s_add_u32 s53, s53, s49")
                a("s_waitcnt vmcnt(4)")
                a("s_barrier")
                refill = True
            def dm(i):
                if refill: dma1(52, 53, i)
            kbase, koff = (VC, off(b + 2)) if b + 2 < 8 else (VN, off(b + 2 - 8))
            vbase, voff = (VC, off(b + 1)) if b + 1 < 8 else (VN, off(b + 1 - 8))
            Ex(S, 0); Ex(S, 1)
            a(f"{MF32} {vr(OR_,16)}, {vr(VF[pvb]+4,4)}, {vr(PR+4,4)}, {vr(OR_,16)}")
            rd(VF[pvb], vbase, voff + 2048)
            dm(0)
            Ex(S, 2); Ex(S, 3); Ex(S, 4); C(S, 0); C(S, 1)
            a("s_waitcnt lgkmcnt(1)")
            a(smf1(Sn, kb))
            rd(VF[pvb]+4, vbase, voff + 3072)
            dm(1)
            Ex(S, 5); Ex(S, 6); Ex(S, 7); Ex(S, 8); C(S, 2)
            a(smf2(Sn, kb))
            rd(KF[b % 2], kbase, koff)
            dm(2)
            C(S, 3); Ex(S, 9); Ex(S, 10); Ex(S, 11)
            a(f"{MF32} {vr(OR_,16)}, {vr(VF[vb],4)}, {vr(PR,4)}, {vr(OR_,16)}")
            rd(KF[b % 2]+4, kbase, koff + 1024)
            dm(3)
            Ex(S, 12); Ex(S, 13); C(S, 4); Ex(S, 14); Ex(S, 15); C(S, 5); C(S, 6); C(S, 7)
        a(f"v_xor_b32 v{VC}, 0x10000, v{VC}")
        a(f"v_xor_b32 v{VN}, 0x10000, v{VN}")
    a("s_mov_b32 s55, 0")
    body(True)
    a("s_mov_b32 s55, 1")
    a(f"{N}_loop:")
    body(False)
    a("s_add_u32 s55, s55, 1")
    a("s_cmp_lt_u32 s55, 4")
    a(f"s_cbranch_scc1 {N}_loop")
    a(f"{MF32} {vr(OR_,16)}, {vr(VF[1]+4,4)}, {vr(PR+4,4)}, {vr(OR_,16)}")
    a("s_nop 15")
    a("s_waitcnt lgkmcnt(0)")
    LL = T0
    a(f"v_mov_b32 v{T1}, v{OR_+12}")
    a(f"v_mov_b32 v{LL}, v{OR_+12}")
    a("s_nop 1")
    a(f"v_permlane32_swap_b32 v{T1}, v{LL}")
    a("s_cmp_lg_u32 s51, 0")
    a(f"s_cbranch_scc1 {N}_nochk")
    a(f"s_mov_b32 s56, {f32bits(2.0**64):#x}")
    a(f"v_cmp_ngt_f32 vcc, s56, v{LL}")
    a("s_nop 4")
    a(f"s_cbranch_vccz {N}_nochk")
    a(f"v_mov_b32 v{T1}, {FLAG}")
    a(f"v_mov_b32 v{T2}, 1")
    a(f"ds_write_b32 v{T1}, v{T2}")
    a(f"{N}_nochk:")
    a("s_mul_i32 s56, s43, 5120")
    a("s_mul_i32 s57, s44, 2560")
    a("s_add_u32 s57, s57, s56")
    a("s_xor_b32 s58, s44, 1")
    a("s_mul_i32 s58, s58, 2560")
    a("s_add_u32 s58, s58, s56")
    a(f"v_add_u32 v{T1}, s57, v{VL}")
    a(f"v_lshlrev_b32 v{T2}, 3, v1")
    a(f"v_add_u32 v{T2}, s57, v{T2}")
    a(f"v_mov_b32 v{T3+1}, v{MR}")
    a(f"v_mov_b32 v{T3+2}, v{LL}")
    a("s_cmp_eq_u32 s44, 0")
    a(f"s_cbranch_scc1 {N}_send1")
    a(f"ds_write_b128 v{T1}, {vr(OR_,4)}")
    a(f"ds_write_b128 v{T1}, {vr(OR_+4,4)} offset:1024")
    for i in range(8): a(f"v_mov_b32 v{SA+i}, v{OR_+8+i}")
    a(f"s_branch {N}_sent")
    a(f"{N}_send1:")
    a(f"ds_write_b128 v{T1}, {vr(OR_+8,4)}")
    a(f"ds_write_b128 v{T1}, {vr(OR_+12,4)} offset:1024")
    for i in range(8): a(f"v_mov_b32 v{SA+i}, v{OR_+i}")
    a(f"{N}_sent:")
    a(f"ds_write_b64 v{T2}, {vr(T3+1,2)} offset:2048")
    a("s_waitcnt vmcnt(0) lgkmcnt(0)")
    a("s_barrier")
    a(f"v_add_u32 v{T1}, s58, v{VL}")
    a(f"v_lshlrev_b32 v{T2}, 3, v1")
    a(f"v_add_u32 v{T2}, s58, v{T2}")
    a(f"v_mov_b32 v{T3}, {FLAG}")
    a(f"ds_read_b32 v{T3}, v{T3}")
    a(f"ds_read_b128 {vr(SB,4)}, v{T1}")
    a(f"ds_read_b128 {vr(SB+4,4)}, v{T1} offset:1024")
    a(f"ds_read_b64 {vr(SB+8,2)}, v{T2} offset:2048")
    a("s_waitcnt lgkmcnt(0)")
    a("s_cmp_lg_u32 s51, 0")
    a(f"s_cbranch_scc1 {N}_merge")
    a(f"v_readfirstlane_b32 s56, v{T3}")
    a("s_nop 3")
    a("s_cmp_lg_u32 s56, 0")
    a(f"s_cbranch_scc1 {N}_slow")
    a(f"{N}_merge:")
    MP, LP = SB+8, SB+9
    a(f"v_max_f32 v{T1}, v{MR}, v{MP}")
    a(f"v_sub_f32 v{T2}, v{MR}, v{T1}")
    a(f"v_sub_f32 v{T3}, v{MP}, v{T1}")
    a(f"v_exp_f32 v{T2}, v{T2}")
    a(f"v_exp_f32 v{T3}, v{T3}")
    a("s_nop 0")
    a(f"v_mul_f32 v{T1}, v{T2}, v{LL}")
    a(f"v_fmac_f32 v{T1}, v{T3}, v{LP}")
    a(f"v_rcp_f32 v{T1}, v{T1}")
    a("s_nop 0")
    a(f"v_mul_f32 v{T2}, v{T2}, v{T1}")
    a(f"v_mul_f32 v{T3}, v{T3}, v{T1}")
    for i in range(8):
        a(f"v_mul_f32 v{SA+i}, v{T2}, v{SA+i}")
    for i in range(8):
        a(f"v_fmac_f32 v{SA+i}, v{T3}, v{SB+i}")
    a("s_cmp_eq_u32 s44, 0")
    a(f"s_cbranch_scc1 {N}_nopad")
    a("s_mov_b32 exec_lo, 0")
    for i in range(4, 8): a(f"v_mov_b32 v{SA+i}, 0")
    a("s_mov_b32 exec_lo, -1")
    a(f"{N}_nopad:")
    for i in range(4): a(f"v_cvt_pk_bf16_f32 v{PR+i}, v{SA+2*i}, v{SA+2*i+1}")
    a("s_lshl_b32 s56, s46, 4")
    a("s_add_u32 s56, s56, s41")
    a("s_lshl_b32 s56, s56, 1")
    a("s_add_u32 s56, s56, s44")
    a("s_lshl_b32 s56, s56, 10")
    a(f"s_add_u32 s56, s56, {OF}")
    a(f"buffer_store_dwordx4 {vr(PR,4)}, v{VL}, {ws}, s56 offen{SC}")
    a(f"s_branch {N}_p2done")
    a(f"{N}_slow:")
    a("s_mov_b32 s51, 1")
    a("s_mov_b32 exec_lo, 0")
    a(f"v_mov_b32 v{QR+6}, 0")
    a("s_mov_b32 exec_lo, -1")
    a(f"v_mov_b32 v{T0}, 0xff7fffff")
    a("s_lshl_b32 s56, s44, 5")
    a("s_add_u32 s56, s56, s45")
    a("s_lshl_b32 s56, s56, 12")
    a(f"s_add_u32 s56, s56, {KV}")
    a("s_mov_b32 s57, 0")
    a(f"{N}_sloop:")
    a(f"buffer_load_dwordx4 {vr(KF[0],4)}, v{VL}, {ws}, s56 offen{SC}")
    a(f"buffer_load_dwordx4 {vr(KF[0]+4,4)}, v{VL}, {ws}, s56 offen offset:1024{SC}")
    a("s_waitcnt vmcnt(0)")
    a(smf1(SA, 0)); a(smf2(SA, 0))
    a("s_nop 15")
    for i in range(0, 16, 2):
        a(f"v_max3_f32 v{T0}, v{T0}, v{SA+i}, v{SA+i+1}")
    a("s_add_u32 s56, s56, 4096")
    a("s_add_u32 s57, s57, 1")
    a("s_cmp_lt_u32 s57, 32")
    a(f"s_cbranch_scc1 {N}_sloop")
    set_m(a, QR, MR, T0, T1)
    a(f"v_and_b32 v{VC}, 0xffff, v{VC}")
    a("s_barrier")
    a(f"s_branch {N}_restart")
    a(f"{N}_p2done:")

def set_m(a, QR, MR, T0, T1):
    a(f"v_mov_b32 v{T1}, v{T0}")
    a("s_nop 1")
    a(f"v_permlane32_swap_b32 v{T0}, v{T1}")
    a("s_nop 0")
    a(f"v_max_f32 v{T0}, v{T0}, v{T1}")
    a(f"v_cvt_pk_bf16_f32 v{T1}, -v{T0}, 0")
    a(f"v_lshlrev_b32 v{MR}, 16, v{T1}")
    a(f"v_xor_b32 v{MR}, 0x80000000, v{MR}")
    a("s_mov_b32 exec_lo, 0")
    a(f"v_mov_b32 v{QR+6}, v{T1}")
    a("s_mov_b32 exec_lo, -1")

A_, B_ = 4, 20
C1, C3, TW, WW = 36, 60, 84, 100
WI = 108
TW2R = 20
AD = 116
TR, TI = 124, 132
PK = 140
T = 148
SFT = 28
ft = "s[28:31]"
def fft_ld(a, dst, n, sreg, srd_, flag=""):
    for i in range(n):
        if i and i % 4 == 0:
            a(f"s_add_u32 s{sreg}, s{sreg}, 4096")
        a(f"buffer_load_dwordx4 {vr(dst+4*i,4)}, v2, {srd_}, s{sreg} offen offset:{(i%4)*1024}{flag}")
def fft_col(a, d):
    a(f"s_and_b32 s{d}, s2, 7")
    a(f"s_mul_i32 s{d}, s{d}, 28")
    a("s_lshr_b32 s41, s2, 3")
    a(f"s_add_u32 s{d}, s{d}, s41")
    a("s_cmp_lt_u32 s41, 28")
    a(f"s_cselect_b32 s{d}, s{d}, 255")
    a("s_cmp_eq_u32 s2, 224")
    a(f"s_cselect_b32 s{d}, 224, s{d}")
def fft_consts(a, N):
    offs, blob = tables.build()
    a("s_getpc_b64 s[28:29]")
    a("s_add_u32 s28, s28, FTAB@rel32@lo+4")
    a("s_addc_u32 s29, s29, FTAB@rel32@hi+12")
    a("s_and_b32 s29, s29, 0xffff")
    a(f"s_mov_b32 s30, {blob.size*2}")
    a(f"s_mov_b32 s31, 0x20000")
    a("s_sub_u32 s41, s22, 8")
    a("v_lshlrev_b32 v2, 4, v1")
    a("s_mul_i32 s45, s41, 6144")
    a(f"s_add_u32 s46, s45, {offs['C1']}")
    fft_ld(a, C1, 6, 46, ft)
    a("s_lshl_b32 s47, s41, 12")
    a(f"s_add_u32 s46, s47, {offs['TW1']}")
    fft_ld(a, TW, 4, 46, ft)
    a(f"s_mov_b32 s46, {offs['C3']}")
    fft_ld(a, C3, 6, 46, ft)

def p2_fft(a, N, ST):
    a("s_cmp_gt_u32 s40, 224")
    a(f"s_cbranch_scc1 {N}_nofft")
    a("s_setprio 2")
    a("s_sub_u32 s41, s22, 8")
    a("v_lshlrev_b32 v2, 4, v1")
    a("v_lshrrev_b32 v3, 4, v1")
    a("v_lshlrev_b32 v3, 9, v3")
    a(f"v_and_b32 v{T}, 15, v1")
    a(f"v_lshl_add_u32 v3, v{T}, 4, v3")
    a("s_lshl_b32 s42, s40, 12")
    a(f"s_add_u32 s42, s42, {X1}")
    a("s_sub_u32 s43, 448, s40")
    a("s_cmp_eq_u32 s40, 0")
    a("s_cselect_b32 s43, 0, s43")
    a("s_lshl_b32 s44, s43, 12")
    a(f"s_add_u32 s44, s44, {X1}")
    for t in range(2):
        for ks in range(2):
            a(f"buffer_load_dwordx4 {vr(A_+4*(2*t+ks),4)}, v3, {ws}, s42 offen offset:{ks*2048+t*256}{SC}")
            a(f"buffer_load_dwordx4 {vr(B_+4*(2*t+ks),4)}, v3, {ws}, s44 offen offset:{ks*2048+t*256}{SC}")
    a("s_lshl_b32 s46, s40, 13")
    a("s_lshl_b32 s48, s41, 11")
    a("s_add_u32 s46, s46, s48")
    a(f"s_add_u32 s46, s46, {WT}")
    fft_ld(a, WW, 2, 46, ws, SC)
    a("s_barrier")
    a("s_waitcnt vmcnt(2)")
    P = lambda ks: vr(C1+4*ks, 4); Q = lambda ks: vr(C1+8+4*ks, 4); NQ = lambda ks: vr(C1+16+4*ks, 4)
    da = lambda t, ks: vr(A_+4*(2*t+ks), 4); db = lambda t, ks: vr(B_+4*(2*t+ks), 4)
    tr = lambda t: vr(TR+4*t, 4); ti = lambda t: vr(TI+4*t, 4)
    for step in range(4):
        ks = step % 2
        for t in range(2):
            cr = "0" if step == 0 else tr(t); ci = "0" if step == 0 else ti(t)
            if step < 2:
                a(f"{MF16} {tr(t)}, {da(t,ks)}, {P(ks)}, {cr}")
                a(f"{MF16} {ti(t)}, {da(t,ks)}, {NQ(ks)}, {ci}")
            else:
                a(f"{MF16} {tr(t)}, {db(t,ks)}, {Q(ks)}, {cr}")
                a(f"{MF16} {ti(t)}, {db(t,ks)}, {P(ks)}, {ci}")
    offs, _ = tables.build()
    a("v_lshlrev_b32 v2, 4, v1")
    a("s_lshl_b32 s47, s41, 12")
    a(f"s_add_u32 s46, s47, {offs['TW2']}")
    a("s_nop 4")
    fft_ld(a, TW2R, 4, 46, ft)
    def cmul(xr, xi, c, s, outr, outi):
        for p in range(0, 4, 2):
            a(f"v_pk_mul_f32 {vr(T+p,2)}, {vr(xi+p,2)}, {vr(s+p,2)}")
            a(f"v_pk_mul_f32 {vr(T+4+p,2)}, {vr(xi+p,2)}, {vr(c+p,2)}")
        for p in range(0, 4, 2):
            a(f"v_pk_fma_f32 {vr(outr+p,2)}, {vr(xr+p,2)}, {vr(c+p,2)}, {vr(T+p,2)} neg_lo:[0,0,1] neg_hi:[0,0,1]")
            a(f"v_pk_fma_f32 {vr(outi+p,2)}, {vr(xr+p,2)}, {vr(s+p,2)}, {vr(T+4+p,2)}")
    O1 = T + 8
    def packRI(t):
        a(f"v_cvt_pk_bf16_f32 v{PK+2*t}, v{O1}, v{O1+1}")
        a(f"v_cvt_pk_bf16_f32 v{PK+2*t+1}, v{O1+2}, v{O1+3}")
        a(f"v_cvt_pk_bf16_f32 v{PK+4+2*t}, v{O1+4}, v{O1+5}")
        a(f"v_cvt_pk_bf16_f32 v{PK+4+2*t+1}, v{O1+6}, v{O1+7}")
    for t in range(2):
        cmul(TR+4*t, TI+4*t, TW+8*t, TW+8*t+4, O1, O1+4)
        packRI(t)
    a("s_nop 1")
    Fr = lambda u: vr(C3+4*u, 4); Fi = lambda u: vr(C3+8+4*u, 4); NFi = lambda u: vr(C3+16+4*u, 4)
    BR, BI = vr(PK, 4), vr(PK+4, 4)
    for u in range(2):
        a(f"{MF16} {tr(u)}, {Fr(u)}, {BR}, 0")
        a(f"{MF16} {ti(u)}, {Fi(u)}, {BR}, 0")
    for u in range(2):
        a(f"{MF16} {tr(u)}, {NFi(u)}, {BI}, {tr(u)}")
        a(f"{MF16} {ti(u)}, {Fr(u)}, {BI}, {ti(u)}")
    ST.n = 5; ST.stamp()
    a("s_barrier")
    a("s_waitcnt vmcnt(4)")
    for u in range(2):
        for i in range(4):
            a(f"v_lshlrev_b32 v{A_+8*u+i}, 16, v{WW+4*u+i}")
            a(f"v_and_b32 v{A_+8*u+4+i}, 0xffff0000, v{WW+4*u+i}")
    for u in range(2):
        cmul(TR+4*u, TI+4*u, A_+8*u, A_+8*u+4, O1, O1+4)
        packRI(u)
    a("s_nop 1")
    AR, AI = vr(PK, 4), vr(PK+4, 4)
    for t in range(2):
        a(f"{MF16} {tr(t)}, {AR}, {Fr(t)}, 0")
        a(f"{MF16} {ti(t)}, {AR}, {NFi(t)}, 0")
    for t in range(2):
        a(f"{MF16} {tr(t)}, {AI}, {Fi(t)}, {tr(t)}")
        a(f"{MF16} {ti(t)}, {AI}, {Fr(t)}, {ti(t)}")
    a(f"v_and_b32 v{AD}, 15, v1")
    a(f"v_mul_u32_u24 v{AD}, 144, v{AD}")
    a(f"v_lshrrev_b32 v{AD+1}, 4, v1")
    a(f"v_lshl_add_u32 v{AD+2}, v{AD+1}, 3, v{AD}")
    a("s_lshl_b32 s46, s41, 5")
    a(f"s_add_u32 s46, s46, {XB}")
    a(f"v_add_u32 v{AD+2}, s46, v{AD+2}")
    a(f"v_lshl_add_u32 v{AD+3}, v{AD+1}, 4, v{AD}")
    a(f"v_add_u32 v{AD+3}, {XB}, v{AD+3}")
    a("s_waitcnt vmcnt(0)")
    for t in range(2):
        cmul(TR+4*t, TI+4*t, TW2R+8*t, TW2R+8*t+4, O1, O1+4)
        packRI(t)
        a(f"ds_write_b64 v{AD+2}, {vr(PK+2*t,2)} offset:{t*16*144}")
        a(f"ds_write_b64 v{AD+2}, {vr(PK+4+2*t,2)} offset:{4608+t*16*144}")
    a("s_waitcnt lgkmcnt(0)")
    a("s_barrier")
    DR = 60
    for part in range(2):
        for t in range(2):
            for ks in range(2):
                a(f"ds_read_b128 {vr(DR+4*(part*4+t*2+ks),4)}, v{AD+3} offset:{part*4608+t*16*144+ks*64}")
    A1, A2, NA2 = P, Q, NQ
    br = lambda t, ks: vr(DR+4*(t*2+ks), 4); bi = lambda t, ks: vr(DR+4*(4+t*2+ks), 4)
    a("s_waitcnt lgkmcnt(0)")
    for step in range(4):
        ks = step % 2
        for t in range(2):
            cm = "0" if step == 0 else tr(t); cp = "0" if step == 0 else ti(t)
            if step < 2:
                a(f"{MF16} {tr(t)}, {A1(ks)}, {br(t,ks)}, {cm}")
                a(f"{MF16} {ti(t)}, {A2(ks)}, {br(t,ks)}, {cp}")
            else:
                a(f"{MF16} {tr(t)}, {NA2(ks)}, {bi(t,ks)}, {cm}")
                a(f"{MF16} {ti(t)}, {A1(ks)}, {bi(t,ks)}, {cp}")
    a("s_nop 7")
    a("s_cmp_eq_u32 s40, 0")
    a(f"s_cbranch_scc1 {N}_avg")
    a("s_cmp_eq_u32 s40, 224")
    a(f"s_cbranch_scc0 {N}_noavg")
    a(f"{N}_avg:")
    for i in range(8):
        a(f"v_add_f32 v{TR+i}, v{TR+i}, v{TI+i}")
        a(f"v_mul_f32 v{TR+i}, 0.5, v{TR+i}")
        a(f"v_mov_b32 v{TI+i}, v{TR+i}")
    a(f"{N}_noavg:")
    for t in range(2):
        a(f"v_cvt_pk_bf16_f32 v{PK+2*t}, v{TR+4*t}, v{TR+4*t+1}")
        a(f"v_cvt_pk_bf16_f32 v{PK+2*t+1}, v{TR+4*t+2}, v{TR+4*t+3}")
        a(f"v_cvt_pk_bf16_f32 v{PK+4+2*t}, v{TI+4*t}, v{TI+4*t+1}")
        a(f"v_cvt_pk_bf16_f32 v{PK+4+2*t+1}, v{TI+4*t+2}, v{TI+4*t+3}")
    a("v_lshlrev_b32 v2, 3, v1")
    a("s_lshl_b32 s46, s41, 10")
    a("s_lshl_b32 s47, s40, 12")
    a("s_add_u32 s47, s47, s46")
    a(f"s_add_u32 s47, s47, {UT}")
    a("s_lshl_b32 s48, s43, 12")
    a("s_add_u32 s48, s48, s46")
    a(f"s_add_u32 s48, s48, {UT}")
    for t in range(2):
        a(f"buffer_store_dwordx2 {vr(PK+2*t,2)}, v2, {ws}, s47 offen offset:{t*512}{SC}")
        a(f"buffer_store_dwordx2 {vr(PK+4+2*t,2)}, v2, {ws}, s48 offen offset:{t*512}{SC}")
    a("s_setprio 0")
    ST.n = 6; ST.stamp()
    a("s_barrier")
    a("s_waitcnt vmcnt(0)")
    a("s_barrier")
    a("s_cmp_lg_u32 s22, 8")
    a(f"s_cbranch_scc1 {N}_fftd")
    a("s_lshl_b32 s50, s40, 2")
    a(f"s_add_u32 s50, s50, {FU}")
    signal(a, 50)
    a(f"{N}_fftd:")
    for i in range(4): a("s_barrier")
    a(f"s_branch {N}_fftmb")
    a(f"{N}_nofft:")
    for i in range(9): a("s_barrier")
    a(f"{N}_fftmb:")
    a("s_barrier")
    a(f"v_mov_b32 v2, {FLAG}")
    a("ds_read_b32 v2, v2")
    a("s_waitcnt lgkmcnt(0)")
    a("v_readfirstlane_b32 s56, v2")
    a("s_nop 3")
    a("s_cmp_eq_u32 s56, 0")
    a(f"s_cbranch_scc1 {N}_fftok")
    for i in range(11): a("s_barrier")
    a(f"{N}_fftok:")

WREG = 0
TREG = 131072
def p3_decode(a):
    a("s_and_b32 s60, s2, 7")
    a("s_lshr_b32 s45, s2, 3")
    a("s_and_b32 s48, s60, 1")
    a("s_lshr_b32 s46, s60, 1")
    a("s_lshl_b32 s46, s46, 3")
    a("s_and_b32 s47, s45, 7")
    a("s_add_u32 s46, s46, s47")
    a("s_lshr_b32 s49, s45, 3")

def p3_loader(a, N, ST):
    SW = 28
    VT, VW = 10, 12
    a("s_sub_u32 s51, s22, 8")
    a("s_getpc_b64 s[52:53]")
    a("s_add_u32 s52, s52, HTAB@rel32@lo+4")
    a("s_addc_u32 s53, s53, HTAB@rel32@hi+12")
    a("s_cmp_eq_u32 s48, 1")
    a("s_cselect_b32 s54, s52, s8")
    a("s_cselect_b32 s55, s53, s9")
    srd(a, SW, 54, 55, 448*896)
    a("v_lshrrev_b32 v2, 4, v1")
    a("v_mul_u32_u24 v3, 896, v2")
    a("v_lshlrev_b32 v4, 2, v2")
    a("v_and_b32 v5, 15, v1")
    a("v_xor_b32 v4, v4, v5")
    a(f"v_lshl_add_u32 v{VW}, v4, 4, v3")
    a("s_mul_i32 s57, s49, 224")
    a(f"v_add_u32 v{VW}, s57, v{VW}")
    a("s_cmp_eq_u32 s48, 1")
    a(f"s_cbranch_scc1 {N}_wrB")
    a("s_lshr_b32 s61, s51, 1")
    a("s_mul_i32 s61, s61, 28")
    a("s_and_b32 s62, s51, 1")
    a("s_lshl_b32 s63, s62, 4")
    a("s_add_u32 s61, s61, s63")
    a("s_add_u32 s56, s61, 0")
    a("s_add_u32 s57, s61, 4")
    a("s_add_u32 s58, s61, 8")
    a("s_add_u32 s59, s61, 12")
    a("s_cmp_eq_u32 s62, 1")
    a("s_cselect_b32 s59, s58, s59")
    a("s_mov_b32 s60, 56")
    a("s_mov_b32 s64, 8")
    a(f"s_branch {N}_wrd")
    a(f"{N}_wrB:")
    a("s_lshl_b32 s61, s51, 4")
    for ii in range(4): a(f"s_add_u32 s{56+ii}, s61, {4*ii}")
    a("s_mov_b32 s60, 64")
    a("s_mov_b32 s64, 7")
    a(f"{N}_wrd:")
    for ii in range(4): a(f"s_mulk_i32 s{56+ii}, 896")
    a("s_mulk_i32 s60, 896")
    a("s_lshl_b32 s61, s51, 12")
    for c in range(8):
        for ii in range(4):
            a(f"s_add_u32 m0, s61, {WREG + c*16384 + ii*1024}")
            a(f"s_mul_i32 s62, s60, {c}")
            a(f"s_add_u32 s62, s62, s{56+ii}")
            a(f"buffer_load_dwordx4 v{VW}, s[{SW}:{SW+3}], s62 offen lds")
    a("s_cmp_eq_u32 s48, 1")
    a(f"s_cbranch_scc1 {N}_tB")
    a("s_lshl_b32 s56, s46, 1")
    a("s_lshr_b32 s57, s51, 1")
    a("s_add_u32 s56, s56, s57")
    a("s_lshl_b32 s56, s56, 4")
    a("s_and_b32 s57, s51, 1")
    a("s_add_u32 s56, s56, s57")
    a("s_lshl_b32 s56, s56, 11")
    a(f"s_add_u32 s56, s56, {OF}")
    a(f"v_lshlrev_b32 v{VT}, 4, v1")
    a("s_movk_i32 s57, 4096")
    a("s_movk_i32 s58, 1024")
    a(f"s_branch {N}_tD")
    a(f"{N}_tB:")
    a("v_lshrrev_b32 v2, 3, v1")
    a("v_bfe_u32 v3, v1, 4, 1")
    a("v_lshlrev_b32 v3, 2, v3")
    a("v_and_b32 v4, 7, v1")
    a("v_xor_b32 v3, v3, v4")
    a("v_lshlrev_b32 v3, 4, v3")
    a(f"v_lshl_add_u32 v{VT}, v2, 12, v3")
    a("s_lshl_b32 s56, s51, 16")
    a("s_lshl_b32 s57, s46, 7")
    a("s_add_u32 s56, s56, s57")
    a(f"s_add_u32 s56, s56, {UT}")
    a(f"s_mov_b32 s57, {64*4096}")
    a(f"s_mov_b32 s58, {8*4096}")
    a(f"{N}_tD:")
    a("s_lshl_b32 s59, s51, 11")
    a("s_barrier")
    def tok(c):
        slot = c % 4
        a(f"s_add_u32 m0, s59, {TREG + slot*8192}")
        a("s_add_u32 s62, s56, s58")
        a(f"buffer_load_dwordx4 v{VT}, {ws}, s56 offen{SC} lds")
        a(f"s_add_u32 m0, s59, {TREG + slot*8192 + 1024}")
        a("s_nop 0")
        a(f"buffer_load_dwordx4 v{VT}, {ws}, s62 offen{SC} lds")
        a("s_add_u32 s56, s56, s57")
    for c in range(4): tok(c)
    issued = 4
    for c in range(8):
        a(f"s_waitcnt vmcnt({2 * (issued - (c + 1))})")
        a("s_barrier")
        if c >= 1 and issued < 8:
            tok(issued); issued += 1
    fin(a, ST)

def p3_compute(a, N, ST):
    SO = 32
    ACC3 = 32
    TF = [48, 52]; WF3 = [56, 60]
    WA3, TA = 4, 5
    srd(a, SO, 16, 17, 2048*1792)
    a("v_lshrrev_b32 v2, 5, v1")
    a("v_bfe_u32 v3, v1, 2, 2")
    a("v_lshl_add_u32 v2, v2, 2, v3")
    a("v_lshlrev_b32 v16, 8, v2")
    a("v_bfe_u32 v15, v1, 4, 1")
    a("v_lshlrev_b32 v15, 5, v15")
    a("v_and_b32 v17, 3, v1")
    a("v_lshl_add_u32 v15, v17, 3, v15")
    a("s_lshr_b32 s65, s22, 1")
    a("s_mul_i32 s65, s65, 56")
    a("v_add_u32 v17, s65, v15")
    a("v_lshrrev_b32 v18, 4, v17")
    a("v_lshlrev_b32 v19, 2, v3")
    a("v_xor_b32 v18, v18, v19")
    a("v_and_b32 v17, 15, v17")
    a("v_lshl_add_u32 v17, v18, 4, v17")
    a(f"v_add_u32 v{WA3}, v16, v17")
    a("s_and_b32 s65, s22, 1")
    a("s_cmp_eq_u32 s48, 1")
    a(f"s_cbranch_scc1 {N}_raB")
    a("s_lshl_b32 s65, s65, 12")
    a(f"v_lshlrev_b32 v{TA}, 4, v1")
    a(f"v_add_u32 v{TA}, s65, v{TA}")
    a(f"s_branch {N}_radone")
    a(f"{N}_raB:")
    a("s_lshl_b32 s65, s65, 6")
    a("v_add_u32 v17, s65, v15")
    a("v_lshrrev_b32 v18, 4, v17")
    a("v_bfe_u32 v19, v2, 1, 1")
    a("v_lshlrev_b32 v19, 2, v19")
    a("v_xor_b32 v18, v18, v19")
    a("v_and_b32 v17, 15, v17")
    a("v_lshl_add_u32 v17, v18, 4, v17")
    a(f"v_lshl_add_u32 v{TA}, v2, 7, v17")
    a(f"{N}_radone:")
    a(f"v_add_u32 v{TA}, {TREG}, v{TA}")
    for r in range(ACC3, ACC3+16):
        a(f"v_mov_b32 v{r}, 0")
    def main(partB):
        nch = 7 if partB else 8
        nst = nch * 4
        base = [0]
        def reads(n):
            c, kk = n // 4, n % 4
            want = (c // 4) * 65536
            if want != base[0]:
                a(f"v_add_u32 v{WA3}, {want - base[0]:#x}, v{WA3}")
                base[0] = want
            woff = c * 16384 - want
            toff = (c % 4) * 8192
            b = n % 2
            if partB:
                a(f"ds_read_b64_tr_b16 {vr(TF[b],2)}, v{TA} offset:{toff + kk*16*128}")
                a(f"ds_read_b64_tr_b16 {vr(TF[b]+2,2)}, v{TA} offset:{toff + kk*16*128 + 8*128}")
            else:
                a(f"ds_read_b128 {vr(TF[b],4)}, v{TA} offset:{toff + kk*1024}")
            a(f"ds_read_b64_tr_b16 {vr(WF3[b],2)}, v{WA3} offset:{woff + kk*16*256}")
            a(f"ds_read_b64_tr_b16 {vr(WF3[b]+2,2)}, v{WA3} offset:{woff + kk*16*256 + 8*256}")
        nr = 4 if partB else 3
        a("s_barrier")
        reads(0)
        for n in range(nst):
            b = n % 2
            if n + 1 < nst:
                if (n + 1) % 4 == 0:
                    a(f"s_waitcnt lgkmcnt(0)")
                    a("s_barrier")
                    reads(n + 1)
                else:
                    reads(n + 1)
                    a(f"s_waitcnt lgkmcnt({nr})")
            else:
                a("s_waitcnt lgkmcnt(0)")
            d = vr(ACC3, 16)
            a(f"{MF32} {d}, {vr(WF3[b],4)}, {vr(TF[b],4)}, {d}")
        if partB: a("s_barrier")
        a("s_nop 15")
    a("s_cmp_eq_u32 s48, 1")
    a(f"s_cbranch_scc1 {N}_mainB")
    main(False)
    a(f"s_branch {N}_epi")
    a(f"{N}_mainB:")
    main(True)
    a(f"{N}_epi:")
    ST.n = 9; ST.stamp()
    dbgt(a, 8)
    a("s_cmp_eq_u32 s48, 1")
    a(f"s_mov_b32 s65, {f32bits(2.0/(2048*448)):#x}")
    a("s_cselect_b32 s65, s65, 1.0")
    for i in range(16):
        a(f"v_mul_f32 v{ACC3+i}, s65, v{ACC3+i}")
    for i in range(8):
        a(f"v_cvt_pk_bf16_f32 v{48+i}, v{ACC3+2*i}, v{ACC3+2*i+1}")
    a("s_barrier")
    a("v_and_b32 v2, 31, v1")
    a("s_and_b32 s65, s22, 1")
    a("s_lshl_b32 s65, s65, 5")
    a("v_add_u32 v2, s65, v2")
    a("v_mul_u32_u24 v2, 240, v2")
    a("v_lshrrev_b32 v3, 5, v1")
    a("v_lshl_add_u32 v2, v3, 3, v2")
    a("s_lshr_b32 s65, s22, 1")
    a("s_mul_i32 s65, s65, 56")
    a("v_add_u32 v2, s65, v2")
    for jp in range(3):
        a(f"ds_write_b64 v2, {vr(48+2*jp,2)} offset:{jp*16}")
    a("s_mov_b32 exec_hi, 0")
    a(f"ds_write_b64 v2, {vr(48+6,2)} offset:48")
    a("s_mov_b32 exec_hi, -1")
    a("s_waitcnt lgkmcnt(0)")
    a("s_barrier")
    a("s_mul_i32 s65, s48, 896")
    a("s_mul_i32 s66, s49, 224")
    a("s_add_u32 s65, s65, s66")
    def rb(it):
        a("s_lshl_b32 s66, s46, 6")
        a(f"v_add_u32 v4, {512*it}, v0")
        a("v_mul_u32_u24 v5, 4682, v4")
        a("v_lshrrev_b32 v5, 16, v5")
        a("v_mul_u32_u24 v6, 14, v5")
        a("v_sub_u32 v6, v4, v6")
        a("v_mul_u32_u24 v7, 240, v5")
        a("v_lshl_add_u32 v7, v6, 4, v7")
        a(f"ds_read_b128 {vr(32+4*it,4)}, v7")
        a("v_add_u32 v5, s66, v5")
        a("s_cmp_eq_u32 s48, 0")
        a(f"s_cbranch_scc1 {N}_tk{it}")
        a("v_and_b32 v8, 3, v5")
        a("v_bfe_u32 v9, v5, 6, 2")
        a("v_lshl_add_u32 v8, v9, 2, v8")
        a("v_lshrrev_b32 v9, 9, v5")
        a("v_lshl_add_u32 v8, v9, 4, v8")
        a("v_lshlrev_b32 v8, 5, v8")
        a("v_bfe_u32 v9, v5, 8, 1")
        a("v_lshl_add_u32 v8, v9, 4, v8")
        a("v_bfe_u32 v9, v5, 2, 4")
        a("v_add_u32 v5, v8, v9")
        a(f"{N}_tk{it}:")
        a("v_mul_u32_u24 v5, 1792, v5")
        a(f"v_lshl_add_u32 v{20+it}, v6, 4, v5")
    rb(0)
    a("s_waitcnt lgkmcnt(0)")
    a(f"buffer_store_dwordx4 {vr(32,4)}, v20, s[{SO}:{SO+3}], s65 offen")
    a("v_cmp_gt_u32 vcc, 384, v0")
    a("s_and_saveexec_b64 s[66:67], vcc")
    a(f"s_cbranch_execz {N}_fin")
    rb(1)
    a("s_waitcnt lgkmcnt(0)")
    a(f"buffer_store_dwordx4 {vr(36,4)}, v21, s[{SO}:{SO+3}], s65 offen")
    a(f"{N}_fin:")
    if DBGT:
        a("s_mov_b64 exec, -1")
        a("s_waitcnt vmcnt(0)")
        dbgt(a, 9)
    fin(a, ST)
```

```python
from asmlib import *
import struct, math, os
import tables
QF, KV, X1, WT, OF, UT, FL = 0x000000, 0x200000, 0x600000, 0x800000, 0xA00000, 0xC00000, 0xE00000
WS_SIZE = 0xE10000
F1, FW, FO, FU = FL, FL + 0x1000, FL + 0x2000, FL + 0x3000
OOB = 0xF00000 + 0x100000
def f32bits(x): return struct.unpack("<I", struct.pack("<f", x))[0]
QSCALE = f32bits((28 ** -0.5) * math.log2(math.e))
BLOCK = 768
LDS = 163840
MF32 = "v_mfma_f32_32x32x16_bf16"
MF16 = "v_mfma_f32_16x16x32_bf16"
SWS = 24
ws = "s[24:27]"
SC = " sc1"
SPIN = int(os.environ.get('SPIN', '400000'))
E = os.environ.get

def srd(a, d, lo, hi, size):
    a(f"s_mov_b32 s{d}, s{lo}")
    a(f"s_and_b32 s{d+1}, s{hi}, 0xffff")
    a(f"s_mov_b32 s{d+2}, {size}")
    a(f"s_mov_b32 s{d+3}, 0x20000")
def pack(a, src, dst, n=8):
    for i in range(n):
        a(f"v_cvt_pk_bf16_f32 v{dst+i}, v{src+2*i}, v{src+2*i+1}")

_uid = [0]
def uid():
    _uid[0] += 1
    return _uid[0]

def get_tag(a):
    n = uid()
    srd(a, 72, 18, 19, 256)
    a("v_mov_b32 v2, 0")
    a("s_mov_b32 s70, 0")
    a(f"tagL{n}:")
    a("buffer_load_dword v3, v2, s[72:75], 0 offen sc1")
    a("s_waitcnt vmcnt(0)")
    a("v_readfirstlane_b32 s23, v3")
    a("s_nop 3")
    a("s_cmp_lg_u32 s23, 0")
    a(f"s_cbranch_scc1 tagD{n}")
    a("s_add_u32 s70, s70, 1")
    a(f"s_cmp_lt_u32 s70, {SPIN}")
    a("s_sleep 1")
    a(f"s_cbranch_scc1 tagL{n}")
    a(f"tagD{n}:")

def poll(a, voffs, masks=None):
    n = uid()
    a("s_mov_b32 s70, 0")
    a("s_mov_b64 s[68:69], exec")
    a(f"plL{n}:")
    for i, vo in enumerate(voffs):
        if masks and masks[i] is not None: a(f"s_mov_b64 exec, {masks[i]}")
        else: a("s_mov_b64 exec, -1")
        a(f"buffer_load_dword v{160+i}, v{vo}, {ws}, 0 offen sc1")
    a("s_waitcnt vmcnt(0)")
    a("s_mov_b64 s[66:67], 0")
    for i, vo in enumerate(voffs):
        if masks and masks[i] is not None: a(f"s_mov_b64 exec, {masks[i]}")
        else: a("s_mov_b64 exec, -1")
        a(f"v_cmp_ne_u32 vcc, s23, v{160+i}")
        a("s_nop 1")
        a("s_or_b64 s[66:67], s[66:67], vcc")
    a("s_mov_b64 exec, s[68:69]")
    a("s_cmp_eq_u64 s[66:67], 0")
    a(f"s_cbranch_scc1 plD{n}")
    a("s_add_u32 s70, s70, 1")
    a(f"s_cmp_lt_u32 s70, {SPIN}")
    a("s_sleep 2")
    a(f"s_cbranch_scc1 plL{n}")
    a(f"plD{n}:")

def signal(a, off_sgpr):
    a("s_mov_b64 s[68:69], exec")
    a("s_mov_b64 exec, 1")
    a("v_mov_b32 v2, 0")
    a("v_mov_b32 v3, s23")
    a(f"buffer_store_dword v3, v2, {ws}, s{off_sgpr} offen sc1")
    a("s_mov_b64 exec, s[68:69]")

TAGL = 163840 - 16
def signal2(a, off_sgpr):
    a("s_mov_b64 s[62:63], exec")
    a("s_mov_b64 exec, 1")
    a("v_mov_b32 v2, 0")
    a("v_mov_b32 v3, s23")
    a(f"buffer_store_dword v3, v2, {ws}, s{off_sgpr} offen sc1")
    a("s_mov_b64 exec, s[62:63]")

DBGT = os.environ.get("DBGT")
def dbgt(a, idx, mn=False):
    if not DBGT: return
    n = uid()
    a("s_cmp_lg_u32 s22, 0")
    a(f"s_cbranch_scc1 dbt{n}")
    a("s_memrealtime s[64:65]")
    srd(a, 72, 18, 19, 256)
    a("s_waitcnt lgkmcnt(0)")
    a("s_sub_u32 s64, s64, s23")
    a("s_mov_b64 s[66:67], exec")
    a("s_mov_b64 exec, 1")
    a(f"v_mov_b32 v160, {idx*4}")
    a("v_mov_b32 v161, s64")
    a(f"buffer_atomic_umax v161, v160, s[72:75], 0 offen sc1")
    a("s_mov_b64 exec, s[66:67]")
    a(f"dbt{n}:")

def gen(name):
    a = Asm()
    N = "F"
    ST = Stamps(a, 0, 22)
    a("s_cmp_ge_u32 s2, 256")
    a(f"s_cbranch_scc1 {N}_end")
    if STAMP:
        for i in range(76, 100): a(f"s_mov_b32 s{i}, 0")
    ST.stamp(); ST.stamp(True)
    if DBGT: a("s_memrealtime s[98:99]")
    a("s_load_dwordx16 s[4:19], s[0:1], 0")
    a("s_load_dwordx2 s[20:21], s[0:1], 64")
    a("v_and_b32 v1, 63, v0")
    a("v_lshrrev_b32 v2, 6, v0")
    a("s_nop 0")
    a("v_readfirstlane_b32 s22, v2")
    a("s_and_b32 s44, s2, 7")
    a("s_lshr_b32 s45, s2, 3")
    a("s_and_b32 s48, s44, 3")
    a("s_lshr_b32 s46, s44, 2")
    a("s_lshl_b32 s46, s46, 3")
    a("s_and_b32 s47, s45, 7")
    a("s_add_u32 s46, s46, s47")
    a("s_lshr_b32 s49, s45, 3")
    a("s_cmp_ge_u32 s22, 8")
    a(f"s_cbranch_scc1 {N}_aux")
    p1_addr(a)
    a("s_waitcnt lgkmcnt(0)")
    ST.stamp()
    srd(a, SWS, 20, 21, WS_SIZE)
    if DBGT:
        a("s_cmp_lg_u32 s22, 0")
        a(f"s_cbranch_scc1 {N}_dbs")
        srd(a, 72, 18, 19, 256)
        a("s_mov_b64 exec, 1")
        a("v_mov_b32 v160, 40")
        a("v_mov_b32 v161, s98")
        a("buffer_atomic_umax v161, v160, s[72:75], 0 offen sc1")
        a("v_not_b32 v162, v161")
        a("v_mov_b32 v160, 44")
        a("buffer_atomic_umax v162, v160, s[72:75], 0 offen sc1")
        a("s_memrealtime s[96:97]")
        a("s_waitcnt lgkmcnt(0)")
        a("v_mov_b32 v161, s96")
        a("v_mov_b32 v160, 48")
        a("buffer_atomic_umax v161, v160, s[72:75], 0 offen sc1")
        a("s_mov_b64 exec, -1")
        a(f"{N}_dbs:")
    a("s_cmp_lg_u32 s22, 0")
    a(f"s_cbranch_scc1 {N}_notag")
    a("s_cmp_lg_u32 s2, 0")
    a(f"s_cbranch_scc1 {N}_gettag")
    a("s_memrealtime s[70:71]")
    srd(a, 72, 18, 19, 256)
    a("v_mov_b32 v2, 0")
    a("buffer_load_dword v3, v2, s[72:75], 0 offen sc1")
    a("s_waitcnt vmcnt(0) lgkmcnt(0)")
    a("v_readfirstlane_b32 s23, v3")
    a("s_nop 3")
    a("s_cmp_lg_u32 s23, 0")
    a(f"s_cbranch_scc1 {N}_pubtag")
    a("s_or_b32 s23, s70, 1")
    a("s_mov_b64 exec, 1")
    a("v_mov_b32 v3, s23")
    a("buffer_store_dword v3, v2, s[72:75], 0 offen sc1")
    a("s_mov_b64 exec, -1")
    a(f"s_branch {N}_pubtag")
    a(f"{N}_gettag:")
    get_tag(a)
    a(f"{N}_pubtag:")
    a(f"v_mov_b32 v2, {TAGL}")
    a("v_mov_b32 v3, s23")
    a("ds_write_b32 v2, v3")
    a("v_mov_b32 v3, 0")
    a("ds_write_b32 v2, v3 offset:4")
    a("ds_write_b32 v2, v3 offset:8")
    a("ds_write_b32 v2, v3 offset:12")
    a("s_waitcnt lgkmcnt(0)")
    a(f"{N}_notag:")
    dbgt(a, 1)
    p1_compute(a, N, ST)
    a(f"{N}_p1done:")
    a("s_waitcnt vmcnt(0)")
    a(f"v_mov_b32 v2, {TAGL}")
    a("v_mov_b32 v3, 1")
    a("s_mov_b64 exec, 1")
    a("ds_add_rtn_u32 v4, v2, v3 offset:4")
    a("ds_read_b32 v5, v2")
    a("s_mov_b64 exec, -1")
    a("s_waitcnt lgkmcnt(0)")
    a("v_readfirstlane_b32 s50, v4")
    a("v_readfirstlane_b32 s23, v5")
    ST.n = 4; ST.stamp()
    a("s_nop 3")
    dbgt(a, 3)
    a("s_cmp_lg_u32 s50, 7")
    a(f"s_cbranch_scc1 {N}_nosig1")
    a("s_lshl_b32 s50, s48, 2")
    a("s_add_u32 s50, s50, s49")
    a("s_lshl_b32 s50, s50, 7")
    a("s_lshl_b32 s51, s46, 2")
    a("s_add_u32 s50, s50, s51")
    a(f"s_add_u32 s50, s50, {F1}")
    signal(a, 50)
    a(f"{N}_nosig1:")
    a("s_cmp_lg_u32 s22, 0")
    a(f"s_cbranch_scc1 {N}_p2s")
    a("s_and_b32 s41, s2, 7")
    a("s_lshl_b32 s41, s41, 1")
    a("s_bfe_u32 s42, s2, 0x10003")
    a("s_add_u32 s41, s41, s42")
    a("s_lshr_b32 s42, s2, 4")
    a("s_lshr_b32 s43, s41, 2")
    a("v_and_b32 v4, 15, v1")
    a("v_lshlrev_b32 v4, 2, v4")
    a("v_lshrrev_b32 v5, 4, v1")
    a("v_add_u32 v5, 1, v5")
    a("v_cmp_eq_u32 vcc, 3, v5")
    a("s_lshl_b32 s50, s42, 2")
    a("v_mov_b32 v6, s50")
    a("v_cndmask_b32 v5, v5, 0, vcc")
    a("v_cndmask_b32 v4, v4, v6, vcc")
    a("v_lshlrev_b32 v5, 9, v5")
    a("s_lshl_b32 s50, s43, 7")
    a(f"s_add_u32 s50, s50, {F1}")
    a("v_add3_u32 v4, v4, v5, s50")
    a("s_mov_b32 s52, -1")
    a("s_mov_b32 s53, 1")
    poll(a, [4], ["s[52:53]"])
    a(f"{N}_p2s:")
    a("s_barrier")
    ST.stamp()
    dbgt(a, 4)
    p2_attn(a, N, ST)
    a("s_waitcnt vmcnt(0)")
    a("s_barrier")
    ST.n = 7; ST.stamp()
    dbgt(a, 6)
    p3_decode(a)
    a("s_cmp_lg_u32 s22, 0")
    a(f"s_cbranch_scc1 {N}_p3s")
    a("s_lshl_b32 s50, s42, 7")
    a("s_lshl_b32 s51, s41, 2")
    a("s_add_u32 s50, s50, s51")
    a(f"s_add_u32 s50, s50, {FO}")
    signal(a, 50)
    a("s_cmp_eq_u32 s48, 1")
    a(f"s_cbranch_scc1 {N}_pollU")
    a("s_lshr_b32 s50, s46, 1")
    a("s_lshl_b32 s50, s50, 7")
    a(f"s_add_u32 s50, s50, {FO}")
    a("v_lshlrev_b32 v4, 2, v1")
    a("v_add_u32 v4, s50, v4")
    a("s_mov_b32 s52, 0xffff")
    a("s_mov_b32 s53, 0")
    poll(a, [4], ["s[52:53]"])
    a(f"s_branch {N}_p3s")
    a(f"{N}_pollU:")
    a("v_lshlrev_b32 v4, 2, v1")
    a(f"v_add_u32 v4, {FU}, v4")
    for i in range(1, 4): a(f"v_add_u32 v{4+i}, {256*i}, v4")
    a("s_mov_b32 s52, -1")
    a("s_mov_b32 s53, 1")
    poll(a, [4, 5, 6, 7], [None, None, None, "s[52:53]"])
    a(f"{N}_p3s:")
    a("s_barrier")
    ST.stamp()
    dbgt(a, 7)
    p3_compute(a, N, ST)
    a(f"{N}_aux:")
    p1_loader(a, N, ST)
    ST.n = 3; ST.stamp()
    a("s_cmp_lg_u32 s22, 8")
    a(f"s_cbranch_scc1 {N}_ap2s")
    a("s_cmp_gt_u32 s40, 224")
    a(f"s_cbranch_scc1 {N}_ap2s")
    a("s_mul_i32 s50, s40, 586")
    a("s_lshr_b32 s50, s50, 16")
    a("s_sub_u32 s51, 448, s40")
    a("s_cmp_eq_u32 s40, 0")
    a("s_cselect_b32 s51, 0, s51")
    a("s_mul_i32 s51, s51, 586")
    a("s_lshr_b32 s51, s51, 16")
    a("v_and_b32 v150, 15, v1")
    a("v_lshlrev_b32 v150, 2, v150")
    a("v_cmp_lt_u32 vcc, 15, v1")
    a("v_mov_b32 v151, s50")
    a("v_mov_b32 v152, s51")
    a("v_cndmask_b32 v151, v151, v152, vcc")
    a("v_lshlrev_b32 v151, 7, v151")
    a("v_add_u32 v150, v150, v151")
    a(f"v_add_u32 v150, {F1 + 12*128}, v150")
    a("s_lshr_b32 s50, s40, 6")
    a("s_lshl_b32 s50, s50, 8")
    a(f"s_add_u32 s50, s50, {FW}")
    a("v_lshlrev_b32 v151, 2, v1")
    a("v_add_u32 v151, s50, v151")
    a("s_mov_b32 s52, -1")
    a("s_mov_b32 s53, 0")
    poll(a, [150, 151], ["s[52:53]", None])
    a(f"{N}_ap2s:")
    ST.n = 4; ST.stamp()
    a("s_barrier")
    p2_fft(a, N, ST)
    a("s_barrier")
    p3_decode(a)
    p3_loader(a, N, ST)
    a(f"{N}_end:")
    a("s_endpgm")
    return a

def fin(a, ST):
    if STAMP:
        a("s_waitcnt vmcnt(0)")
        ST.end()
        ST.flush(0)
    a("s_endpgm")

ACC = 32
XF = [64, 68]; WF = [[72, 76], [80, 84]]
XA = [4, 5, 6, 7]; WA = [8, 9]
NS1 = 4
def p1_addr(a):
    a("s_and_b32 s62, s22, 3")
    a("s_lshl_b32 s62, s62, 12")
    a("v_and_b32 v2, 31, v1")
    a("v_lshlrev_b32 v3, 7, v2")
    a("v_bfe_u32 v15, v1, 1, 3")
    a("v_lshrrev_b32 v25, 5, v1")
    a("v_xor_b32 v15, v15, v25")
    a("v_lshl_add_u32 v3, v15, 4, v3")
    a(f"v_add_u32 v{XA[0]}, s62, v3")
    for kk in range(1, 4):
        a(f"v_xor_b32 v{XA[kk]}, {kk*32}, v{XA[0]}")
    a("v_lshrrev_b32 v2, 5, v1")
    a("v_bfe_u32 v3, v1, 2, 2")
    a("v_lshl_add_u32 v2, v2, 3, v3")
    a("v_lshlrev_b32 v2, 8, v2")
    a("v_add_u32 v2, 16384, v2")
    a("v_bfe_u32 v15, v1, 4, 1")
    a("v_lshlrev_b32 v15, 5, v15")
    a("v_and_b32 v25, 3, v1")
    a("v_lshl_add_u32 v15, v25, 3, v15")
    a("s_lshr_b32 s62, s22, 2")
    a("s_mul_i32 s62, s62, 112")
    a("v_lshlrev_b32 v26, 2, v3")
    for g in range(2):
        a(f"v_add_u32 v25, s62, v15")
        if g: a(f"v_add_u32 v25, 56, v25")
        a(f"v_lshrrev_b32 v27, 4, v25")
        a(f"v_xor_b32 v27, v27, v26")
        a(f"v_and_b32 v25, 15, v25")
        a(f"v_lshl_add_u32 v25, v27, 4, v25")
        a(f"v_add_u32 v{WA[g]}, v2, v25")
    for r in range(ACC, ACC+32):
        a(f"v_mov_b32 v{r}, 0")

def p1_main(a, ST, qk):
    base = [0]
    def reads(n):
        c, kk = n // 4, n % 4
        slot = c % NS1
        want = (slot // 2) * 65536
        if want != base[0]:
            d = want - base[0]
            for r in XA + WA:
                a(f"v_add_u32 v{r}, {d & 0xffffffff:#x}, v{r}")
            base[0] = want
        off = slot * 32768 - want
        b = n % 2
        a(f"ds_read_b128 {vr(XF[b],4)}, v{XA[kk]} offset:{off}")
        for g in range(2):
            a(f"ds_read_b64_tr_b16 {vr(WF[b][g],2)}, v{WA[g]} offset:{off + kk*16*256}")
            a(f"ds_read_b64_tr_b16 {vr(WF[b][g]+2,2)}, v{WA[g]} offset:{off + kk*16*256 + 4*256}")
    a("s_barrier")
    reads(0)
    for n in range(28):
        b = n % 2
        if n + 1 < 28:
            if (n + 1) % 4 == 0:
                a(f"s_waitcnt lgkmcnt(0)")
                a("s_barrier")
                reads(n + 1)
            else:
                reads(n + 1)
                a("s_waitcnt lgkmcnt(5)")
        else:
            a("s_waitcnt lgkmcnt(0)")
        for g in range(2):
            d = vr(ACC + 16*g, 16)
            if qk: a(f"{MF32} {d}, {vr(WF[b][g],4)}, {vr(XF[b],4)}, {d}")
            else:  a(f"{MF32} {d}, {vr(XF[b],4)}, {vr(WF[b][g],4)}, {d}")
    a("s_nop 15")

def p1_compute(a, N, ST):
    a("s_cmp_ge_u32 s48, 2")
    a(f"s_cbranch_scc1 {N}_vx")
    p1_main(a, ST, True)
    ST.n = 3; ST.stamp()
    dbgt(a, 2)
    def headtile():
        a("s_lshl_b32 s58, s49, 2")
        a("s_lshr_b32 s59, s22, 2")
        a("s_lshl_b32 s59, s59, 1")
        a("s_add_u32 s58, s58, s59")
        a("s_lshl_b32 s58, s58, 6")
        a("s_lshl_b32 s59, s46, 2")
        a("s_add_u32 s58, s58, s59")
        a("s_and_b32 s59, s22, 3")
        a("s_add_u32 s58, s58, s59")
    def stores(gstride):
        for g in range(2):
            for j in range(2):
                a(f"s_add_u32 s59, s58, {g*64*gstride + j*1024}")
                a(f"buffer_store_dwordx4 {vr(64+8*g+4*j,4)}, v2, {ws}, s59 offen{SC}")
    headtile()
    a("v_lshlrev_b32 v2, 4, v1")
    a("s_cmp_eq_u32 s48, 1")
    a(f"s_cbranch_scc1 {N}_kep")
    a(f"s_mov_b32 s62, {QSCALE:#x}")
    for r in range(ACC, ACC+32):
        a(f"v_mul_f32 v{r}, s62, v{r}")
    a("s_mov_b32 exec_lo, 0")
    for g in range(2):
        for r in range(12, 16):
            a(f"v_mov_b32 v{ACC+16*g+r}, 0")
    a("s_mov_b32 exec_lo, -1")
    pack(a, ACC, 64, 16)
    a("s_lshl_b32 s58, s58, 11")
    a(f"s_add_u32 s58, s58, {QF}")
    stores(2048)
    a(f"s_branch {N}_p1done")
    a(f"{N}_kep:")
    a("s_mov_b32 exec_lo, 0")
    for g in range(2):
        a(f"v_mov_b32 v{ACC+16*g+12}, 1.0")
        for r in range(13, 16):
            a(f"v_mov_b32 v{ACC+16*g+r}, 0")
    a("s_mov_b32 exec_lo, -1")
    pack(a, ACC, 64, 16)
    a("s_lshl_b32 s58, s58, 12")
    a(f"s_add_u32 s58, s58, {KV}")
    stores(4096)
    a(f"s_branch {N}_p1done")
    a(f"{N}_vx:")
    p1_main(a, ST, False)
    ST.n = 3; ST.stamp()
    dbgt(a, 2)
    a("s_cmp_eq_u32 s48, 3")
    a(f"s_cbranch_scc1 {N}_xep")
    a("v_and_b32 v2, 31, v1")
    a("v_cmp_lt_u32 vcc, 27, v2")
    a("s_and_saveexec_b64 s[64:65], vcc")
    a("v_cmp_eq_u32 vcc, 28, v2")
    a("s_nop 1")
    a("v_cndmask_b32 v3, 0, 1.0, vcc")
    for r in range(ACC, ACC+32):
        a(f"v_mov_b32 v{r}, v3")
    a("s_mov_b64 exec, s[64:65]")
    pack(a, ACC, 64, 16)
    headtile()
    a("s_lshl_b32 s58, s58, 12")
    a(f"s_add_u32 s58, s58, {KV+2048}")
    a("v_lshlrev_b32 v2, 4, v1")
    stores(4096)
    a(f"s_branch {N}_p1done")
    a(f"{N}_xep:")
    pack(a, ACC, 64, 16)
    a("s_barrier")
    a("s_lshr_b32 s58, s22, 2")
    a("s_mul_i32 s58, s58, 56")
    a("v_and_b32 v2, 31, v1")
    a("v_lshrrev_b32 v3, 5, v1")
    a("s_and_b32 s59, s22, 3")
    a("s_lshl_b32 s59, s59, 2")
    a("v_add_u32 v3, s59, v3")
    a("v_cmp_gt_u32 vcc, 28, v2")
    a("s_and_saveexec_b64 s[64:65], vcc")
    for g in range(2):
        a(f"v_add_u32 v4, s58, v2")
        if g: a("v_add_u32 v4, 28, v4")
        a("v_and_b32 v5, 15, v4")
        for j in range(2):
            a(f"v_add_u32 v6, {2*j}, v3")
            a("v_xor_b32 v6, v6, v5")
            a("v_lshlrev_b32 v6, 4, v6")
            a("v_lshl_add_u32 v6, v4, 8, v6")
            a(f"ds_write_b128 v6, {vr(64+8*g+4*j,4)}")
    a("s_mov_b64 exec, s[64:65]")
    a("s_waitcnt lgkmcnt(0)")
    a("s_barrier")
    a("s_mul_i32 s58, s49, 112")
    a("s_lshl_b32 s58, s58, 12")
    a("s_lshr_b32 s59, s46, 1")
    a("s_lshl_b32 s59, s59, 9")
    a("s_add_u32 s58, s58, s59")
    a("s_and_b32 s59, s46, 1")
    a("s_lshl_b32 s59, s59, 8")
    a("s_add_u32 s58, s58, s59")
    a(f"s_add_u32 s58, s58, {X1}")
    a("v_lshrrev_b32 v2, 4, v0")
    a("v_and_b32 v3, 15, v0")
    def rb(it):
        a(f"v_add_u32 v4, {32*it}, v2")
        a("v_and_b32 v5, 15, v4")
        a("v_xor_b32 v5, v5, v3")
        a("v_lshlrev_b32 v5, 4, v5")
        a("v_lshl_add_u32 v5, v4, 8, v5")
        a(f"ds_read_b128 {vr(32+4*it,4)}, v5")
        a("v_lshlrev_b32 v6, 12, v4")
        a(f"v_lshl_add_u32 v{8+it}, v3, 4, v6")
    for it in range(3):
        rb(it)
    a("s_waitcnt lgkmcnt(0)")
    for it in range(3):
        a(f"buffer_store_dwordx4 {vr(32+4*it,4)}, v{8+it}, {ws}, s58 offen{SC}")
    a("v_add_u32 v4, 96, v2")
    a("v_cmp_gt_u32 vcc, 112, v4")
    a("s_and_saveexec_b64 s[64:65], vcc")
    a(f"s_cbranch_execz {N}_xfin")
    rb(3)
    a("s_waitcnt lgkmcnt(0)")
    a(f"buffer_store_dwordx4 {vr(32+12,4)}, v{8+3}, {ws}, s58 offen{SC}")
    a(f"{N}_xfin:")
    a("s_mov_b64 exec, s[64:65]")

def p1_loader(a, N, ST):
    SX, SW = 28, 32
    VX0, VX1, VW = 10, 11, 12
    PER = 4
    a("s_sub_u32 s51, s22, 8")
    a("s_getpc_b64 s[52:53]")
    a("s_add_u32 s52, s52, HTAB@rel32@lo+4")
    a("s_addc_u32 s53, s53, HTAB@rel32@hi+12")
    a("v_lshrrev_b32 v2, 3, v1")
    a("s_cmp_eq_u32 s48, 3")
    a(f"s_cbranch_scc0 {N}_lp")
    a("v_and_b32 v3, 3, v2")
    a("v_lshlrev_b32 v3, 5, v3")
    a("v_lshrrev_b32 v2, 5, v1")
    a("v_add_u32 v2, v2, v3")
    a(f"{N}_lp:")
    a("v_mul_u32_u24 v2, 896, v2")
    a("v_and_b32 v3, 7, v1")
    a("v_lshrrev_b32 v4, 4, v1")
    a("v_xor_b32 v5, v3, v4")
    a(f"v_lshl_add_u32 v{VX0}, v5, 4, v2")
    a("v_xor_b32 v5, 4, v5")
    a(f"v_lshl_add_u32 v{VX1}, v5, 4, v2")
    TK = 56
    a("s_cmp_eq_u32 s48, 3")
    a(f"s_cbranch_scc1 {N}_ltX")
    a("s_lshl_b32 s66, s46, 7")
    a(f"s_mul_i32 s67, s51, {8*PER}")
    a("s_add_u32 s66, s66, s67")
    for ii in range(PER):
        a(f"s_add_u32 s{TK+ii}, s66, {8*ii}")
    a(f"s_branch {N}_ltd")
    a(f"{N}_ltX:")
    a("s_lshr_b32 s66, s46, 1")
    a("s_lshl_b32 s66, s66, 8")
    a("s_and_b32 s67, s46, 1")
    a("s_lshl_b32 s67, s67, 4")
    a("s_add_u32 s66, s66, s67")
    a(f"s_mul_i32 s67, s51, {PER}")
    a("s_add_u32 s66, s66, s67")
    for ii in range(PER):
        a(f"s_add_u32 s{TK+ii}, s66, {128*(ii&1) + 4*(ii>>2) + 2*((ii>>1)&1)}")
    a(f"{N}_ltd:")
    for ii in range(PER):
        a(f"s_mulk_i32 s{TK+ii}, 896")
    a("s_cmp_eq_u32 s48, 3")
    a(f"s_movk_i32 s64, 2688")
    a(f"s_cselect_b32 s64, 896, s64")
    a("s_mul_i32 s65, s48, 896")
    a("s_cselect_b32 s65, 0, s65")
    a("s_mul_i32 s66, s49, 224")
    a("s_add_u32 s65, s65, s66")
    a("v_lshrrev_b32 v2, 4, v1")
    a("v_mul_lo_u32 v3, v2, s64")
    a("v_lshlrev_b32 v4, 2, v2")
    a("v_and_b32 v5, 15, v1")
    a("v_xor_b32 v4, v4, v5")
    a(f"v_lshl_add_u32 v{VW}, v4, 4, v3")
    a(f"v_add_u32 v{VW}, s65, v{VW}")
    a("s_lshl_b32 s65, s64, 2")
    a(f"s_mul_i32 s66, s64, {4*PER}")
    a("s_mul_i32 s66, s66, s51")
    a("s_lshl_b32 s67, s64, 6")
    a(f"s_mul_i32 s68, s51, {PER*1024}")
    a("s_lshr_b32 s69, s45, 3")
    a("s_add_u32 s69, s69, s45")
    a("s_and_b32 s69, s69, 3")
    a("s_lshl_b32 s69, s69, 1")
    a("s_waitcnt lgkmcnt(0)")
    ST.n = 2; ST.stamp()
    srd(a, SWS, 20, 21, WS_SIZE)
    a("s_cmp_eq_u32 s48, 3")
    a("s_cselect_b32 s54, s10, s4")
    a("s_cselect_b32 s55, s11, s5")
    srd(a, SX, 54, 55, 2048*896)
    a("s_cmp_eq_u32 s48, 3")
    a("s_cselect_b32 s54, s52, s6")
    a("s_cselect_b32 s55, s53, s7")
    a(f"s_mov_b32 s{SW}, s54")
    a(f"s_and_b32 s{SW+1}, s55, 0xffff")
    a("s_cmp_eq_u32 s48, 3")
    a(f"s_mov_b32 s70, {448*2688}")
    a(f"s_cselect_b32 s{SW+2}, {448*896}, s70")
    a(f"s_mov_b32 s{SW+3}, 0x20000")
    def dma(c):
        slot = c % NS1
        a("s_lshl_b32 s70, s69, 7")
        a("s_mul_i32 s71, s69, s67")
        a("s_add_u32 s71, s71, s66")
        for ii in range(PER):
            a(f"s_add_u32 m0, s68, {slot*32768 + ii*1024}")
            a(f"s_add_u32 s54, s{TK+ii}, s70")
            a(f"buffer_load_dwordx4 v{VX0 if ii % 2 == 0 else VX1}, s[{SX}:{SX+3}], s54 offen lds")
            a(f"s_add_u32 m0, s68, {slot*32768 + 16384 + ii*1024}")
            if ii: a("s_add_u32 s71, s71, s65")
            else: a("s_nop 0")
            a(f"buffer_load_dwordx4 v{VW}, s[{SW}:{SW+3}], s71 offen lds")
        a("s_add_u32 s69, s69, 1")
        a("s_cmp_eq_u32 s69, 7")
        a("s_cselect_b32 s69, 0, s69")
    dma(0); dma(1)
    P2 = 2*PER
    waits = {5: P2 + 16, 6: 16}
    for c in range(7):
        a(f"s_waitcnt vmcnt({waits.get(c, P2)})")
        a("s_barrier")
        if c + 2 <= 6: dma(c + 2)
        if c == 4: p1_side_loads(a)
    fft_col(a, 40)
    a("s_mov_b32 s39, s48")
    a("s_cmp_eq_u32 s39, 3")
    a(f"s_cbranch_scc0 {N}_noxe")
    a("s_barrier")
    a("s_barrier")
    a(f"{N}_noxe:")
    p1_side_finish(a, N)
    a("s_cmp_gt_u32 s40, 224")
    a(f"s_cbranch_scc1 {N}_nocol")
    fft_consts(a, N)
    a(f"{N}_nocol:")

SJ = 16
SXB = 131072
def p1_side_loads(a):
    srd(a, 36, 12, 13, 2048*450)
    srd(a, 72, 14, 15, 2048*450)
    a("v_lshlrev_b32 v13, 1, v1")
    a("s_and_b32 s63, s2, 3")
    a("s_lshl_b32 s63, s63, 7")
    for q in range(2):
        a("s_lshr_b32 s60, s2, 2")
        a("s_lshl_b32 s60, s60, 3")
        a("s_lshl_b32 s61, s51, 1")
        a("s_add_u32 s60, s60, s61")
        if q: a("s_add_u32 s60, s60, 1")
        a("s_and_b32 s61, s60, 15")
        a("s_lshr_b32 s62, s60, 7")
        a("s_lshl_b32 s62, s62, 4")
        a("s_add_u32 s61, s61, s62")
        a("s_bfe_u32 s62, s60, 0x10006")
        a("s_lshl_b32 s62, s62, 4")
        a("s_bfe_u32 s54, s60, 0x20004")
        a("s_lshl_b32 s54, s54, 2")
        a("s_add_u32 s62, s62, s54")
        a("s_lshl_b32 s62, s62, 6")
        a("s_add_u32 s61, s61, s62")
        a("s_mulk_i32 s61, 450")
        a("s_add_u32 s61, s61, s63")
        for i in range(4):
            a(f"s_add_u32 s62, s61, {i*28800}")
            a(f"buffer_load_ushort v{SJ+8*q+i}, v13, s[36:39], s62 offen")
            a(f"buffer_load_ushort v{SJ+8*q+4+i}, v13, s[72:75], s62 offen")

def p1_side_finish(a, N):
    a("s_waitcnt vmcnt(0)")
    for q in range(2):
        for i in range(4):
            a(f"v_lshl_or_b32 v{SJ+8*q+i}, v{SJ+8*q+4+i}, 16, v{SJ+8*q+i}")
    a("v_mul_u32_u24 v14, 144, v1")
    a("s_lshl_b32 s60, s51, 5")
    a(f"s_add_u32 s60, s60, {SXB}")
    a("v_add_u32 v14, s60, v14")
    a(f"ds_write_b128 v14, {vr(SJ,4)}")
    a(f"ds_write_b128 v14, {vr(SJ+8,4)} offset:16")
    a(f"v_mov_b32 v2, {TAGL}")
    a("v_mov_b32 v3, 1")
    a("s_waitcnt lgkmcnt(0)")
    a("s_mov_b64 exec, 1")
    a("ds_add_u32 v2, v3 offset:8")
    a("s_mov_b64 exec, -1")
    a("s_mov_b32 s60, 0")
    a(f"{N}_sjw:")
    a("ds_read_b32 v4, v2 offset:8")
    a("ds_read_b32 v5, v2")
    a("s_waitcnt lgkmcnt(0)")
    a("v_readfirstlane_b32 s61, v4")
    a("v_readfirstlane_b32 s23, v5")
    a("s_nop 3")
    a("s_cmp_ge_u32 s61, 4")
    a(f"s_cbranch_scc1 {N}_sjd")
    a("s_add_u32 s60, s60, 1")
    a(f"s_cmp_lt_u32 s60, {SPIN}")
    a("s_sleep 1")
    a(f"s_cbranch_scc1 {N}_sjw")
    a(f"{N}_sjd:")
    a("v_lshrrev_b32 v4, 3, v1")
    a("s_lshl_b32 s60, s51, 4")
    a("v_add_u32 v4, s60, v4")
    a("v_and_b32 v5, 7, v1")
    a("v_mul_u32_u24 v6, 144, v4")
    a("v_lshl_add_u32 v6, v5, 4, v6")
    a(f"v_add_u32 v6, {SXB}, v6")
    a(f"ds_read_b128 {vr(SJ,4)}, v6")
    a(f"ds_read_b128 {vr(SJ+4,4)}, v6 offset:{8*144}")
    a("s_and_b32 s60, s2, 3")
    a("s_lshl_b32 s60, s60, 6")
    a("v_add_u32 v4, s60, v4")
    a("v_lshlrev_b32 v7, 13, v4")
    a("v_lshl_add_u32 v7, v5, 4, v7")
    a("s_lshr_b32 s61, s2, 2")
    a("s_lshl_b32 s61, s61, 7")
    a(f"s_add_u32 s61, s61, {WT}")
    a("s_waitcnt lgkmcnt(0)")
    a("v_cmp_gt_u32 vcc, 225, v4")
    a("s_and_saveexec_b64 s[62:63], vcc")
    a(f"buffer_store_dwordx4 {vr(SJ,4)}, v7, {ws}, s61 offen{SC}")
    a("s_mov_b64 exec, s[62:63]")
    a("v_add_u32 v4, 8, v4")
    a(f"s_add_u32 s61, s61, {8*8192}")
    a("v_cmp_gt_u32 vcc, 225, v4")
    a("s_and_saveexec_b64 s[62:63], vcc")
    a(f"buffer_store_dwordx4 {vr(SJ+4,4)}, v7, {ws}, s61 offen{SC}")
    a("s_mov_b64 exec, s[62:63]")
    a("s_waitcnt vmcnt(0)")
    a("s_mov_b64 exec, 1")
    a("ds_add_rtn_u32 v4, v2, v3 offset:12")
    a("s_mov_b64 exec, -1")
    a("s_waitcnt lgkmcnt(0)")
    a("v_readfirstlane_b32 s60, v4")
    a("s_nop 3")
    a("s_cmp_lg_u32 s60, 3")
    a(f"s_cbranch_scc1 {N}_sjn")
    a("s_and_b32 s60, s2, 3")
    a("s_lshl_b32 s60, s60, 8")
    a("s_lshr_b32 s61, s2, 2")
    a("s_lshl_b32 s61, s61, 2")
    a("s_add_u32 s60, s60, s61")
    a(f"s_add_u32 s60, s60, {FW}")
    signal2(a, 60)
    a(f"{N}_sjn:")

RING = 131072
XB = RING
FLAG = RING + 9216
def p2_attn(a, N, ST):
    QR = 4
    SA, SB = 16, 32
    PR = 48
    OR_ = 56
    KF = [72, 80]; VF = [88, 96]
    VL, VC, VN = 12, 13, 14
    MR = 15
    T0, T1, T2, T3 = 104, 105, 106, 107
    a("s_and_b32 s41, s2, 7")
    a("s_lshl_b32 s41, s41, 1")
    a("s_bfe_u32 s42, s2, 0x10003")
    a("s_add_u32 s41, s41, s42")
    a("s_lshr_b32 s42, s2, 4")
    a("s_and_b32 s43, s22, 3")
    a("s_lshr_b32 s44, s22, 2")
    a(f"v_lshlrev_b32 v{VL}, 4, v1")
    a("s_lshl_b32 s45, s41, 6")
    a("s_lshl_b32 s46, s42, 2")
    a("s_add_u32 s46, s46, s43")
    a("s_add_u32 s47, s45, s46")
    a("s_lshl_b32 s47, s47, 11")
    a(f"s_add_u32 s47, s47, {QF}")
    a("s_lshl_b32 s48, s44, 5")
    a("s_add_u32 s48, s48, s45")
    a("s_add_u32 s48, s48, s43")
    a("s_lshl_b32 s48, s48, 12")
    a(f"s_add_u32 s48, s48, {KV}")
    a("s_lshl_b32 s49, s44, 14")
    a("s_lshl_b32 s50, s43, 12")
    a("s_add_u32 s49, s49, s50")
    a("s_lshl_b32 s50, s44, 14")
    a(f"v_add_u32 v{VC}, s50, v{VL}")
    a("s_mov_b32 s51, 0")
    a("s_and_b32 s59, s42, 7")
    def dma1(goff_s, slot_s, i):
        a(f"s_add_u32 m0, s{slot_s}, {i*1024}")
        a(f"s_add_u32 s54, s{goff_s}, {i*1024}")
        a(f"buffer_load_dwordx4 v{VL}, {ws}, s54 offen{SC} lds")
    def step_goff(dst, s_imm):
        a(f"s_add_u32 s{dst}, s59, {s_imm}")
        a(f"s_and_b32 s{dst}, s{dst}, 7")
        a(f"s_lshl_b32 s{dst}, s{dst}, 14")
        a(f"s_add_u32 s{dst}, s{dst}, s48")
    a(f"buffer_load_dwordx4 {vr(QR,4)}, v{VL}, {ws}, s47 offen{SC}")
    a(f"buffer_load_dwordx4 {vr(QR+4,4)}, v{VL}, {ws}, s47 offen offset:1024{SC}")
    a("s_cmp_lg_u32 s22, 0")
    a(f"s_cbranch_scc1 {N}_noflag")
    a(f"v_mov_b32 v{T0}, {FLAG}")
    a(f"v_mov_b32 v{T1}, 0")
    a(f"ds_write_b32 v{T0}, v{T1}")
    a(f"{N}_noflag:")
    a(f"{N}_restart:")
    step_goff(52, 0)
    a("s_mov_b32 s53, s49")
    for i in range(4): dma1(52, 53, i)
    a(f"v_xor_b32 v{VN}, 0x10000, v{VC}")
    for r in range(OR_, OR_+16):
        a(f"v_mov_b32 v{r}, 0")
    for r in list(range(PR+4, PR+8)) + list(range(VF[1]+4, VF[1]+8)):
        a(f"v_mov_b32 v{r}, 0")
    a("s_waitcnt vmcnt(0) lgkmcnt(0)")
    a("s_barrier")
    def rd(dst, base, off):
        a(f"ds_read_b128 {vr(dst,4)}, v{base} offset:{off}")
    def smf1(S, kb): return f"{MF32} {vr(S,16)}, {vr(KF[kb],4)}, {vr(QR,4)}, 0"
    def smf2(S, kb): return f"{MF32} {vr(S,16)}, {vr(KF[kb]+4,4)}, {vr(QR+4,4)}, {vr(S,16)}"
    rd(KF[0], VC, 0); rd(KF[0]+4, VC, 1024)
    rd(VF[0], VC, 2048); rd(VF[0]+4, VC, 3072)
    rd(KF[1], VC, 4096); rd(KF[1]+4, VC, 4096+1024)
    a("s_cmp_lg_u32 s51, 0")
    a(f"s_cbranch_scc1 {N}_havem")
    a("s_waitcnt lgkmcnt(4)")
    a(smf1(SA, 0)); a(smf2(SA, 0))
    a("s_nop 15")
    s = SA
    a(f"v_max3_f32 v{T0}, v{s}, v{s+1}, v{s+2}")
    a(f"v_max3_f32 v{T1}, v{s+3}, v{s+4}, v{s+5}")
    a(f"v_max3_f32 v{T2}, v{s+6}, v{s+7}, v{s+8}")
    a(f"v_max3_f32 v{T3}, v{s+9}, v{s+10}, v{s+11}")
    a(f"v_max3_f32 v{T0}, v{T0}, v{s+12}, v{s+13}")
    a(f"v_max3_f32 v{T1}, v{T1}, v{s+14}, v{s+15}")
    a(f"v_max3_f32 v{T0}, v{T0}, v{T1}, v{T2}")
    a(f"v_max_f32 v{T0}, v{T0}, v{T3}")
    set_m(a, QR, MR, T0, T1)
    a(f"{N}_havem:")
    a("s_waitcnt lgkmcnt(0)")
    a("s_nop 1")
    a(smf1(SA, 0)); a(smf2(SA, 0))
    a("s_nop 11")
    ST.n = 6; ST.stamp()
    dbgt(a, 5)
    def off(b): return (b // 4) * 32768 + (b % 4) * 4096
    Ex = lambda S, i: a(f"v_exp_f32 v{S+i}, v{S+i}")
    C = lambda S, i: a(f"v_cvt_pk_bf16_f32 v{PR+i}, v{S+2*i}, v{S+2*i+1}")
    def body(first):
        for b in range(8):
            S, Sn = (SA, SB) if b % 2 == 0 else (SB, SA)
            kb = (b + 1) % 2
            vb = b % 2
            pvb = (b + 1) % 2
            refill = False
            if first and b in (0, 1):
                step_goff(52, b + 1)
                a(f"s_add_u32 s53, s49, {(b+1)*32768}")
                refill = True
            if b in (2, 6):
                a("s_lshl_b32 s53, s55, 1")
                a(f"s_add_u32 s53, s53, {3 if b == 2 else 4}")
                a("s_add_u32 s52, s53, s59")
                a("s_and_b32 s52, s52, 7")
                a("s_lshl_b32 s52, s52, 14")
                a("s_add_u32 s52, s52, s48")
                a("s_cmp_gt_u32 s53, 7")
                a(f"s_cselect_b32 s52, {OOB}, s52")
                a("s_and_b32 s53, s53, 3")
                a("s_lshl_b32 s53, s53, 15")
                a("s_add_u32 s53, s53, s49")
                a("s_waitcnt vmcnt(4)")
                a("s_barrier")
                refill = True
            def dm(i):
                if refill: dma1(52, 53, i)
            kbase, koff = (VC, off(b + 2)) if b + 2 < 8 else (VN, off(b + 2 - 8))
            vbase, voff = (VC, off(b + 1)) if b + 1 < 8 else (VN, off(b + 1 - 8))
            Ex(S, 0); Ex(S, 1)
            a(f"{MF32} {vr(OR_,16)}, {vr(VF[pvb]+4,4)}, {vr(PR+4,4)}, {vr(OR_,16)}")
            rd(VF[pvb], vbase, voff + 2048)
            dm(0)
            Ex(S, 2); Ex(S, 3); Ex(S, 4); C(S, 0); C(S, 1)
            a("s_waitcnt lgkmcnt(1)")
            a(smf1(Sn, kb))
            rd(VF[pvb]+4, vbase, voff + 3072)
            dm(1)
            Ex(S, 5); Ex(S, 6); Ex(S, 7); Ex(S, 8); C(S, 2)
            a(smf2(Sn, kb))
            rd(KF[b % 2], kbase, koff)
            dm(2)
            C(S, 3); Ex(S, 9); Ex(S, 10); Ex(S, 11)
            a(f"{MF32} {vr(OR_,16)}, {vr(VF[vb],4)}, {vr(PR,4)}, {vr(OR_,16)}")
            rd(KF[b % 2]+4, kbase, koff + 1024)
            dm(3)
            Ex(S, 12); Ex(S, 13); C(S, 4); Ex(S, 14); Ex(S, 15); C(S, 5); C(S, 6); C(S, 7)
        a(f"v_xor_b32 v{VC}, 0x10000, v{VC}")
        a(f"v_xor_b32 v{VN}, 0x10000, v{VN}")
    a("s_mov_b32 s55, 0")
    body(True)
    a("s_mov_b32 s55, 1")
    a(f"{N}_loop:")
    body(False)
    a("s_add_u32 s55, s55, 1")
    a("s_cmp_lt_u32 s55, 4")
    a(f"s_cbranch_scc1 {N}_loop")
    a(f"{MF32} {vr(OR_,16)}, {vr(VF[1]+4,4)}, {vr(PR+4,4)}, {vr(OR_,16)}")
    a("s_nop 15")
    a("s_waitcnt lgkmcnt(0)")
    LL = T0
    a(f"v_mov_b32 v{T1}, v{OR_+12}")
    a(f"v_mov_b32 v{LL}, v{OR_+12}")
    a("s_nop 1")
    a(f"v_permlane32_swap_b32 v{T1}, v{LL}")
    a("s_cmp_lg_u32 s51, 0")
    a(f"s_cbranch_scc1 {N}_nochk")
    a(f"s_mov_b32 s56, {f32bits(2.0**64):#x}")
    a(f"v_cmp_ngt_f32 vcc, s56, v{LL}")
    a("s_nop 4")
    a(f"s_cbranch_vccz {N}_nochk")
    a(f"v_mov_b32 v{T1}, {FLAG}")
    a(f"v_mov_b32 v{T2}, 1")
    a(f"ds_write_b32 v{T1}, v{T2}")
    a(f"{N}_nochk:")
    a("s_mul_i32 s56, s43, 5120")
    a("s_mul_i32 s57, s44, 2560")
    a("s_add_u32 s57, s57, s56")
    a("s_xor_b32 s58, s44, 1")
    a("s_mul_i32 s58, s58, 2560")
    a("s_add_u32 s58, s58, s56")
    a(f"v_add_u32 v{T1}, s57, v{VL}")
    a(f"v_lshlrev_b32 v{T2}, 3, v1")
    a(f"v_add_u32 v{T2}, s57, v{T2}")
    a(f"v_mov_b32 v{T3+1}, v{MR}")
    a(f"v_mov_b32 v{T3+2}, v{LL}")
    a("s_cmp_eq_u32 s44, 0")
    a(f"s_cbranch_scc1 {N}_send1")
    a(f"ds_write_b128 v{T1}, {vr(OR_,4)}")
    a(f"ds_write_b128 v{T1}, {vr(OR_+4,4)} offset:1024")
    for i in range(8): a(f"v_mov_b32 v{SA+i}, v{OR_+8+i}")
    a(f"s_branch {N}_sent")
    a(f"{N}_send1:")
    a(f"ds_write_b128 v{T1}, {vr(OR_+8,4)}")
    a(f"ds_write_b128 v{T1}, {vr(OR_+12,4)} offset:1024")
    for i in range(8): a(f"v_mov_b32 v{SA+i}, v{OR_+i}")
    a(f"{N}_sent:")
    a(f"ds_write_b64 v{T2}, {vr(T3+1,2)} offset:2048")
    a("s_waitcnt vmcnt(0) lgkmcnt(0)")
    a("s_barrier")
    a(f"v_add_u32 v{T1}, s58, v{VL}")
    a(f"v_lshlrev_b32 v{T2}, 3, v1")
    a(f"v_add_u32 v{T2}, s58, v{T2}")
    a(f"v_mov_b32 v{T3}, {FLAG}")
    a(f"ds_read_b32 v{T3}, v{T3}")
    a(f"ds_read_b128 {vr(SB,4)}, v{T1}")
    a(f"ds_read_b128 {vr(SB+4,4)}, v{T1} offset:1024")
    a(f"ds_read_b64 {vr(SB+8,2)}, v{T2} offset:2048")
    a("s_waitcnt lgkmcnt(0)")
    a("s_cmp_lg_u32 s51, 0")
    a(f"s_cbranch_scc1 {N}_merge")
    a(f"v_readfirstlane_b32 s56, v{T3}")
    a("s_nop 3")
    a("s_cmp_lg_u32 s56, 0")
    a(f"s_cbranch_scc1 {N}_slow")
    a(f"{N}_merge:")
    MP, LP = SB+8, SB+9
    a(f"v_max_f32 v{T1}, v{MR}, v{MP}")
    a(f"v_sub_f32 v{T2}, v{MR}, v{T1}")
    a(f"v_sub_f32 v{T3}, v{MP}, v{T1}")
    a(f"v_exp_f32 v{T2}, v{T2}")
    a(f"v_exp_f32 v{T3}, v{T3}")
    a("s_nop 0")
    a(f"v_mul_f32 v{T1}, v{T2}, v{LL}")
    a(f"v_fmac_f32 v{T1}, v{T3}, v{LP}")
    a(f"v_rcp_f32 v{T1}, v{T1}")
    a("s_nop 0")
    a(f"v_mul_f32 v{T2}, v{T2}, v{T1}")
    a(f"v_mul_f32 v{T3}, v{T3}, v{T1}")
    for i in range(8):
        a(f"v_mul_f32 v{SA+i}, v{T2}, v{SA+i}")
    for i in range(8):
        a(f"v_fmac_f32 v{SA+i}, v{T3}, v{SB+i}")
    a("s_cmp_eq_u32 s44, 0")
    a(f"s_cbranch_scc1 {N}_nopad")
    a("s_mov_b32 exec_lo, 0")
    for i in range(4, 8): a(f"v_mov_b32 v{SA+i}, 0")
    a("s_mov_b32 exec_lo, -1")
    a(f"{N}_nopad:")
    for i in range(4): a(f"v_cvt_pk_bf16_f32 v{PR+i}, v{SA+2*i}, v{SA+2*i+1}")
    a("s_lshl_b32 s56, s46, 4")
    a("s_add_u32 s56, s56, s41")
    a("s_lshl_b32 s56, s56, 1")
    a("s_add_u32 s56, s56, s44")
    a("s_lshl_b32 s56, s56, 10")
    a(f"s_add_u32 s56, s56, {OF}")
    a(f"buffer_store_dwordx4 {vr(PR,4)}, v{VL}, {ws}, s56 offen{SC}")
    a(f"s_branch {N}_p2done")
    a(f"{N}_slow:")
    a("s_mov_b32 s51, 1")
    a("s_mov_b32 exec_lo, 0")
    a(f"v_mov_b32 v{QR+6}, 0")
    a("s_mov_b32 exec_lo, -1")
    a(f"v_mov_b32 v{T0}, 0xff7fffff")
    a("s_lshl_b32 s56, s44, 5")
    a("s_add_u32 s56, s56, s45")
    a("s_lshl_b32 s56, s56, 12")
    a(f"s_add_u32 s56, s56, {KV}")
    a("s_mov_b32 s57, 0")
    a(f"{N}_sloop:")
    a(f"buffer_load_dwordx4 {vr(KF[0],4)}, v{VL}, {ws}, s56 offen{SC}")
    a(f"buffer_load_dwordx4 {vr(KF[0]+4,4)}, v{VL}, {ws}, s56 offen offset:1024{SC}")
    a("s_waitcnt vmcnt(0)")
    a(smf1(SA, 0)); a(smf2(SA, 0))
    a("s_nop 15")
    for i in range(0, 16, 2):
        a(f"v_max3_f32 v{T0}, v{T0}, v{SA+i}, v{SA+i+1}")
    a("s_add_u32 s56, s56, 4096")
    a("s_add_u32 s57, s57, 1")
    a("s_cmp_lt_u32 s57, 32")
    a(f"s_cbranch_scc1 {N}_sloop")
    set_m(a, QR, MR, T0, T1)
    a(f"v_and_b32 v{VC}, 0xffff, v{VC}")
    a("s_barrier")
    a(f"s_branch {N}_restart")
    a(f"{N}_p2done:")

def set_m(a, QR, MR, T0, T1):
    a(f"v_mov_b32 v{T1}, v{T0}")
    a("s_nop 1")
    a(f"v_permlane32_swap_b32 v{T0}, v{T1}")
    a("s_nop 0")
    a(f"v_max_f32 v{T0}, v{T0}, v{T1}")
    a(f"v_cvt_pk_bf16_f32 v{T1}, -v{T0}, 0")
    a(f"v_lshlrev_b32 v{MR}, 16, v{T1}")
    a(f"v_xor_b32 v{MR}, 0x80000000, v{MR}")
    a("s_mov_b32 exec_lo, 0")
    a(f"v_mov_b32 v{QR+6}, v{T1}")
    a("s_mov_b32 exec_lo, -1")

A_, B_ = 4, 20
C1, C3, TW, WW = 36, 60, 84, 100
WI = 108
TW2R = 20
AD = 116
TR, TI = 124, 132
PK = 140
T = 148
SFT = 28
ft = "s[28:31]"
def fft_ld(a, dst, n, sreg, srd_, flag=""):
    for i in range(n):
        if i and i % 4 == 0:
            a(f"s_add_u32 s{sreg}, s{sreg}, 4096")
        a(f"buffer_load_dwordx4 {vr(dst+4*i,4)}, v2, {srd_}, s{sreg} offen offset:{(i%4)*1024}{flag}")
def fft_col(a, d):
    a(f"s_and_b32 s{d}, s2, 7")
    a(f"s_mul_i32 s{d}, s{d}, 28")
    a("s_lshr_b32 s41, s2, 3")
    a(f"s_add_u32 s{d}, s{d}, s41")
    a("s_cmp_lt_u32 s41, 28")
    a(f"s_cselect_b32 s{d}, s{d}, 255")
    a("s_cmp_eq_u32 s2, 224")
    a(f"s_cselect_b32 s{d}, 224, s{d}")
def fft_consts(a, N):
    offs, blob = tables.build()
    a("s_getpc_b64 s[28:29]")
    a("s_add_u32 s28, s28, FTAB@rel32@lo+4")
    a("s_addc_u32 s29, s29, FTAB@rel32@hi+12")
    a("s_and_b32 s29, s29, 0xffff")
    a(f"s_mov_b32 s30, {blob.size*2}")
    a(f"s_mov_b32 s31, 0x20000")
    a("s_sub_u32 s41, s22, 8")
    a("v_lshlrev_b32 v2, 4, v1")
    a("s_mul_i32 s45, s41, 6144")
    a(f"s_add_u32 s46, s45, {offs['C1']}")
    fft_ld(a, C1, 6, 46, ft)
    a("s_lshl_b32 s47, s41, 12")
    a(f"s_add_u32 s46, s47, {offs['TW1']}")
    fft_ld(a, TW, 4, 46, ft)
    a(f"s_mov_b32 s46, {offs['C3']}")
    fft_ld(a, C3, 6, 46, ft)

def p2_fft(a, N, ST):
    a("s_cmp_gt_u32 s40, 224")
    a(f"s_cbranch_scc1 {N}_nofft")
    a("s_setprio 2")
    a("s_sub_u32 s41, s22, 8")
    a("v_lshlrev_b32 v2, 4, v1")
    a("v_lshrrev_b32 v3, 4, v1")
    a("v_lshlrev_b32 v3, 9, v3")
    a(f"v_and_b32 v{T}, 15, v1")
    a(f"v_lshl_add_u32 v3, v{T}, 4, v3")
    a("s_lshl_b32 s42, s40, 12")
    a(f"s_add_u32 s42, s42, {X1}")
    a("s_sub_u32 s43, 448, s40")
    a("s_cmp_eq_u32 s40, 0")
    a("s_cselect_b32 s43, 0, s43")
    a("s_lshl_b32 s44, s43, 12")
    a(f"s_add_u32 s44, s44, {X1}")
    for t in range(2):
        for ks in range(2):
            a(f"buffer_load_dwordx4 {vr(A_+4*(2*t+ks),4)}, v3, {ws}, s42 offen offset:{ks*2048+t*256}{SC}")
            a(f"buffer_load_dwordx4 {vr(B_+4*(2*t+ks),4)}, v3, {ws}, s44 offen offset:{ks*2048+t*256}{SC}")
    a("s_lshl_b32 s46, s40, 13")
    a("s_lshl_b32 s48, s41, 11")
    a("s_add_u32 s46, s46, s48")
    a(f"s_add_u32 s46, s46, {WT}")
    fft_ld(a, WW, 2, 46, ws, SC)
    a("s_barrier")
    a("s_waitcnt vmcnt(2)")
    P = lambda ks: vr(C1+4*ks, 4); Q = lambda ks: vr(C1+8+4*ks, 4); NQ = lambda ks: vr(C1+16+4*ks, 4)
    da = lambda t, ks: vr(A_+4*(2*t+ks), 4); db = lambda t, ks: vr(B_+4*(2*t+ks), 4)
    tr = lambda t: vr(TR+4*t, 4); ti = lambda t: vr(TI+4*t, 4)
    for step in range(4):
        ks = step % 2
        for t in range(2):
            cr = "0" if step == 0 else tr(t); ci = "0" if step == 0 else ti(t)
            if step < 2:
                a(f"{MF16} {tr(t)}, {da(t,ks)}, {P(ks)}, {cr}")
                a(f"{MF16} {ti(t)}, {da(t,ks)}, {NQ(ks)}, {ci}")
            else:
                a(f"{MF16} {tr(t)}, {db(t,ks)}, {Q(ks)}, {cr}")
                a(f"{MF16} {ti(t)}, {db(t,ks)}, {P(ks)}, {ci}")
    offs, _ = tables.build()
    a("v_lshlrev_b32 v2, 4, v1")
    a("s_lshl_b32 s47, s41, 12")
    a(f"s_add_u32 s46, s47, {offs['TW2']}")
    a("s_nop 4")
    fft_ld(a, TW2R, 4, 46, ft)
    def cmul(xr, xi, c, s, outr, outi):
        for p in range(0, 4, 2):
            a(f"v_pk_mul_f32 {vr(T+p,2)}, {vr(xi+p,2)}, {vr(s+p,2)}")
            a(f"v_pk_mul_f32 {vr(T+4+p,2)}, {vr(xi+p,2)}, {vr(c+p,2)}")
        for p in range(0, 4, 2):
            a(f"v_pk_fma_f32 {vr(outr+p,2)}, {vr(xr+p,2)}, {vr(c+p,2)}, {vr(T+p,2)} neg_lo:[0,0,1] neg_hi:[0,0,1]")
            a(f"v_pk_fma_f32 {vr(outi+p,2)}, {vr(xr+p,2)}, {vr(s+p,2)}, {vr(T+4+p,2)}")
    O1 = T + 8
    def packRI(t):
        a(f"v_cvt_pk_bf16_f32 v{PK+2*t}, v{O1}, v{O1+1}")
        a(f"v_cvt_pk_bf16_f32 v{PK+2*t+1}, v{O1+2}, v{O1+3}")
        a(f"v_cvt_pk_bf16_f32 v{PK+4+2*t}, v{O1+4}, v{O1+5}")
        a(f"v_cvt_pk_bf16_f32 v{PK+4+2*t+1}, v{O1+6}, v{O1+7}")
    for t in range(2):
        cmul(TR+4*t, TI+4*t, TW+8*t, TW+8*t+4, O1, O1+4)
        packRI(t)
    a("s_nop 1")
    Fr = lambda u: vr(C3+4*u, 4); Fi = lambda u: vr(C3+8+4*u, 4); NFi = lambda u: vr(C3+16+4*u, 4)
    BR, BI = vr(PK, 4), vr(PK+4, 4)
    for u in range(2):
        a(f"{MF16} {tr(u)}, {Fr(u)}, {BR}, 0")
        a(f"{MF16} {ti(u)}, {Fi(u)}, {BR}, 0")
    for u in range(2):
        a(f"{MF16} {tr(u)}, {NFi(u)}, {BI}, {tr(u)}")
        a(f"{MF16} {ti(u)}, {Fr(u)}, {BI}, {ti(u)}")
    ST.n = 5; ST.stamp()
    a("s_barrier")
    a("s_waitcnt vmcnt(4)")
    for u in range(2):
        for i in range(4):
            a(f"v_lshlrev_b32 v{A_+8*u+i}, 16, v{WW+4*u+i}")
            a(f"v_and_b32 v{A_+8*u+4+i}, 0xffff0000, v{WW+4*u+i}")
    for u in range(2):
        cmul(TR+4*u, TI+4*u, A_+8*u, A_+8*u+4, O1, O1+4)
        packRI(u)
    a("s_nop 1")
    AR, AI = vr(PK, 4), vr(PK+4, 4)
    for t in range(2):
        a(f"{MF16} {tr(t)}, {AR}, {Fr(t)}, 0")
        a(f"{MF16} {ti(t)}, {AR}, {NFi(t)}, 0")
    for t in range(2):
        a(f"{MF16} {tr(t)}, {AI}, {Fi(t)}, {tr(t)}")
        a(f"{MF16} {ti(t)}, {AI}, {Fr(t)}, {ti(t)}")
    a(f"v_and_b32 v{AD}, 15, v1")
    a(f"v_mul_u32_u24 v{AD}, 144, v{AD}")
    a(f"v_lshrrev_b32 v{AD+1}, 4, v1")
    a(f"v_lshl_add_u32 v{AD+2}, v{AD+1}, 3, v{AD}")
    a("s_lshl_b32 s46, s41, 5")
    a(f"s_add_u32 s46, s46, {XB}")
    a(f"v_add_u32 v{AD+2}, s46, v{AD+2}")
    a(f"v_lshl_add_u32 v{AD+3}, v{AD+1}, 4, v{AD}")
    a(f"v_add_u32 v{AD+3}, {XB}, v{AD+3}")
    a("s_waitcnt vmcnt(0)")
    for t in range(2):
        cmul(TR+4*t, TI+4*t, TW2R+8*t, TW2R+8*t+4, O1, O1+4)
        packRI(t)
        a(f"ds_write_b64 v{AD+2}, {vr(PK+2*t,2)} offset:{t*16*144}")
        a(f"ds_write_b64 v{AD+2}, {vr(PK+4+2*t,2)} offset:{4608+t*16*144}")
    a("s_waitcnt lgkmcnt(0)")
    a("s_barrier")
    DR = 60
    for part in range(2):
        for t in range(2):
            for ks in range(2):
                a(f"ds_read_b128 {vr(DR+4*(part*4+t*2+ks),4)}, v{AD+3} offset:{part*4608+t*16*144+ks*64}")
    A1, A2, NA2 = P, Q, NQ
    br = lambda t, ks: vr(DR+4*(t*2+ks), 4); bi = lambda t, ks: vr(DR+4*(4+t*2+ks), 4)
    a("s_waitcnt lgkmcnt(0)")
    for step in range(4):
        ks = step % 2
        for t in range(2):
            cm = "0" if step == 0 else tr(t); cp = "0" if step == 0 else ti(t)
            if step < 2:
                a(f"{MF16} {tr(t)}, {A1(ks)}, {br(t,ks)}, {cm}")
                a(f"{MF16} {ti(t)}, {A2(ks)}, {br(t,ks)}, {cp}")
            else:
                a(f"{MF16} {tr(t)}, {NA2(ks)}, {bi(t,ks)}, {cm}")
                a(f"{MF16} {ti(t)}, {A1(ks)}, {bi(t,ks)}, {cp}")
    a("s_nop 7")
    a("s_cmp_eq_u32 s40, 0")
    a(f"s_cbranch_scc1 {N}_avg")
    a("s_cmp_eq_u32 s40, 224")
    a(f"s_cbranch_scc0 {N}_noavg")
    a(f"{N}_avg:")
    for i in range(8):
        a(f"v_add_f32 v{TR+i}, v{TR+i}, v{TI+i}")
        a(f"v_mul_f32 v{TR+i}, 0.5, v{TR+i}")
        a(f"v_mov_b32 v{TI+i}, v{TR+i}")
    a(f"{N}_noavg:")
    for t in range(2):
        a(f"v_cvt_pk_bf16_f32 v{PK+2*t}, v{TR+4*t}, v{TR+4*t+1}")
        a(f"v_cvt_pk_bf16_f32 v{PK+2*t+1}, v{TR+4*t+2}, v{TR+4*t+3}")
        a(f"v_cvt_pk_bf16_f32 v{PK+4+2*t}, v{TI+4*t}, v{TI+4*t+1}")
        a(f"v_cvt_pk_bf16_f32 v{PK+4+2*t+1}, v{TI+4*t+2}, v{TI+4*t+3}")
    a("v_lshlrev_b32 v2, 3, v1")
    a("s_lshl_b32 s46, s41, 10")
    a("s_lshl_b32 s47, s40, 12")
    a("s_add_u32 s47, s47, s46")
    a(f"s_add_u32 s47, s47, {UT}")
    a("s_lshl_b32 s48, s43, 12")
    a("s_add_u32 s48, s48, s46")
    a(f"s_add_u32 s48, s48, {UT}")
    for t in range(2):
        a(f"buffer_store_dwordx2 {vr(PK+2*t,2)}, v2, {ws}, s47 offen offset:{t*512}{SC}")
        a(f"buffer_store_dwordx2 {vr(PK+4+2*t,2)}, v2, {ws}, s48 offen offset:{t*512}{SC}")
    a("s_setprio 0")
    ST.n = 6; ST.stamp()
    a("s_barrier")
    a("s_waitcnt vmcnt(0)")
    a("s_barrier")
    a("s_cmp_lg_u32 s22, 8")
    a(f"s_cbranch_scc1 {N}_fftd")
    a("s_lshl_b32 s50, s40, 2")
    a(f"s_add_u32 s50, s50, {FU}")
    signal(a, 50)
    a(f"{N}_fftd:")
    for i in range(4): a("s_barrier")
    a(f"s_branch {N}_fftmb")
    a(f"{N}_nofft:")
    for i in range(9): a("s_barrier")
    a(f"{N}_fftmb:")
    a("s_barrier")
    a(f"v_mov_b32 v2, {FLAG}")
    a("ds_read_b32 v2, v2")
    a("s_waitcnt lgkmcnt(0)")
    a("v_readfirstlane_b32 s56, v2")
    a("s_nop 3")
    a("s_cmp_eq_u32 s56, 0")
    a(f"s_cbranch_scc1 {N}_fftok")
    for i in range(11): a("s_barrier")
    a(f"{N}_fftok:")

WREG = 0
TREG = 131072
def p3_decode(a):
    a("s_and_b32 s60, s2, 7")
    a("s_lshr_b32 s45, s2, 3")
    a("s_and_b32 s48, s60, 1")
    a("s_lshr_b32 s46, s60, 1")
    a("s_lshl_b32 s46, s46, 3")
    a("s_and_b32 s47, s45, 7")
    a("s_add_u32 s46, s46, s47")
    a("s_lshr_b32 s49, s45, 3")

def p3_loader(a, N, ST):
    SW = 28
    VT, VW = 10, 12
    a("s_sub_u32 s51, s22, 8")
    a("s_getpc_b64 s[52:53]")
    a("s_add_u32 s52, s52, HTAB@rel32@lo+4")
    a("s_addc_u32 s53, s53, HTAB@rel32@hi+12")
    a("s_cmp_eq_u32 s48, 1")
    a("s_cselect_b32 s54, s52, s8")
    a("s_cselect_b32 s55, s53, s9")
    srd(a, SW, 54, 55, 448*896)
    a("v_lshrrev_b32 v2, 4, v1")
    a("v_mul_u32_u24 v3, 896, v2")
    a("v_lshlrev_b32 v4, 2, v2")
    a("v_and_b32 v5, 15, v1")
    a("v_xor_b32 v4, v4, v5")
    a(f"v_lshl_add_u32 v{VW}, v4, 4, v3")
    a("s_mul_i32 s57, s49, 224")
    a(f"v_add_u32 v{VW}, s57, v{VW}")
    a("s_cmp_eq_u32 s48, 1")
    a(f"s_cbranch_scc1 {N}_wrB")
    a("s_lshr_b32 s61, s51, 1")
    a("s_mul_i32 s61, s61, 28")
    a("s_and_b32 s62, s51, 1")
    a("s_lshl_b32 s63, s62, 4")
    a("s_add_u32 s61, s61, s63")
    a("s_add_u32 s56, s61, 0")
    a("s_add_u32 s57, s61, 4")
    a("s_add_u32 s58, s61, 8")
    a("s_add_u32 s59, s61, 12")
    a("s_cmp_eq_u32 s62, 1")
    a("s_cselect_b32 s59, s58, s59")
    a("s_mov_b32 s60, 56")
    a("s_mov_b32 s64, 8")
    a(f"s_branch {N}_wrd")
    a(f"{N}_wrB:")
    a("s_lshl_b32 s61, s51, 4")
    for ii in range(4): a(f"s_add_u32 s{56+ii}, s61, {4*ii}")
    a("s_mov_b32 s60, 64")
    a("s_mov_b32 s64, 7")
    a(f"{N}_wrd:")
    for ii in range(4): a(f"s_mulk_i32 s{56+ii}, 896")
    a("s_mulk_i32 s60, 896")
    a("s_lshl_b32 s61, s51, 12")
    for c in range(8):
        for ii in range(4):
            a(f"s_add_u32 m0, s61, {WREG + c*16384 + ii*1024}")
            a(f"s_mul_i32 s62, s60, {c}")
            a(f"s_add_u32 s62, s62, s{56+ii}")
            a(f"buffer_load_dwordx4 v{VW}, s[{SW}:{SW+3}], s62 offen lds")
    a("s_cmp_eq_u32 s48, 1")
    a(f"s_cbranch_scc1 {N}_tB")
    a("s_lshl_b32 s56, s46, 1")
    a("s_lshr_b32 s57, s51, 1")
    a("s_add_u32 s56, s56, s57")
    a("s_lshl_b32 s56, s56, 4")
    a("s_and_b32 s57, s51, 1")
    a("s_add_u32 s56, s56, s57")
    a("s_lshl_b32 s56, s56, 11")
    a(f"s_add_u32 s56, s56, {OF}")
    a(f"v_lshlrev_b32 v{VT}, 4, v1")
    a("s_movk_i32 s57, 4096")
    a("s_movk_i32 s58, 1024")
    a(f"s_branch {N}_tD")
    a(f"{N}_tB:")
    a("v_lshrrev_b32 v2, 3, v1")
    a("v_bfe_u32 v3, v1, 4, 1")
    a("v_lshlrev_b32 v3, 2, v3")
    a("v_and_b32 v4, 7, v1")
    a("v_xor_b32 v3, v3, v4")
    a("v_lshlrev_b32 v3, 4, v3")
    a(f"v_lshl_add_u32 v{VT}, v2, 12, v3")
    a("s_lshl_b32 s56, s51, 16")
    a("s_lshl_b32 s57, s46, 7")
    a("s_add_u32 s56, s56, s57")
    a(f"s_add_u32 s56, s56, {UT}")
    a(f"s_mov_b32 s57, {64*4096}")
    a(f"s_mov_b32 s58, {8*4096}")
    a(f"{N}_tD:")
    a("s_lshl_b32 s59, s51, 11")
    a("s_barrier")
    def tok(c):
        slot = c % 4
        a(f"s_add_u32 m0, s59, {TREG + slot*8192}")
        a("s_add_u32 s62, s56, s58")
        a(f"buffer_load_dwordx4 v{VT}, {ws}, s56 offen{SC} lds")
        a(f"s_add_u32 m0, s59, {TREG + slot*8192 + 1024}")
        a("s_nop 0")
        a(f"buffer_load_dwordx4 v{VT}, {ws}, s62 offen{SC} lds")
        a("s_add_u32 s56, s56, s57")
    for c in range(4): tok(c)
    issued = 4
    for c in range(8):
        a(f"s_waitcnt vmcnt({2 * (issued - (c + 1))})")
        a("s_barrier")
        if c >= 1 and issued < 8:
            tok(issued); issued += 1
    fin(a, ST)

def p3_compute(a, N, ST):
    SO = 32
    ACC3 = 32
    TF = [48, 52]; WF3 = [56, 60]
    WA3, TA = 4, 5
    srd(a, SO, 16, 17, 2048*1792)
    a("v_lshrrev_b32 v2, 5, v1")
    a("v_bfe_u32 v3, v1, 2, 2")
    a("v_lshl_add_u32 v2, v2, 2, v3")
    a("v_lshlrev_b32 v16, 8, v2")
    a("v_bfe_u32 v15, v1, 4, 1")
    a("v_lshlrev_b32 v15, 5, v15")
    a("v_and_b32 v17, 3, v1")
    a("v_lshl_add_u32 v15, v17, 3, v15")
    a("s_lshr_b32 s65, s22, 1")
    a("s_mul_i32 s65, s65, 56")
    a("v_add_u32 v17, s65, v15")
    a("v_lshrrev_b32 v18, 4, v17")
    a("v_lshlrev_b32 v19, 2, v3")
    a("v_xor_b32 v18, v18, v19")
    a("v_and_b32 v17, 15, v17")
    a("v_lshl_add_u32 v17, v18, 4, v17")
    a(f"v_add_u32 v{WA3}, v16, v17")
    a("s_and_b32 s65, s22, 1")
    a("s_cmp_eq_u32 s48, 1")
    a(f"s_cbranch_scc1 {N}_raB")
    a("s_lshl_b32 s65, s65, 12")
    a(f"v_lshlrev_b32 v{TA}, 4, v1")
    a(f"v_add_u32 v{TA}, s65, v{TA}")
    a(f"s_branch {N}_radone")
    a(f"{N}_raB:")
    a("s_lshl_b32 s65, s65, 6")
    a("v_add_u32 v17, s65, v15")
    a("v_lshrrev_b32 v18, 4, v17")
    a("v_bfe_u32 v19, v2, 1, 1")
    a("v_lshlrev_b32 v19, 2, v19")
    a("v_xor_b32 v18, v18, v19")
    a("v_and_b32 v17, 15, v17")
    a("v_lshl_add_u32 v17, v18, 4, v17")
    a(f"v_lshl_add_u32 v{TA}, v2, 7, v17")
    a(f"{N}_radone:")
    a(f"v_add_u32 v{TA}, {TREG}, v{TA}")
    for r in range(ACC3, ACC3+16):
        a(f"v_mov_b32 v{r}, 0")
    def main(partB):
        nch = 7 if partB else 8
        nst = nch * 4
        base = [0]
        def reads(n):
            c, kk = n // 4, n % 4
            want = (c // 4) * 65536
            if want != base[0]:
                a(f"v_add_u32 v{WA3}, {want - base[0]:#x}, v{WA3}")
                base[0] = want
            woff = c * 16384 - want
            toff = (c % 4) * 8192
            b = n % 2
            if partB:
                a(f"ds_read_b64_tr_b16 {vr(TF[b],2)}, v{TA} offset:{toff + kk*16*128}")
                a(f"ds_read_b64_tr_b16 {vr(TF[b]+2,2)}, v{TA} offset:{toff + kk*16*128 + 8*128}")
            else:
                a(f"ds_read_b128 {vr(TF[b],4)}, v{TA} offset:{toff + kk*1024}")
            a(f"ds_read_b64_tr_b16 {vr(WF3[b],2)}, v{WA3} offset:{woff + kk*16*256}")
            a(f"ds_read_b64_tr_b16 {vr(WF3[b]+2,2)}, v{WA3} offset:{woff + kk*16*256 + 8*256}")
        nr = 4 if partB else 3
        a("s_barrier")
        reads(0)
        for n in range(nst):
            b = n % 2
            if n + 1 < nst:
                if (n + 1) % 4 == 0:
                    a(f"s_waitcnt lgkmcnt(0)")
                    a("s_barrier")
                    reads(n + 1)
                else:
                    reads(n + 1)
                    a(f"s_waitcnt lgkmcnt({nr})")
            else:
                a("s_waitcnt lgkmcnt(0)")
            d = vr(ACC3, 16)
            a(f"{MF32} {d}, {vr(WF3[b],4)}, {vr(TF[b],4)}, {d}")
        if partB: a("s_barrier")
        a("s_nop 15")
    a("s_cmp_eq_u32 s48, 1")
    a(f"s_cbranch_scc1 {N}_mainB")
    main(False)
    a(f"s_branch {N}_epi")
    a(f"{N}_mainB:")
    main(True)
    a(f"{N}_epi:")
    ST.n = 9; ST.stamp()
    dbgt(a, 8)
    a("s_cmp_eq_u32 s48, 1")
    a(f"s_mov_b32 s65, {f32bits(2.0/(2048*448)):#x}")
    a("s_cselect_b32 s65, s65, 1.0")
    for i in range(16):
        a(f"v_mul_f32 v{ACC3+i}, s65, v{ACC3+i}")
    for i in range(8):
        a(f"v_cvt_pk_bf16_f32 v{48+i}, v{ACC3+2*i}, v{ACC3+2*i+1}")
    a("s_barrier")
    a("v_and_b32 v2, 31, v1")
    a("s_and_b32 s65, s22, 1")
    a("s_lshl_b32 s65, s65, 5")
    a("v_add_u32 v2, s65, v2")
    a("v_mul_u32_u24 v2, 240, v2")
    a("v_lshrrev_b32 v3, 5, v1")
    a("v_lshl_add_u32 v2, v3, 3, v2")
    a("s_lshr_b32 s65, s22, 1")
    a("s_mul_i32 s65, s65, 56")
    a("v_add_u32 v2, s65, v2")
    for jp in range(3):
        a(f"ds_write_b64 v2, {vr(48+2*jp,2)} offset:{jp*16}")
    a("s_mov_b32 exec_hi, 0")
    a(f"ds_write_b64 v2, {vr(48+6,2)} offset:48")
    a("s_mov_b32 exec_hi, -1")
    a("s_waitcnt lgkmcnt(0)")
    a("s_barrier")
    a("s_mul_i32 s65, s48, 896")
    a("s_mul_i32 s66, s49, 224")
    a("s_add_u32 s65, s65, s66")
    def rb(it):
        a("s_lshl_b32 s66, s46, 6")
        a(f"v_add_u32 v4, {512*it}, v0")
        a("v_mul_u32_u24 v5, 4682, v4")
        a("v_lshrrev_b32 v5, 16, v5")
        a("v_mul_u32_u24 v6, 14, v5")
        a("v_sub_u32 v6, v4, v6")
        a("v_mul_u32_u24 v7, 240, v5")
        a("v_lshl_add_u32 v7, v6, 4, v7")
        a(f"ds_read_b128 {vr(32+4*it,4)}, v7")
        a("v_add_u32 v5, s66, v5")
        a("s_cmp_eq_u32 s48, 0")
        a(f"s_cbranch_scc1 {N}_tk{it}")
        a("v_and_b32 v8, 3, v5")
        a("v_bfe_u32 v9, v5, 6, 2")
        a("v_lshl_add_u32 v8, v9, 2, v8")
        a("v_lshrrev_b32 v9, 9, v5")
        a("v_lshl_add_u32 v8, v9, 4, v8")
        a("v_lshlrev_b32 v8, 5, v8")
        a("v_bfe_u32 v9, v5, 8, 1")
        a("v_lshl_add_u32 v8, v9, 4, v8")
        a("v_bfe_u32 v9, v5, 2, 4")
        a("v_add_u32 v5, v8, v9")
        a(f"{N}_tk{it}:")
        a("v_mul_u32_u24 v5, 1792, v5")
        a(f"v_lshl_add_u32 v{20+it}, v6, 4, v5")
    rb(0)
    a("s_waitcnt lgkmcnt(0)")
    a(f"buffer_store_dwordx4 {vr(32,4)}, v20, s[{SO}:{SO+3}], s65 offen")
    a("v_cmp_gt_u32 vcc, 384, v0")
    a("s_and_saveexec_b64 s[66:67], vcc")
    a(f"s_cbranch_execz {N}_fin")
    rb(1)
    a("s_waitcnt lgkmcnt(0)")
    a(f"buffer_store_dwordx4 {vr(36,4)}, v21, s[{SO}:{SO+3}], s65 offen")
    a(f"{N}_fin:")
    if DBGT:
        a("s_mov_b64 exec, -1")
        a("s_waitcnt vmcnt(0)")
        dbgt(a, 9)
    fin(a, ST)
```

```python
from asmlib import *
import struct, math, os
import tables
QF, KV, X1, WT, OF, UT, FL = 0x000000, 0x200000, 0x600000, 0x800000, 0xA00000, 0xC00000, 0xE00000
WS_SIZE = 0xE10000
F1, FW, FO, FU = FL, FL + 0x1000, FL + 0x2000, FL + 0x3000
OOB = 0xF00000 + 0x100000
def f32bits(x): return struct.unpack("<I", struct.pack("<f", x))[0]
QSCALE = f32bits((28 ** -0.5) * math.log2(math.e))
BLOCK = 768
LDS = 163840
MF32 = "v_mfma_f32_32x32x16_bf16"
MF16 = "v_mfma_f32_16x16x32_bf16"
SWS = 24
ws = "s[24:27]"
SC = " sc1"
SPIN = int(os.environ.get('SPIN', '400000'))
E = os.environ.get

def srd(a, d, lo, hi, size):
    a(f"s_mov_b32 s{d}, s{lo}")
    a(f"s_and_b32 s{d+1}, s{hi}, 0xffff")
    a(f"s_mov_b32 s{d+2}, {size}")
    a(f"s_mov_b32 s{d+3}, 0x20000")
def pack(a, src, dst, n=8):
    for i in range(n):
        a(f"v_cvt_pk_bf16_f32 v{dst+i}, v{src+2*i}, v{src+2*i+1}")

_uid = [0]
def uid():
    _uid[0] += 1
    return _uid[0]

def get_tag(a):
    n = uid()
    srd(a, 72, 18, 19, 256)
    a("v_mov_b32 v2, 0")
    a("s_mov_b32 s70, 0")
    a(f"tagL{n}:")
    a("buffer_load_dword v3, v2, s[72:75], 0 offen sc1")
    a("s_waitcnt vmcnt(0)")
    a("v_readfirstlane_b32 s23, v3")
    a("s_nop 3")
    a("s_cmp_lg_u32 s23, 0")
    a(f"s_cbranch_scc1 tagD{n}")
    a("s_add_u32 s70, s70, 1")
    a(f"s_cmp_lt_u32 s70, {SPIN}")
    a("s_sleep 1")
    a(f"s_cbranch_scc1 tagL{n}")
    a(f"tagD{n}:")

def poll(a, voffs, masks=None):
    n = uid()
    a("s_mov_b32 s70, 0")
    a("s_mov_b64 s[68:69], exec")
    a(f"plL{n}:")
    for i, vo in enumerate(voffs):
        if masks and masks[i] is not None: a(f"s_mov_b64 exec, {masks[i]}")
        else: a("s_mov_b64 exec, -1")
        a(f"buffer_load_dword v{160+i}, v{vo}, {ws}, 0 offen sc1")
    a("s_waitcnt vmcnt(0)")
    a("s_mov_b64 s[66:67], 0")
    for i, vo in enumerate(voffs):
        if masks and masks[i] is not None: a(f"s_mov_b64 exec, {masks[i]}")
        else: a("s_mov_b64 exec, -1")
        a(f"v_cmp_ne_u32 vcc, s23, v{160+i}")
        a("s_nop 1")
        a("s_or_b64 s[66:67], s[66:67], vcc")
    a("s_mov_b64 exec, s[68:69]")
    a("s_cmp_eq_u64 s[66:67], 0")
    a(f"s_cbranch_scc1 plD{n}")
    a("s_add_u32 s70, s70, 1")
    a(f"s_cmp_lt_u32 s70, {SPIN}")
    a("s_sleep 2")
    a(f"s_cbranch_scc1 plL{n}")
    a(f"plD{n}:")

def signal(a, off_sgpr):
    a("s_mov_b64 s[68:69], exec")
    a("s_mov_b64 exec, 1")
    a("v_mov_b32 v2, 0")
    a("v_mov_b32 v3, s23")
    a(f"buffer_store_dword v3, v2, {ws}, s{off_sgpr} offen sc1")
    a("s_mov_b64 exec, s[68:69]")

TAGL = 163840 - 16
def signal2(a, off_sgpr):
    a("s_mov_b64 s[62:63], exec")
    a("s_mov_b64 exec, 1")
    a("v_mov_b32 v2, 0")
    a("v_mov_b32 v3, s23")
    a(f"buffer_store_dword v3, v2, {ws}, s{off_sgpr} offen sc1")
    a("s_mov_b64 exec, s[62:63]")

DBGT = os.environ.get("DBGT")
def dbgt(a, idx, mn=False):
    if not DBGT: return
    a(f"s_memrealtime s[{76+2*idx}:{77+2*idx}]")
def dbgt_dump(a):
    if not DBGT: return
    n = uid()
    a("s_cmp_lg_u32 s22, 0")
    a(f"s_cbranch_scc1 dbt{n}")
    a(f"s_cmp_lg_u32 s2, {DBGT}")
    a(f"s_cbranch_scc1 dbt{n}")
    a("s_waitcnt lgkmcnt(0)")
    srd(a, 72, 18, 19, 256)
    a("s_mov_b64 exec, 1")
    a("v_mov_b32 v160, 0")
    for i in range(0, 11):
        a(f"s_sub_u32 s64, s{76+2*i}, s76")
        a("v_mov_b32 v161, s64")
        a(f"buffer_store_dword v161, v160, s[72:75], 0 offen offset:{4*(i+1)}")
        a("s_nop 1")
    a(f"s_sub_u32 s64, s76, s23")
    a("v_mov_b32 v161, s64")
    a(f"buffer_store_dword v161, v160, s[72:75], 0 offen offset:{4*12}")
    a(f"dbt{n}:")

def gen(name):
    a = Asm()
    N = "F"
    ST = Stamps(a, 0, 22)
    a("s_cmp_ge_u32 s2, 256")
    a(f"s_cbranch_scc1 {N}_end")
    if STAMP:
        for i in range(76, 100): a(f"s_mov_b32 s{i}, 0")
    ST.stamp(); ST.stamp(True)
    dbgt(a, 0)
    a("s_load_dwordx16 s[4:19], s[0:1], 0")
    a("s_load_dwordx2 s[20:21], s[0:1], 64")
    a("v_and_b32 v1, 63, v0")
    a("v_lshrrev_b32 v2, 6, v0")
    a("s_nop 0")
    a("v_readfirstlane_b32 s22, v2")
    a("s_and_b32 s44, s2, 7")
    a("s_lshr_b32 s45, s2, 3")
    a("s_and_b32 s48, s44, 3")
    a("s_lshr_b32 s46, s44, 2")
    a("s_lshl_b32 s46, s46, 3")
    a("s_and_b32 s47, s45, 7")
    a("s_add_u32 s46, s46, s47")
    a("s_lshr_b32 s49, s45, 3")
    a("s_cmp_ge_u32 s22, 8")
    a(f"s_cbranch_scc1 {N}_aux")
    p1_addr(a)
    a("s_waitcnt lgkmcnt(0)")
    ST.stamp()
    srd(a, SWS, 20, 21, WS_SIZE)
    a("s_cmp_lg_u32 s22, 0")
    a(f"s_cbranch_scc1 {N}_notag")
    a("s_cmp_lg_u32 s2, 0")
    a(f"s_cbranch_scc1 {N}_gettag")
    a("s_memrealtime s[70:71]")
    srd(a, 72, 18, 19, 256)
    a("v_mov_b32 v2, 0")
    a("buffer_load_dword v3, v2, s[72:75], 0 offen sc1")
    a("s_waitcnt vmcnt(0) lgkmcnt(0)")
    a("v_readfirstlane_b32 s23, v3")
    a("s_nop 3")
    a("s_cmp_lg_u32 s23, 0")
    a(f"s_cbranch_scc1 {N}_pubtag")
    a("s_or_b32 s23, s70, 1")
    a("s_mov_b64 exec, 1")
    a("v_mov_b32 v3, s23")
    a("buffer_store_dword v3, v2, s[72:75], 0 offen sc1")
    a("s_mov_b64 exec, -1")
    a(f"s_branch {N}_pubtag")
    a(f"{N}_gettag:")
    get_tag(a)
    a(f"{N}_pubtag:")
    a(f"v_mov_b32 v2, {TAGL}")
    a("v_mov_b32 v3, s23")
    a("ds_write_b32 v2, v3")
    a("v_mov_b32 v3, 0")
    a("ds_write_b32 v2, v3 offset:4")
    a("ds_write_b32 v2, v3 offset:8")
    a("ds_write_b32 v2, v3 offset:12")
    a("s_waitcnt lgkmcnt(0)")
    a(f"{N}_notag:")
    dbgt(a, 1)
    p1_compute(a, N, ST)
    a(f"{N}_p1done:")
    a("s_waitcnt vmcnt(0)")
    a(f"v_mov_b32 v2, {TAGL}")
    a("v_mov_b32 v3, 1")
    a("s_mov_b64 exec, 1")
    a("ds_add_rtn_u32 v4, v2, v3 offset:4")
    a("ds_read_b32 v5, v2")
    a("s_mov_b64 exec, -1")
    a("s_waitcnt lgkmcnt(0)")
    a("v_readfirstlane_b32 s50, v4")
    a("v_readfirstlane_b32 s23, v5")
    ST.n = 4; ST.stamp()
    a("s_nop 3")
    dbgt(a, 3)
    a("s_cmp_lg_u32 s50, 7")
    a(f"s_cbranch_scc1 {N}_nosig1")
    a("s_lshl_b32 s50, s48, 2")
    a("s_add_u32 s50, s50, s49")
    a("s_lshl_b32 s50, s50, 7")
    a("s_lshl_b32 s51, s46, 2")
    a("s_add_u32 s50, s50, s51")
    a(f"s_add_u32 s50, s50, {F1}")
    signal(a, 50)
    a(f"{N}_nosig1:")
    a("s_cmp_lg_u32 s22, 0")
    a(f"s_cbranch_scc1 {N}_p2s")
    a("s_and_b32 s41, s2, 7")
    a("s_lshl_b32 s41, s41, 1")
    a("s_bfe_u32 s42, s2, 0x10003")
    a("s_add_u32 s41, s41, s42")
    a("s_lshr_b32 s42, s2, 4")
    a("s_lshr_b32 s43, s41, 2")
    a("v_and_b32 v4, 15, v1")
    a("v_lshlrev_b32 v4, 2, v4")
    a("v_lshrrev_b32 v5, 4, v1")
    a("v_add_u32 v5, 1, v5")
    a("v_cmp_eq_u32 vcc, 3, v5")
    a("s_lshl_b32 s50, s42, 2")
    a("v_mov_b32 v6, s50")
    a("v_cndmask_b32 v5, v5, 0, vcc")
    a("v_cndmask_b32 v4, v4, v6, vcc")
    a("v_lshlrev_b32 v5, 9, v5")
    a("s_lshl_b32 s50, s43, 7")
    a(f"s_add_u32 s50, s50, {F1}")
    a("v_add3_u32 v4, v4, v5, s50")
    a("s_mov_b32 s52, -1")
    a("s_mov_b32 s53, 1")
    poll(a, [4], ["s[52:53]"])
    a(f"{N}_p2s:")
    a("s_barrier")
    ST.stamp()
    dbgt(a, 4)
    p2_attn(a, N, ST)
    a("s_waitcnt vmcnt(0)")
    a("s_barrier")
    ST.n = 7; ST.stamp()
    dbgt(a, 6)
    p3_decode(a)
    a("s_cmp_lg_u32 s22, 0")
    a(f"s_cbranch_scc1 {N}_p3s")
    a("s_lshl_b32 s50, s42, 7")
    a("s_lshl_b32 s51, s41, 2")
    a("s_add_u32 s50, s50, s51")
    a(f"s_add_u32 s50, s50, {FO}")
    signal(a, 50)
    a("s_cmp_eq_u32 s48, 1")
    a(f"s_cbranch_scc1 {N}_pollU")
    a("s_lshr_b32 s50, s46, 1")
    a("s_lshl_b32 s50, s50, 7")
    a(f"s_add_u32 s50, s50, {FO}")
    a("v_lshlrev_b32 v4, 2, v1")
    a("v_add_u32 v4, s50, v4")
    a("s_mov_b32 s52, 0xffff")
    a("s_mov_b32 s53, 0")
    poll(a, [4], ["s[52:53]"])
    a(f"s_branch {N}_p3s")
    a(f"{N}_pollU:")
    a("v_lshlrev_b32 v4, 2, v1")
    a(f"v_add_u32 v4, {FU}, v4")
    for i in range(1, 4): a(f"v_add_u32 v{4+i}, {256*i}, v4")
    a("s_mov_b32 s52, -1")
    a("s_mov_b32 s53, 1")
    poll(a, [4, 5, 6, 7], [None, None, None, "s[52:53]"])
    a(f"{N}_p3s:")
    a("s_barrier")
    ST.stamp()
    dbgt(a, 7)
    p3_compute(a, N, ST)
    a(f"{N}_aux:")
    p1_loader(a, N, ST)
    ST.n = 3; ST.stamp()
    a("s_cmp_lg_u32 s22, 8")
    a(f"s_cbranch_scc1 {N}_ap2s")
    a("s_cmp_gt_u32 s40, 224")
    a(f"s_cbranch_scc1 {N}_ap2s")
    a("s_mul_i32 s50, s40, 586")
    a("s_lshr_b32 s50, s50, 16")
    a("s_sub_u32 s51, 448, s40")
    a("s_cmp_eq_u32 s40, 0")
    a("s_cselect_b32 s51, 0, s51")
    a("s_mul_i32 s51, s51, 586")
    a("s_lshr_b32 s51, s51, 16")
    a("v_and_b32 v150, 15, v1")
    a("v_lshlrev_b32 v150, 2, v150")
    a("v_cmp_lt_u32 vcc, 15, v1")
    a("v_mov_b32 v151, s50")
    a("v_mov_b32 v152, s51")
    a("v_cndmask_b32 v151, v151, v152, vcc")
    a("v_lshlrev_b32 v151, 7, v151")
    a("v_add_u32 v150, v150, v151")
    a(f"v_add_u32 v150, {F1 + 12*128}, v150")
    a("s_lshr_b32 s50, s40, 6")
    a("s_lshl_b32 s50, s50, 8")
    a(f"s_add_u32 s50, s50, {FW}")
    a("v_lshlrev_b32 v151, 2, v1")
    a("v_add_u32 v151, s50, v151")
    a("s_mov_b32 s52, -1")
    a("s_mov_b32 s53, 0")
    poll(a, [150, 151], ["s[52:53]", None])
    a(f"{N}_ap2s:")
    ST.n = 4; ST.stamp()
    a("s_barrier")
    p2_fft(a, N, ST)
    a("s_barrier")
    p3_decode(a)
    p3_loader(a, N, ST)
    a(f"{N}_end:")
    a("s_endpgm")
    return a

def fin(a, ST):
    if STAMP:
        a("s_waitcnt vmcnt(0)")
        ST.end()
        ST.flush(0)
    a("s_endpgm")

ACC = 32
XF = [64, 68]; WF = [[72, 76], [80, 84]]
XA = [4, 5, 6, 7]; WA = [8, 9]
NS1 = 4
def p1_addr(a):
    a("s_and_b32 s62, s22, 3")
    a("s_lshl_b32 s62, s62, 12")
    a("v_and_b32 v2, 31, v1")
    a("v_lshlrev_b32 v3, 7, v2")
    a("v_bfe_u32 v15, v1, 1, 3")
    a("v_lshrrev_b32 v25, 5, v1")
    a("v_xor_b32 v15, v15, v25")
    a("v_lshl_add_u32 v3, v15, 4, v3")
    a(f"v_add_u32 v{XA[0]}, s62, v3")
    for kk in range(1, 4):
        a(f"v_xor_b32 v{XA[kk]}, {kk*32}, v{XA[0]}")
    a("v_lshrrev_b32 v2, 5, v1")
    a("v_bfe_u32 v3, v1, 2, 2")
    a("v_lshl_add_u32 v2, v2, 3, v3")
    a("v_lshlrev_b32 v2, 8, v2")
    a("v_add_u32 v2, 16384, v2")
    a("v_bfe_u32 v15, v1, 4, 1")
    a("v_lshlrev_b32 v15, 5, v15")
    a("v_and_b32 v25, 3, v1")
    a("v_lshl_add_u32 v15, v25, 3, v15")
    a("s_lshr_b32 s62, s22, 2")
    a("s_mul_i32 s62, s62, 112")
    a("v_lshlrev_b32 v26, 2, v3")
    for g in range(2):
        a(f"v_add_u32 v25, s62, v15")
        if g: a(f"v_add_u32 v25, 56, v25")
        a(f"v_lshrrev_b32 v27, 4, v25")
        a(f"v_xor_b32 v27, v27, v26")
        a(f"v_and_b32 v25, 15, v25")
        a(f"v_lshl_add_u32 v25, v27, 4, v25")
        a(f"v_add_u32 v{WA[g]}, v2, v25")
    for r in range(ACC, ACC+32):
        a(f"v_mov_b32 v{r}, 0")

def p1_main(a, ST, qk):
    base = [0]
    def reads(n):
        c, kk = n // 4, n % 4
        slot = c % NS1
        want = (slot // 2) * 65536
        if want != base[0]:
            d = want - base[0]
            for r in XA + WA:
                a(f"v_add_u32 v{r}, {d & 0xffffffff:#x}, v{r}")
            base[0] = want
        off = slot * 32768 - want
        b = n % 2
        a(f"ds_read_b128 {vr(XF[b],4)}, v{XA[kk]} offset:{off}")
        for g in range(2):
            a(f"ds_read_b64_tr_b16 {vr(WF[b][g],2)}, v{WA[g]} offset:{off + kk*16*256}")
            a(f"ds_read_b64_tr_b16 {vr(WF[b][g]+2,2)}, v{WA[g]} offset:{off + kk*16*256 + 4*256}")
    a("s_barrier")
    reads(0)
    for n in range(28):
        b = n % 2
        if n + 1 < 28:
            if (n + 1) % 4 == 0:
                a(f"s_waitcnt lgkmcnt(0)")
                a("s_barrier")
                reads(n + 1)
            else:
                reads(n + 1)
                a("s_waitcnt lgkmcnt(5)")
        else:
            a("s_waitcnt lgkmcnt(0)")
        for g in range(2):
            d = vr(ACC + 16*g, 16)
            if qk: a(f"{MF32} {d}, {vr(WF[b][g],4)}, {vr(XF[b],4)}, {d}")
            else:  a(f"{MF32} {d}, {vr(XF[b],4)}, {vr(WF[b][g],4)}, {d}")
    a("s_nop 15")

def p1_compute(a, N, ST):
    a("s_cmp_ge_u32 s48, 2")
    a(f"s_cbranch_scc1 {N}_vx")
    p1_main(a, ST, True)
    ST.n = 3; ST.stamp()
    dbgt(a, 2)
    def headtile():
        a("s_lshl_b32 s58, s49, 2")
        a("s_lshr_b32 s59, s22, 2")
        a("s_lshl_b32 s59, s59, 1")
        a("s_add_u32 s58, s58, s59")
        a("s_lshl_b32 s58, s58, 6")
        a("s_lshl_b32 s59, s46, 2")
        a("s_add_u32 s58, s58, s59")
        a("s_and_b32 s59, s22, 3")
        a("s_add_u32 s58, s58, s59")
    def stores(gstride):
        for g in range(2):
            for j in range(2):
                a(f"s_add_u32 s59, s58, {g*64*gstride + j*1024}")
                a(f"buffer_store_dwordx4 {vr(64+8*g+4*j,4)}, v2, {ws}, s59 offen{SC}")
    headtile()
    a("v_lshlrev_b32 v2, 4, v1")
    a("s_cmp_eq_u32 s48, 1")
    a(f"s_cbranch_scc1 {N}_kep")
    a(f"s_mov_b32 s62, {QSCALE:#x}")
    for r in range(ACC, ACC+32):
        a(f"v_mul_f32 v{r}, s62, v{r}")
    a("s_mov_b32 exec_lo, 0")
    for g in range(2):
        for r in range(12, 16):
            a(f"v_mov_b32 v{ACC+16*g+r}, 0")
    a("s_mov_b32 exec_lo, -1")
    pack(a, ACC, 64, 16)
    a("s_lshl_b32 s58, s58, 11")
    a(f"s_add_u32 s58, s58, {QF}")
    stores(2048)
    a(f"s_branch {N}_p1done")
    a(f"{N}_kep:")
    a("s_mov_b32 exec_lo, 0")
    for g in range(2):
        a(f"v_mov_b32 v{ACC+16*g+12}, 1.0")
        for r in range(13, 16):
            a(f"v_mov_b32 v{ACC+16*g+r}, 0")
    a("s_mov_b32 exec_lo, -1")
    pack(a, ACC, 64, 16)
    a("s_lshl_b32 s58, s58, 12")
    a(f"s_add_u32 s58, s58, {KV}")
    stores(4096)
    a(f"s_branch {N}_p1done")
    a(f"{N}_vx:")
    p1_main(a, ST, False)
    ST.n = 3; ST.stamp()
    dbgt(a, 2)
    a("s_cmp_eq_u32 s48, 3")
    a(f"s_cbranch_scc1 {N}_xep")
    a("v_and_b32 v2, 31, v1")
    a("v_cmp_lt_u32 vcc, 27, v2")
    a("s_and_saveexec_b64 s[64:65], vcc")
    a("v_cmp_eq_u32 vcc, 28, v2")
    a("s_nop 1")
    a("v_cndmask_b32 v3, 0, 1.0, vcc")
    for r in range(ACC, ACC+32):
        a(f"v_mov_b32 v{r}, v3")
    a("s_mov_b64 exec, s[64:65]")
    pack(a, ACC, 64, 16)
    headtile()
    a("s_lshl_b32 s58, s58, 12")
    a(f"s_add_u32 s58, s58, {KV+2048}")
    a("v_lshlrev_b32 v2, 4, v1")
    stores(4096)
    a(f"s_branch {N}_p1done")
    a(f"{N}_xep:")
    pack(a, ACC, 64, 16)
    a("s_barrier")
    a("s_lshr_b32 s58, s22, 2")
    a("s_mul_i32 s58, s58, 56")
    a("v_and_b32 v2, 31, v1")
    a("v_lshrrev_b32 v3, 5, v1")
    a("s_and_b32 s59, s22, 3")
    a("s_lshl_b32 s59, s59, 2")
    a("v_add_u32 v3, s59, v3")
    a("v_cmp_gt_u32 vcc, 28, v2")
    a("s_and_saveexec_b64 s[64:65], vcc")
    for g in range(2):
        a(f"v_add_u32 v4, s58, v2")
        if g: a("v_add_u32 v4, 28, v4")
        a("v_and_b32 v5, 15, v4")
        for j in range(2):
            a(f"v_add_u32 v6, {2*j}, v3")
            a("v_xor_b32 v6, v6, v5")
            a("v_lshlrev_b32 v6, 4, v6")
            a("v_lshl_add_u32 v6, v4, 8, v6")
            a(f"ds_write_b128 v6, {vr(64+8*g+4*j,4)}")
    a("s_mov_b64 exec, s[64:65]")
    a("s_waitcnt lgkmcnt(0)")
    a("s_barrier")
    a("s_mul_i32 s58, s49, 112")
    a("s_lshl_b32 s58, s58, 12")
    a("s_lshr_b32 s59, s46, 1")
    a("s_lshl_b32 s59, s59, 9")
    a("s_add_u32 s58, s58, s59")
    a("s_and_b32 s59, s46, 1")
    a("s_lshl_b32 s59, s59, 8")
    a("s_add_u32 s58, s58, s59")
    a(f"s_add_u32 s58, s58, {X1}")
    a("v_lshrrev_b32 v2, 4, v0")
    a("v_and_b32 v3, 15, v0")
    def rb(it):
        a(f"v_add_u32 v4, {32*it}, v2")
        a("v_and_b32 v5, 15, v4")
        a("v_xor_b32 v5, v5, v3")
        a("v_lshlrev_b32 v5, 4, v5")
        a("v_lshl_add_u32 v5, v4, 8, v5")
        a(f"ds_read_b128 {vr(32+4*it,4)}, v5")
        a("v_lshlrev_b32 v6, 12, v4")
        a(f"v_lshl_add_u32 v{8+it}, v3, 4, v6")
    for it in range(3):
        rb(it)
    a("s_waitcnt lgkmcnt(0)")
    for it in range(3):
        a(f"buffer_store_dwordx4 {vr(32+4*it,4)}, v{8+it}, {ws}, s58 offen{SC}")
    a("v_add_u32 v4, 96, v2")
    a("v_cmp_gt_u32 vcc, 112, v4")
    a("s_and_saveexec_b64 s[64:65], vcc")
    a(f"s_cbranch_execz {N}_xfin")
    rb(3)
    a("s_waitcnt lgkmcnt(0)")
    a(f"buffer_store_dwordx4 {vr(32+12,4)}, v{8+3}, {ws}, s58 offen{SC}")
    a(f"{N}_xfin:")
    a("s_mov_b64 exec, s[64:65]")

def p1_loader(a, N, ST):
    SX, SW = 28, 32
    VX0, VX1, VW = 10, 11, 12
    PER = 4
    a("s_sub_u32 s51, s22, 8")
    a("s_getpc_b64 s[52:53]")
    a("s_add_u32 s52, s52, HTAB@rel32@lo+4")
    a("s_addc_u32 s53, s53, HTAB@rel32@hi+12")
    a("v_lshrrev_b32 v2, 3, v1")
    a("s_cmp_eq_u32 s48, 3")
    a(f"s_cbranch_scc0 {N}_lp")
    a("v_and_b32 v3, 3, v2")
    a("v_lshlrev_b32 v3, 5, v3")
    a("v_lshrrev_b32 v2, 5, v1")
    a("v_add_u32 v2, v2, v3")
    a(f"{N}_lp:")
    a("v_mul_u32_u24 v2, 896, v2")
    a("v_and_b32 v3, 7, v1")
    a("v_lshrrev_b32 v4, 4, v1")
    a("v_xor_b32 v5, v3, v4")
    a(f"v_lshl_add_u32 v{VX0}, v5, 4, v2")
    a("v_xor_b32 v5, 4, v5")
    a(f"v_lshl_add_u32 v{VX1}, v5, 4, v2")
    TK = 56
    a("s_cmp_eq_u32 s48, 3")
    a(f"s_cbranch_scc1 {N}_ltX")
    a("s_lshl_b32 s66, s46, 7")
    a(f"s_mul_i32 s67, s51, {8*PER}")
    a("s_add_u32 s66, s66, s67")
    for ii in range(PER):
        a(f"s_add_u32 s{TK+ii}, s66, {8*ii}")
    a(f"s_branch {N}_ltd")
    a(f"{N}_ltX:")
    a("s_lshr_b32 s66, s46, 1")
    a("s_lshl_b32 s66, s66, 8")
    a("s_and_b32 s67, s46, 1")
    a("s_lshl_b32 s67, s67, 4")
    a("s_add_u32 s66, s66, s67")
    a(f"s_mul_i32 s67, s51, {PER}")
    a("s_add_u32 s66, s66, s67")
    for ii in range(PER):
        a(f"s_add_u32 s{TK+ii}, s66, {128*(ii&1) + 4*(ii>>2) + 2*((ii>>1)&1)}")
    a(f"{N}_ltd:")
    for ii in range(PER):
        a(f"s_mulk_i32 s{TK+ii}, 896")
    a("s_cmp_eq_u32 s48, 3")
    a(f"s_movk_i32 s64, 2688")
    a(f"s_cselect_b32 s64, 896, s64")
    a("s_mul_i32 s65, s48, 896")
    a("s_cselect_b32 s65, 0, s65")
    a("s_mul_i32 s66, s49, 224")
    a("s_add_u32 s65, s65, s66")
    a("v_lshrrev_b32 v2, 4, v1")
    a("v_mul_lo_u32 v3, v2, s64")
    a("v_lshlrev_b32 v4, 2, v2")
    a("v_and_b32 v5, 15, v1")
    a("v_xor_b32 v4, v4, v5")
    a(f"v_lshl_add_u32 v{VW}, v4, 4, v3")
    a(f"v_add_u32 v{VW}, s65, v{VW}")
    a("s_lshl_b32 s65, s64, 2")
    a(f"s_mul_i32 s66, s64, {4*PER}")
    a("s_mul_i32 s66, s66, s51")
    a("s_lshl_b32 s67, s64, 6")
    a(f"s_mul_i32 s68, s51, {PER*1024}")
    a("s_lshr_b32 s69, s45, 3")
    a("s_add_u32 s69, s69, s45")
    a("s_and_b32 s69, s69, 3")
    a("s_lshl_b32 s69, s69, 1")
    a("s_waitcnt lgkmcnt(0)")
    ST.n = 2; ST.stamp()
    srd(a, SWS, 20, 21, WS_SIZE)
    a("s_cmp_eq_u32 s48, 3")
    a("s_cselect_b32 s54, s10, s4")
    a("s_cselect_b32 s55, s11, s5")
    srd(a, SX, 54, 55, 2048*896)
    a("s_cmp_eq_u32 s48, 3")
    a("s_cselect_b32 s54, s52, s6")
    a("s_cselect_b32 s55, s53, s7")
    a(f"s_mov_b32 s{SW}, s54")
    a(f"s_and_b32 s{SW+1}, s55, 0xffff")
    a("s_cmp_eq_u32 s48, 3")
    a(f"s_mov_b32 s70, {448*2688}")
    a(f"s_cselect_b32 s{SW+2}, {448*896}, s70")
    a(f"s_mov_b32 s{SW+3}, 0x20000")
    def dma(c):
        slot = c % NS1
        a("s_lshl_b32 s70, s69, 7")
        a("s_mul_i32 s71, s69, s67")
        a("s_add_u32 s71, s71, s66")
        for ii in range(PER):
            a(f"s_add_u32 m0, s68, {slot*32768 + ii*1024}")
            a(f"s_add_u32 s54, s{TK+ii}, s70")
            a(f"buffer_load_dwordx4 v{VX0 if ii % 2 == 0 else VX1}, s[{SX}:{SX+3}], s54 offen lds")
            a(f"s_add_u32 m0, s68, {slot*32768 + 16384 + ii*1024}")
            if ii: a("s_add_u32 s71, s71, s65")
            else: a("s_nop 0")
            a(f"buffer_load_dwordx4 v{VW}, s[{SW}:{SW+3}], s71 offen lds")
        a("s_add_u32 s69, s69, 1")
        a("s_cmp_eq_u32 s69, 7")
        a("s_cselect_b32 s69, 0, s69")
    dma(0); dma(1)
    P2 = 2*PER
    waits = {5: P2 + 16, 6: 16}
    for c in range(7):
        a(f"s_waitcnt vmcnt({waits.get(c, P2)})")
        a("s_barrier")
        if c + 2 <= 6: dma(c + 2)
        if c == 4: p1_side_loads(a)
    fft_col(a, 40)
    a("s_mov_b32 s39, s48")
    a("s_cmp_eq_u32 s39, 3")
    a(f"s_cbranch_scc0 {N}_noxe")
    a("s_barrier")
    a("s_barrier")
    a(f"{N}_noxe:")
    p1_side_finish(a, N)
    a("s_cmp_gt_u32 s40, 224")
    a(f"s_cbranch_scc1 {N}_nocol")
    fft_consts(a, N)
    a(f"{N}_nocol:")

SJ = 16
SXB = 131072
def p1_side_loads(a):
    srd(a, 36, 12, 13, 2048*450)
    srd(a, 72, 14, 15, 2048*450)
    a("v_lshlrev_b32 v13, 1, v1")
    a("s_and_b32 s63, s2, 3")
    a("s_lshl_b32 s63, s63, 7")
    for q in range(2):
        a("s_lshr_b32 s60, s2, 2")
        a("s_lshl_b32 s60, s60, 3")
        a("s_lshl_b32 s61, s51, 1")
        a("s_add_u32 s60, s60, s61")
        if q: a("s_add_u32 s60, s60, 1")
        a("s_and_b32 s61, s60, 15")
        a("s_lshr_b32 s62, s60, 7")
        a("s_lshl_b32 s62, s62, 4")
        a("s_add_u32 s61, s61, s62")
        a("s_bfe_u32 s62, s60, 0x10006")
        a("s_lshl_b32 s62, s62, 4")
        a("s_bfe_u32 s54, s60, 0x20004")
        a("s_lshl_b32 s54, s54, 2")
        a("s_add_u32 s62, s62, s54")
        a("s_lshl_b32 s62, s62, 6")
        a("s_add_u32 s61, s61, s62")
        a("s_mulk_i32 s61, 450")
        a("s_add_u32 s61, s61, s63")
        for i in range(4):
            a(f"s_add_u32 s62, s61, {i*28800}")
            a(f"buffer_load_ushort v{SJ+8*q+i}, v13, s[36:39], s62 offen")
            a(f"buffer_load_ushort v{SJ+8*q+4+i}, v13, s[72:75], s62 offen")

def p1_side_finish(a, N):
    a("s_waitcnt vmcnt(0)")
    for q in range(2):
        for i in range(4):
            a(f"v_lshl_or_b32 v{SJ+8*q+i}, v{SJ+8*q+4+i}, 16, v{SJ+8*q+i}")
    a("v_mul_u32_u24 v14, 144, v1")
    a("s_lshl_b32 s60, s51, 5")
    a(f"s_add_u32 s60, s60, {SXB}")
    a("v_add_u32 v14, s60, v14")
    a(f"ds_write_b128 v14, {vr(SJ,4)}")
    a(f"ds_write_b128 v14, {vr(SJ+8,4)} offset:16")
    a(f"v_mov_b32 v2, {TAGL}")
    a("v_mov_b32 v3, 1")
    a("s_waitcnt lgkmcnt(0)")
    a("s_mov_b64 exec, 1")
    a("ds_add_u32 v2, v3 offset:8")
    a("s_mov_b64 exec, -1")
    a("s_mov_b32 s60, 0")
    a(f"{N}_sjw:")
    a("ds_read_b32 v4, v2 offset:8")
    a("ds_read_b32 v5, v2")
    a("s_waitcnt lgkmcnt(0)")
    a("v_readfirstlane_b32 s61, v4")
    a("v_readfirstlane_b32 s23, v5")
    a("s_nop 3")
    a("s_cmp_ge_u32 s61, 4")
    a(f"s_cbranch_scc1 {N}_sjd")
    a("s_add_u32 s60, s60, 1")
    a(f"s_cmp_lt_u32 s60, {SPIN}")
    a("s_sleep 1")
    a(f"s_cbranch_scc1 {N}_sjw")
    a(f"{N}_sjd:")
    a("v_lshrrev_b32 v4, 3, v1")
    a("s_lshl_b32 s60, s51, 4")
    a("v_add_u32 v4, s60, v4")
    a("v_and_b32 v5, 7, v1")
    a("v_mul_u32_u24 v6, 144, v4")
    a("v_lshl_add_u32 v6, v5, 4, v6")
    a(f"v_add_u32 v6, {SXB}, v6")
    a(f"ds_read_b128 {vr(SJ,4)}, v6")
    a(f"ds_read_b128 {vr(SJ+4,4)}, v6 offset:{8*144}")
    a("s_and_b32 s60, s2, 3")
    a("s_lshl_b32 s60, s60, 6")
    a("v_add_u32 v4, s60, v4")
    a("v_lshlrev_b32 v7, 13, v4")
    a("v_lshl_add_u32 v7, v5, 4, v7")
    a("s_lshr_b32 s61, s2, 2")
    a("s_lshl_b32 s61, s61, 7")
    a(f"s_add_u32 s61, s61, {WT}")
    a("s_waitcnt lgkmcnt(0)")
    a("v_cmp_gt_u32 vcc, 225, v4")
    a("s_and_saveexec_b64 s[62:63], vcc")
    a(f"buffer_store_dwordx4 {vr(SJ,4)}, v7, {ws}, s61 offen{SC}")
    a("s_mov_b64 exec, s[62:63]")
    a("v_add_u32 v4, 8, v4")
    a(f"s_add_u32 s61, s61, {8*8192}")
    a("v_cmp_gt_u32 vcc, 225, v4")
    a("s_and_saveexec_b64 s[62:63], vcc")
    a(f"buffer_store_dwordx4 {vr(SJ+4,4)}, v7, {ws}, s61 offen{SC}")
    a("s_mov_b64 exec, s[62:63]")
    a("s_waitcnt vmcnt(0)")
    a("s_mov_b64 exec, 1")
    a("ds_add_rtn_u32 v4, v2, v3 offset:12")
    a("s_mov_b64 exec, -1")
    a("s_waitcnt lgkmcnt(0)")
    a("v_readfirstlane_b32 s60, v4")
    a("s_nop 3")
    a("s_cmp_lg_u32 s60, 3")
    a(f"s_cbranch_scc1 {N}_sjn")
    a("s_and_b32 s60, s2, 3")
    a("s_lshl_b32 s60, s60, 8")
    a("s_lshr_b32 s61, s2, 2")
    a("s_lshl_b32 s61, s61, 2")
    a("s_add_u32 s60, s60, s61")
    a(f"s_add_u32 s60, s60, {FW}")
    signal2(a, 60)
    a(f"{N}_sjn:")

RING = 131072
XB = RING
FLAG = RING + 9216
def p2_attn(a, N, ST):
    QR = 4
    SA, SB = 16, 32
    PR = 48
    OR_ = 56
    KF = [72, 80]; VF = [88, 96]
    VL, VC, VN = 12, 13, 14
    MR = 15
    T0, T1, T2, T3 = 104, 105, 106, 107
    a("s_and_b32 s41, s2, 7")
    a("s_lshl_b32 s41, s41, 1")
    a("s_bfe_u32 s42, s2, 0x10003")
    a("s_add_u32 s41, s41, s42")
    a("s_lshr_b32 s42, s2, 4")
    a("s_and_b32 s43, s22, 3")
    a("s_lshr_b32 s44, s22, 2")
    a(f"v_lshlrev_b32 v{VL}, 4, v1")
    a("s_lshl_b32 s45, s41, 6")
    a("s_lshl_b32 s46, s42, 2")
    a("s_add_u32 s46, s46, s43")
    a("s_add_u32 s47, s45, s46")
    a("s_lshl_b32 s47, s47, 11")
    a(f"s_add_u32 s47, s47, {QF}")
    a("s_lshl_b32 s48, s44, 5")
    a("s_add_u32 s48, s48, s45")
    a("s_add_u32 s48, s48, s43")
    a("s_lshl_b32 s48, s48, 12")
    a(f"s_add_u32 s48, s48, {KV}")
    a("s_lshl_b32 s49, s44, 14")
    a("s_lshl_b32 s50, s43, 12")
    a("s_add_u32 s49, s49, s50")
    a("s_lshl_b32 s50, s44, 14")
    a(f"v_add_u32 v{VC}, s50, v{VL}")
    a("s_mov_b32 s51, 0")
    a("s_and_b32 s59, s42, 7")
    def dma1(goff_s, slot_s, i):
        a(f"s_add_u32 m0, s{slot_s}, {i*1024}")
        a(f"s_add_u32 s54, s{goff_s}, {i*1024}")
        a(f"buffer_load_dwordx4 v{VL}, {ws}, s54 offen{SC} lds")
    def step_goff(dst, s_imm):
        a(f"s_add_u32 s{dst}, s59, {s_imm}")
        a(f"s_and_b32 s{dst}, s{dst}, 7")
        a(f"s_lshl_b32 s{dst}, s{dst}, 14")
        a(f"s_add_u32 s{dst}, s{dst}, s48")
    a(f"buffer_load_dwordx4 {vr(QR,4)}, v{VL}, {ws}, s47 offen{SC}")
    a(f"buffer_load_dwordx4 {vr(QR+4,4)}, v{VL}, {ws}, s47 offen offset:1024{SC}")
    a("s_cmp_lg_u32 s22, 0")
    a(f"s_cbranch_scc1 {N}_noflag")
    a(f"v_mov_b32 v{T0}, {FLAG}")
    a(f"v_mov_b32 v{T1}, 0")
    a(f"ds_write_b32 v{T0}, v{T1}")
    a(f"{N}_noflag:")
    a(f"{N}_restart:")
    step_goff(52, 0)
    a("s_mov_b32 s53, s49")
    for i in range(4): dma1(52, 53, i)
    a(f"v_xor_b32 v{VN}, 0x10000, v{VC}")
    for r in range(OR_, OR_+16):
        a(f"v_mov_b32 v{r}, 0")
    for r in list(range(PR+4, PR+8)) + list(range(VF[1]+4, VF[1]+8)):
        a(f"v_mov_b32 v{r}, 0")
    a("s_waitcnt vmcnt(0) lgkmcnt(0)")
    a("s_barrier")
    def rd(dst, base, off):
        a(f"ds_read_b128 {vr(dst,4)}, v{base} offset:{off}")
    def smf1(S, kb): return f"{MF32} {vr(S,16)}, {vr(KF[kb],4)}, {vr(QR,4)}, 0"
    def smf2(S, kb): return f"{MF32} {vr(S,16)}, {vr(KF[kb]+4,4)}, {vr(QR+4,4)}, {vr(S,16)}"
    rd(KF[0], VC, 0); rd(KF[0]+4, VC, 1024)
    rd(VF[0], VC, 2048); rd(VF[0]+4, VC, 3072)
    rd(KF[1], VC, 4096); rd(KF[1]+4, VC, 4096+1024)
    a("s_cmp_lg_u32 s51, 0")
    a(f"s_cbranch_scc1 {N}_havem")
    a("s_waitcnt lgkmcnt(4)")
    a(smf1(SA, 0)); a(smf2(SA, 0))
    a("s_nop 15")
    s = SA
    a(f"v_max3_f32 v{T0}, v{s}, v{s+1}, v{s+2}")
    a(f"v_max3_f32 v{T1}, v{s+3}, v{s+4}, v{s+5}")
    a(f"v_max3_f32 v{T2}, v{s+6}, v{s+7}, v{s+8}")
    a(f"v_max3_f32 v{T3}, v{s+9}, v{s+10}, v{s+11}")
    a(f"v_max3_f32 v{T0}, v{T0}, v{s+12}, v{s+13}")
    a(f"v_max3_f32 v{T1}, v{T1}, v{s+14}, v{s+15}")
    a(f"v_max3_f32 v{T0}, v{T0}, v{T1}, v{T2}")
    a(f"v_max_f32 v{T0}, v{T0}, v{T3}")
    set_m(a, QR, MR, T0, T1)
    a(f"{N}_havem:")
    a("s_waitcnt lgkmcnt(0)")
    a("s_nop 1")
    a(smf1(SA, 0)); a(smf2(SA, 0))
    a("s_nop 11")
    ST.n = 6; ST.stamp()
    dbgt(a, 5)
    def off(b): return (b // 4) * 32768 + (b % 4) * 4096
    Ex = lambda S, i: a(f"v_exp_f32 v{S+i}, v{S+i}")
    C = lambda S, i: a(f"v_cvt_pk_bf16_f32 v{PR+i}, v{S+2*i}, v{S+2*i+1}")
    def body(first):
        for b in range(8):
            S, Sn = (SA, SB) if b % 2 == 0 else (SB, SA)
            kb = (b + 1) % 2
            vb = b % 2
            pvb = (b + 1) % 2
            refill = False
            if first and b in (0, 1):
                step_goff(52, b + 1)
                a(f"s_add_u32 s53, s49, {(b+1)*32768}")
                refill = True
            if b in (2, 6):
                a("s_lshl_b32 s53, s55, 1")
                a(f"s_add_u32 s53, s53, {3 if b == 2 else 4}")
                a("s_add_u32 s52, s53, s59")
                a("s_and_b32 s52, s52, 7")
                a("s_lshl_b32 s52, s52, 14")
                a("s_add_u32 s52, s52, s48")
                a("s_cmp_gt_u32 s53, 7")
                a(f"s_cselect_b32 s52, {OOB}, s52")
                a("s_and_b32 s53, s53, 3")
                a("s_lshl_b32 s53, s53, 15")
                a("s_add_u32 s53, s53, s49")
                a("s_waitcnt vmcnt(4)")
                a("s_barrier")
                refill = True
            def dm(i):
                if refill: dma1(52, 53, i)
            kbase, koff = (VC, off(b + 2)) if b + 2 < 8 else (VN, off(b + 2 - 8))
            vbase, voff = (VC, off(b + 1)) if b + 1 < 8 else (VN, off(b + 1 - 8))
            Ex(S, 0); Ex(S, 1)
            a(f"{MF32} {vr(OR_,16)}, {vr(VF[pvb]+4,4)}, {vr(PR+4,4)}, {vr(OR_,16)}")
            rd(VF[pvb], vbase, voff + 2048)
            dm(0)
            Ex(S, 2); Ex(S, 3); Ex(S, 4); C(S, 0); C(S, 1)
            a("s_waitcnt lgkmcnt(1)")
            a(smf1(Sn, kb))
            rd(VF[pvb]+4, vbase, voff + 3072)
            dm(1)
            Ex(S, 5); Ex(S, 6); Ex(S, 7); Ex(S, 8); C(S, 2)
            a(smf2(Sn, kb))
            rd(KF[b % 2], kbase, koff)
            dm(2)
            C(S, 3); Ex(S, 9); Ex(S, 10); Ex(S, 11)
            a(f"{MF32} {vr(OR_,16)}, {vr(VF[vb],4)}, {vr(PR,4)}, {vr(OR_,16)}")
            rd(KF[b % 2]+4, kbase, koff + 1024)
            dm(3)
            Ex(S, 12); Ex(S, 13); C(S, 4); Ex(S, 14); Ex(S, 15); C(S, 5); C(S, 6); C(S, 7)
        a(f"v_xor_b32 v{VC}, 0x10000, v{VC}")
        a(f"v_xor_b32 v{VN}, 0x10000, v{VN}")
    a("s_mov_b32 s55, 0")
    body(True)
    a("s_mov_b32 s55, 1")
    a(f"{N}_loop:")
    body(False)
    a("s_add_u32 s55, s55, 1")
    a("s_cmp_lt_u32 s55, 4")
    a(f"s_cbranch_scc1 {N}_loop")
    a(f"{MF32} {vr(OR_,16)}, {vr(VF[1]+4,4)}, {vr(PR+4,4)}, {vr(OR_,16)}")
    a("s_nop 15")
    a("s_waitcnt lgkmcnt(0)")
    LL = T0
    a(f"v_mov_b32 v{T1}, v{OR_+12}")
    a(f"v_mov_b32 v{LL}, v{OR_+12}")
    a("s_nop 1")
    a(f"v_permlane32_swap_b32 v{T1}, v{LL}")
    a("s_cmp_lg_u32 s51, 0")
    a(f"s_cbranch_scc1 {N}_nochk")
    a(f"s_mov_b32 s56, {f32bits(2.0**64):#x}")
    a(f"v_cmp_ngt_f32 vcc, s56, v{LL}")
    a("s_nop 4")
    a(f"s_cbranch_vccz {N}_nochk")
    a(f"v_mov_b32 v{T1}, {FLAG}")
    a(f"v_mov_b32 v{T2}, 1")
    a(f"ds_write_b32 v{T1}, v{T2}")
    a(f"{N}_nochk:")
    a("s_mul_i32 s56, s43, 5120")
    a("s_mul_i32 s57, s44, 2560")
    a("s_add_u32 s57, s57, s56")
    a("s_xor_b32 s58, s44, 1")
    a("s_mul_i32 s58, s58, 2560")
    a("s_add_u32 s58, s58, s56")
    a(f"v_add_u32 v{T1}, s57, v{VL}")
    a(f"v_lshlrev_b32 v{T2}, 3, v1")
    a(f"v_add_u32 v{T2}, s57, v{T2}")
    a(f"v_mov_b32 v{T3+1}, v{MR}")
    a(f"v_mov_b32 v{T3+2}, v{LL}")
    a("s_cmp_eq_u32 s44, 0")
    a(f"s_cbranch_scc1 {N}_send1")
    a(f"ds_write_b128 v{T1}, {vr(OR_,4)}")
    a(f"ds_write_b128 v{T1}, {vr(OR_+4,4)} offset:1024")
    for i in range(8): a(f"v_mov_b32 v{SA+i}, v{OR_+8+i}")
    a(f"s_branch {N}_sent")
    a(f"{N}_send1:")
    a(f"ds_write_b128 v{T1}, {vr(OR_+8,4)}")
    a(f"ds_write_b128 v{T1}, {vr(OR_+12,4)} offset:1024")
    for i in range(8): a(f"v_mov_b32 v{SA+i}, v{OR_+i}")
    a(f"{N}_sent:")
    a(f"ds_write_b64 v{T2}, {vr(T3+1,2)} offset:2048")
    a("s_waitcnt vmcnt(0) lgkmcnt(0)")
    a("s_barrier")
    a(f"v_add_u32 v{T1}, s58, v{VL}")
    a(f"v_lshlrev_b32 v{T2}, 3, v1")
    a(f"v_add_u32 v{T2}, s58, v{T2}")
    a(f"v_mov_b32 v{T3}, {FLAG}")
    a(f"ds_read_b32 v{T3}, v{T3}")
    a(f"ds_read_b128 {vr(SB,4)}, v{T1}")
    a(f"ds_read_b128 {vr(SB+4,4)}, v{T1} offset:1024")
    a(f"ds_read_b64 {vr(SB+8,2)}, v{T2} offset:2048")
    a("s_waitcnt lgkmcnt(0)")
    a("s_cmp_lg_u32 s51, 0")
    a(f"s_cbranch_scc1 {N}_merge")
    a(f"v_readfirstlane_b32 s56, v{T3}")
    a("s_nop 3")
    a("s_cmp_lg_u32 s56, 0")
    a(f"s_cbranch_scc1 {N}_slow")
    a(f"{N}_merge:")
    MP, LP = SB+8, SB+9
    a(f"v_max_f32 v{T1}, v{MR}, v{MP}")
    a(f"v_sub_f32 v{T2}, v{MR}, v{T1}")
    a(f"v_sub_f32 v{T3}, v{MP}, v{T1}")
    a(f"v_exp_f32 v{T2}, v{T2}")
    a(f"v_exp_f32 v{T3}, v{T3}")
    a("s_nop 0")
    a(f"v_mul_f32 v{T1}, v{T2}, v{LL}")
    a(f"v_fmac_f32 v{T1}, v{T3}, v{LP}")
    a(f"v_rcp_f32 v{T1}, v{T1}")
    a("s_nop 0")
    a(f"v_mul_f32 v{T2}, v{T2}, v{T1}")
    a(f"v_mul_f32 v{T3}, v{T3}, v{T1}")
    for i in range(8):
        a(f"v_mul_f32 v{SA+i}, v{T2}, v{SA+i}")
    for i in range(8):
        a(f"v_fmac_f32 v{SA+i}, v{T3}, v{SB+i}")
    a("s_cmp_eq_u32 s44, 0")
    a(f"s_cbranch_scc1 {N}_nopad")
    a("s_mov_b32 exec_lo, 0")
    for i in range(4, 8): a(f"v_mov_b32 v{SA+i}, 0")
    a("s_mov_b32 exec_lo, -1")
    a(f"{N}_nopad:")
    for i in range(4): a(f"v_cvt_pk_bf16_f32 v{PR+i}, v{SA+2*i}, v{SA+2*i+1}")
    a("s_lshl_b32 s56, s46, 4")
    a("s_add_u32 s56, s56, s41")
    a("s_lshl_b32 s56, s56, 1")
    a("s_add_u32 s56, s56, s44")
    a("s_lshl_b32 s56, s56, 10")
    a(f"s_add_u32 s56, s56, {OF}")
    a(f"buffer_store_dwordx4 {vr(PR,4)}, v{VL}, {ws}, s56 offen{SC}")
    a(f"s_branch {N}_p2done")
    a(f"{N}_slow:")
    a("s_mov_b32 s51, 1")
    a("s_mov_b32 exec_lo, 0")
    a(f"v_mov_b32 v{QR+6}, 0")
    a("s_mov_b32 exec_lo, -1")
    a(f"v_mov_b32 v{T0}, 0xff7fffff")
    a("s_lshl_b32 s56, s44, 5")
    a("s_add_u32 s56, s56, s45")
    a("s_lshl_b32 s56, s56, 12")
    a(f"s_add_u32 s56, s56, {KV}")
    a("s_mov_b32 s57, 0")
    a(f"{N}_sloop:")
    a(f"buffer_load_dwordx4 {vr(KF[0],4)}, v{VL}, {ws}, s56 offen{SC}")
    a(f"buffer_load_dwordx4 {vr(KF[0]+4,4)}, v{VL}, {ws}, s56 offen offset:1024{SC}")
    a("s_waitcnt vmcnt(0)")
    a(smf1(SA, 0)); a(smf2(SA, 0))
    a("s_nop 15")
    for i in range(0, 16, 2):
        a(f"v_max3_f32 v{T0}, v{T0}, v{SA+i}, v{SA+i+1}")
    a("s_add_u32 s56, s56, 4096")
    a("s_add_u32 s57, s57, 1")
    a("s_cmp_lt_u32 s57, 32")
    a(f"s_cbranch_scc1 {N}_sloop")
    set_m(a, QR, MR, T0, T1)
    a(f"v_and_b32 v{VC}, 0xffff, v{VC}")
    a("s_barrier")
    a(f"s_branch {N}_restart")
    a(f"{N}_p2done:")

def set_m(a, QR, MR, T0, T1):
    a(f"v_mov_b32 v{T1}, v{T0}")
    a("s_nop 1")
    a(f"v_permlane32_swap_b32 v{T0}, v{T1}")
    a("s_nop 0")
    a(f"v_max_f32 v{T0}, v{T0}, v{T1}")
    a(f"v_cvt_pk_bf16_f32 v{T1}, -v{T0}, 0")
    a(f"v_lshlrev_b32 v{MR}, 16, v{T1}")
    a(f"v_xor_b32 v{MR}, 0x80000000, v{MR}")
    a("s_mov_b32 exec_lo, 0")
    a(f"v_mov_b32 v{QR+6}, v{T1}")
    a("s_mov_b32 exec_lo, -1")

A_, B_ = 4, 20
C1, C3, TW, WW = 36, 60, 84, 100
WI = 108
TW2R = 20
AD = 116
TR, TI = 124, 132
PK = 140
T = 148
SFT = 28
ft = "s[28:31]"
def fft_ld(a, dst, n, sreg, srd_, flag=""):
    for i in range(n):
        if i and i % 4 == 0:
            a(f"s_add_u32 s{sreg}, s{sreg}, 4096")
        a(f"buffer_load_dwordx4 {vr(dst+4*i,4)}, v2, {srd_}, s{sreg} offen offset:{(i%4)*1024}{flag}")
def fft_col(a, d):
    a(f"s_and_b32 s{d}, s2, 7")
    a(f"s_mul_i32 s{d}, s{d}, 28")
    a("s_lshr_b32 s41, s2, 3")
    a(f"s_add_u32 s{d}, s{d}, s41")
    a("s_cmp_lt_u32 s41, 28")
    a(f"s_cselect_b32 s{d}, s{d}, 255")
    a("s_cmp_eq_u32 s2, 224")
    a(f"s_cselect_b32 s{d}, 224, s{d}")
def fft_consts(a, N):
    offs, blob = tables.build()
    a("s_getpc_b64 s[28:29]")
    a("s_add_u32 s28, s28, FTAB@rel32@lo+4")
    a("s_addc_u32 s29, s29, FTAB@rel32@hi+12")
    a("s_and_b32 s29, s29, 0xffff")
    a(f"s_mov_b32 s30, {blob.size*2}")
    a(f"s_mov_b32 s31, 0x20000")
    a("s_sub_u32 s41, s22, 8")
    a("v_lshlrev_b32 v2, 4, v1")
    a("s_mul_i32 s45, s41, 6144")
    a(f"s_add_u32 s46, s45, {offs['C1']}")
    fft_ld(a, C1, 6, 46, ft)
    a("s_lshl_b32 s47, s41, 12")
    a(f"s_add_u32 s46, s47, {offs['TW1']}")
    fft_ld(a, TW, 4, 46, ft)
    a(f"s_mov_b32 s46, {offs['C3']}")
    fft_ld(a, C3, 6, 46, ft)

def p2_fft(a, N, ST):
    a("s_cmp_gt_u32 s40, 224")
    a(f"s_cbranch_scc1 {N}_nofft")
    a("s_setprio 2")
    a("s_sub_u32 s41, s22, 8")
    a("v_lshlrev_b32 v2, 4, v1")
    a("v_lshrrev_b32 v3, 4, v1")
    a("v_lshlrev_b32 v3, 9, v3")
    a(f"v_and_b32 v{T}, 15, v1")
    a(f"v_lshl_add_u32 v3, v{T}, 4, v3")
    a("s_lshl_b32 s42, s40, 12")
    a(f"s_add_u32 s42, s42, {X1}")
    a("s_sub_u32 s43, 448, s40")
    a("s_cmp_eq_u32 s40, 0")
    a("s_cselect_b32 s43, 0, s43")
    a("s_lshl_b32 s44, s43, 12")
    a(f"s_add_u32 s44, s44, {X1}")
    for t in range(2):
        for ks in range(2):
            a(f"buffer_load_dwordx4 {vr(A_+4*(2*t+ks),4)}, v3, {ws}, s42 offen offset:{ks*2048+t*256}{SC}")
            a(f"buffer_load_dwordx4 {vr(B_+4*(2*t+ks),4)}, v3, {ws}, s44 offen offset:{ks*2048+t*256}{SC}")
    a("s_lshl_b32 s46, s40, 13")
    a("s_lshl_b32 s48, s41, 11")
    a("s_add_u32 s46, s46, s48")
    a(f"s_add_u32 s46, s46, {WT}")
    fft_ld(a, WW, 2, 46, ws, SC)
    a("s_barrier")
    a("s_waitcnt vmcnt(2)")
    P = lambda ks: vr(C1+4*ks, 4); Q = lambda ks: vr(C1+8+4*ks, 4); NQ = lambda ks: vr(C1+16+4*ks, 4)
    da = lambda t, ks: vr(A_+4*(2*t+ks), 4); db = lambda t, ks: vr(B_+4*(2*t+ks), 4)
    tr = lambda t: vr(TR+4*t, 4); ti = lambda t: vr(TI+4*t, 4)
    for step in range(4):
        ks = step % 2
        for t in range(2):
            cr = "0" if step == 0 else tr(t); ci = "0" if step == 0 else ti(t)
            if step < 2:
                a(f"{MF16} {tr(t)}, {da(t,ks)}, {P(ks)}, {cr}")
                a(f"{MF16} {ti(t)}, {da(t,ks)}, {NQ(ks)}, {ci}")
            else:
                a(f"{MF16} {tr(t)}, {db(t,ks)}, {Q(ks)}, {cr}")
                a(f"{MF16} {ti(t)}, {db(t,ks)}, {P(ks)}, {ci}")
    offs, _ = tables.build()
    a("v_lshlrev_b32 v2, 4, v1")
    a("s_lshl_b32 s47, s41, 12")
    a(f"s_add_u32 s46, s47, {offs['TW2']}")
    a("s_nop 4")
    fft_ld(a, TW2R, 4, 46, ft)
    def cmul(xr, xi, c, s, outr, outi):
        for p in range(0, 4, 2):
            a(f"v_pk_mul_f32 {vr(T+p,2)}, {vr(xi+p,2)}, {vr(s+p,2)}")
            a(f"v_pk_mul_f32 {vr(T+4+p,2)}, {vr(xi+p,2)}, {vr(c+p,2)}")
        for p in range(0, 4, 2):
            a(f"v_pk_fma_f32 {vr(outr+p,2)}, {vr(xr+p,2)}, {vr(c+p,2)}, {vr(T+p,2)} neg_lo:[0,0,1] neg_hi:[0,0,1]")
            a(f"v_pk_fma_f32 {vr(outi+p,2)}, {vr(xr+p,2)}, {vr(s+p,2)}, {vr(T+4+p,2)}")
    O1 = T + 8
    def packRI(t):
        a(f"v_cvt_pk_bf16_f32 v{PK+2*t}, v{O1}, v{O1+1}")
        a(f"v_cvt_pk_bf16_f32 v{PK+2*t+1}, v{O1+2}, v{O1+3}")
        a(f"v_cvt_pk_bf16_f32 v{PK+4+2*t}, v{O1+4}, v{O1+5}")
        a(f"v_cvt_pk_bf16_f32 v{PK+4+2*t+1}, v{O1+6}, v{O1+7}")
    for t in range(2):
        cmul(TR+4*t, TI+4*t, TW+8*t, TW+8*t+4, O1, O1+4)
        packRI(t)
    a("s_nop 1")
    Fr = lambda u: vr(C3+4*u, 4); Fi = lambda u: vr(C3+8+4*u, 4); NFi = lambda u: vr(C3+16+4*u, 4)
    BR, BI = vr(PK, 4), vr(PK+4, 4)
    for u in range(2):
        a(f"{MF16} {tr(u)}, {Fr(u)}, {BR}, 0")
        a(f"{MF16} {ti(u)}, {Fi(u)}, {BR}, 0")
    for u in range(2):
        a(f"{MF16} {tr(u)}, {NFi(u)}, {BI}, {tr(u)}")
        a(f"{MF16} {ti(u)}, {Fr(u)}, {BI}, {ti(u)}")
    ST.n = 5; ST.stamp()
    a("s_barrier")
    a("s_waitcnt vmcnt(4)")
    for u in range(2):
        for i in range(4):
            a(f"v_lshlrev_b32 v{A_+8*u+i}, 16, v{WW+4*u+i}")
            a(f"v_and_b32 v{A_+8*u+4+i}, 0xffff0000, v{WW+4*u+i}")
    for u in range(2):
        cmul(TR+4*u, TI+4*u, A_+8*u, A_+8*u+4, O1, O1+4)
        packRI(u)
    a("s_nop 1")
    AR, AI = vr(PK, 4), vr(PK+4, 4)
    for t in range(2):
        a(f"{MF16} {tr(t)}, {AR}, {Fr(t)}, 0")
        a(f"{MF16} {ti(t)}, {AR}, {NFi(t)}, 0")
    for t in range(2):
        a(f"{MF16} {tr(t)}, {AI}, {Fi(t)}, {tr(t)}")
        a(f"{MF16} {ti(t)}, {AI}, {Fr(t)}, {ti(t)}")
    a(f"v_and_b32 v{AD}, 15, v1")
    a(f"v_mul_u32_u24 v{AD}, 144, v{AD}")
    a(f"v_lshrrev_b32 v{AD+1}, 4, v1")
    a(f"v_lshl_add_u32 v{AD+2}, v{AD+1}, 3, v{AD}")
    a("s_lshl_b32 s46, s41, 5")
    a(f"s_add_u32 s46, s46, {XB}")
    a(f"v_add_u32 v{AD+2}, s46, v{AD+2}")
    a(f"v_lshl_add_u32 v{AD+3}, v{AD+1}, 4, v{AD}")
    a(f"v_add_u32 v{AD+3}, {XB}, v{AD+3}")
    a("s_waitcnt vmcnt(0)")
    for t in range(2):
        cmul(TR+4*t, TI+4*t, TW2R+8*t, TW2R+8*t+4, O1, O1+4)
        packRI(t)
        a(f"ds_write_b64 v{AD+2}, {vr(PK+2*t,2)} offset:{t*16*144}")
        a(f"ds_write_b64 v{AD+2}, {vr(PK+4+2*t,2)} offset:{4608+t*16*144}")
    a("s_waitcnt lgkmcnt(0)")
    a("s_barrier")
    DR = 60
    for part in range(2):
        for t in range(2):
            for ks in range(2):
                a(f"ds_read_b128 {vr(DR+4*(part*4+t*2+ks),4)}, v{AD+3} offset:{part*4608+t*16*144+ks*64}")
    A1, A2, NA2 = P, Q, NQ
    br = lambda t, ks: vr(DR+4*(t*2+ks), 4); bi = lambda t, ks: vr(DR+4*(4+t*2+ks), 4)
    a("s_waitcnt lgkmcnt(0)")
    for step in range(4):
        ks = step % 2
        for t in range(2):
            cm = "0" if step == 0 else tr(t); cp = "0" if step == 0 else ti(t)
            if step < 2:
                a(f"{MF16} {tr(t)}, {A1(ks)}, {br(t,ks)}, {cm}")
                a(f"{MF16} {ti(t)}, {A2(ks)}, {br(t,ks)}, {cp}")
            else:
                a(f"{MF16} {tr(t)}, {NA2(ks)}, {bi(t,ks)}, {cm}")
                a(f"{MF16} {ti(t)}, {A1(ks)}, {bi(t,ks)}, {cp}")
    a("s_nop 7")
    a("s_cmp_eq_u32 s40, 0")
    a(f"s_cbranch_scc1 {N}_avg")
    a("s_cmp_eq_u32 s40, 224")
    a(f"s_cbranch_scc0 {N}_noavg")
    a(f"{N}_avg:")
    for i in range(8):
        a(f"v_add_f32 v{TR+i}, v{TR+i}, v{TI+i}")
        a(f"v_mul_f32 v{TR+i}, 0.5, v{TR+i}")
        a(f"v_mov_b32 v{TI+i}, v{TR+i}")
    a(f"{N}_noavg:")
    for t in range(2):
        a(f"v_cvt_pk_bf16_f32 v{PK+2*t}, v{TR+4*t}, v{TR+4*t+1}")
        a(f"v_cvt_pk_bf16_f32 v{PK+2*t+1}, v{TR+4*t+2}, v{TR+4*t+3}")
        a(f"v_cvt_pk_bf16_f32 v{PK+4+2*t}, v{TI+4*t}, v{TI+4*t+1}")
        a(f"v_cvt_pk_bf16_f32 v{PK+4+2*t+1}, v{TI+4*t+2}, v{TI+4*t+3}")
    a("v_lshlrev_b32 v2, 3, v1")
    a("s_lshl_b32 s46, s41, 10")
    a("s_lshl_b32 s47, s40, 12")
    a("s_add_u32 s47, s47, s46")
    a(f"s_add_u32 s47, s47, {UT}")
    a("s_lshl_b32 s48, s43, 12")
    a("s_add_u32 s48, s48, s46")
    a(f"s_add_u32 s48, s48, {UT}")
    for t in range(2):
        a(f"buffer_store_dwordx2 {vr(PK+2*t,2)}, v2, {ws}, s47 offen offset:{t*512}{SC}")
        a(f"buffer_store_dwordx2 {vr(PK+4+2*t,2)}, v2, {ws}, s48 offen offset:{t*512}{SC}")
    a("s_setprio 0")
    ST.n = 6; ST.stamp()
    a("s_barrier")
    a("s_waitcnt vmcnt(0)")
    a("s_barrier")
    a("s_cmp_lg_u32 s22, 8")
    a(f"s_cbranch_scc1 {N}_fftd")
    a("s_lshl_b32 s50, s40, 2")
    a(f"s_add_u32 s50, s50, {FU}")
    signal(a, 50)
    a(f"{N}_fftd:")
    for i in range(4): a("s_barrier")
    a(f"s_branch {N}_fftmb")
    a(f"{N}_nofft:")
    for i in range(9): a("s_barrier")
    a(f"{N}_fftmb:")
    a("s_barrier")
    a(f"v_mov_b32 v2, {FLAG}")
    a("ds_read_b32 v2, v2")
    a("s_waitcnt lgkmcnt(0)")
    a("v_readfirstlane_b32 s56, v2")
    a("s_nop 3")
    a("s_cmp_eq_u32 s56, 0")
    a(f"s_cbranch_scc1 {N}_fftok")
    for i in range(11): a("s_barrier")
    a(f"{N}_fftok:")

WREG = 0
TREG = 131072
def p3_decode(a):
    a("s_and_b32 s60, s2, 7")
    a("s_lshr_b32 s45, s2, 3")
    a("s_and_b32 s48, s60, 1")
    a("s_lshr_b32 s46, s60, 1")
    a("s_lshl_b32 s46, s46, 3")
    a("s_and_b32 s47, s45, 7")
    a("s_add_u32 s46, s46, s47")
    a("s_lshr_b32 s49, s45, 3")

def p3_loader(a, N, ST):
    SW = 28
    VT, VW = 10, 12
    a("s_sub_u32 s51, s22, 8")
    a("s_getpc_b64 s[52:53]")
    a("s_add_u32 s52, s52, HTAB@rel32@lo+4")
    a("s_addc_u32 s53, s53, HTAB@rel32@hi+12")
    a("s_cmp_eq_u32 s48, 1")
    a("s_cselect_b32 s54, s52, s8")
    a("s_cselect_b32 s55, s53, s9")
    srd(a, SW, 54, 55, 448*896)
    a("v_lshrrev_b32 v2, 4, v1")
    a("v_mul_u32_u24 v3, 896, v2")
    a("v_lshlrev_b32 v4, 2, v2")
    a("v_and_b32 v5, 15, v1")
    a("v_xor_b32 v4, v4, v5")
    a(f"v_lshl_add_u32 v{VW}, v4, 4, v3")
    a("s_mul_i32 s57, s49, 224")
    a(f"v_add_u32 v{VW}, s57, v{VW}")
    a("s_cmp_eq_u32 s48, 1")
    a(f"s_cbranch_scc1 {N}_wrB")
    a("s_lshr_b32 s61, s51, 1")
    a("s_mul_i32 s61, s61, 28")
    a("s_and_b32 s62, s51, 1")
    a("s_lshl_b32 s63, s62, 4")
    a("s_add_u32 s61, s61, s63")
    a("s_add_u32 s56, s61, 0")
    a("s_add_u32 s57, s61, 4")
    a("s_add_u32 s58, s61, 8")
    a("s_add_u32 s59, s61, 12")
    a("s_cmp_eq_u32 s62, 1")
    a("s_cselect_b32 s59, s58, s59")
    a("s_mov_b32 s60, 56")
    a("s_mov_b32 s64, 8")
    a(f"s_branch {N}_wrd")
    a(f"{N}_wrB:")
    a("s_lshl_b32 s61, s51, 4")
    for ii in range(4): a(f"s_add_u32 s{56+ii}, s61, {4*ii}")
    a("s_mov_b32 s60, 64")
    a("s_mov_b32 s64, 7")
    a(f"{N}_wrd:")
    for ii in range(4): a(f"s_mulk_i32 s{56+ii}, 896")
    a("s_mulk_i32 s60, 896")
    a("s_lshl_b32 s61, s51, 12")
    for c in range(8):
        for ii in range(4):
            a(f"s_add_u32 m0, s61, {WREG + c*16384 + ii*1024}")
            a(f"s_mul_i32 s62, s60, {c}")
            a(f"s_add_u32 s62, s62, s{56+ii}")
            a(f"buffer_load_dwordx4 v{VW}, s[{SW}:{SW+3}], s62 offen lds")
    a("s_cmp_eq_u32 s48, 1")
    a(f"s_cbranch_scc1 {N}_tB")
    a("s_lshl_b32 s56, s46, 1")
    a("s_lshr_b32 s57, s51, 1")
    a("s_add_u32 s56, s56, s57")
    a("s_lshl_b32 s56, s56, 4")
    a("s_and_b32 s57, s51, 1")
    a("s_add_u32 s56, s56, s57")
    a("s_lshl_b32 s56, s56, 11")
    a(f"s_add_u32 s56, s56, {OF}")
    a(f"v_lshlrev_b32 v{VT}, 4, v1")
    a("s_movk_i32 s57, 4096")
    a("s_movk_i32 s58, 1024")
    a(f"s_branch {N}_tD")
    a(f"{N}_tB:")
    a("v_lshrrev_b32 v2, 3, v1")
    a("v_bfe_u32 v3, v1, 4, 1")
    a("v_lshlrev_b32 v3, 2, v3")
    a("v_and_b32 v4, 7, v1")
    a("v_xor_b32 v3, v3, v4")
    a("v_lshlrev_b32 v3, 4, v3")
    a(f"v_lshl_add_u32 v{VT}, v2, 12, v3")
    a("s_lshl_b32 s56, s51, 16")
    a("s_lshl_b32 s57, s46, 7")
    a("s_add_u32 s56, s56, s57")
    a(f"s_add_u32 s56, s56, {UT}")
    a(f"s_mov_b32 s57, {64*4096}")
    a(f"s_mov_b32 s58, {8*4096}")
    a(f"{N}_tD:")
    a("s_lshl_b32 s59, s51, 11")
    a("s_barrier")
    def tok(c):
        slot = c % 4
        a(f"s_add_u32 m0, s59, {TREG + slot*8192}")
        a("s_add_u32 s62, s56, s58")
        a(f"buffer_load_dwordx4 v{VT}, {ws}, s56 offen{SC} lds")
        a(f"s_add_u32 m0, s59, {TREG + slot*8192 + 1024}")
        a("s_nop 0")
        a(f"buffer_load_dwordx4 v{VT}, {ws}, s62 offen{SC} lds")
        a("s_add_u32 s56, s56, s57")
    for c in range(4): tok(c)
    issued = 4
    for c in range(8):
        a(f"s_waitcnt vmcnt({2 * (issued - (c + 1))})")
        a("s_barrier")
        if c >= 1 and issued < 8:
            tok(issued); issued += 1
    fin(a, ST)

def p3_compute(a, N, ST):
    SO = 32
    ACC3 = 32
    TF = [48, 52]; WF3 = [56, 60]
    WA3, TA = 4, 5
    srd(a, SO, 16, 17, 2048*1792)
    a("v_lshrrev_b32 v2, 5, v1")
    a("v_bfe_u32 v3, v1, 2, 2")
    a("v_lshl_add_u32 v2, v2, 2, v3")
    a("v_lshlrev_b32 v16, 8, v2")
    a("v_bfe_u32 v15, v1, 4, 1")
    a("v_lshlrev_b32 v15, 5, v15")
    a("v_and_b32 v17, 3, v1")
    a("v_lshl_add_u32 v15, v17, 3, v15")
    a("s_lshr_b32 s65, s22, 1")
    a("s_mul_i32 s65, s65, 56")
    a("v_add_u32 v17, s65, v15")
    a("v_lshrrev_b32 v18, 4, v17")
    a("v_lshlrev_b32 v19, 2, v3")
    a("v_xor_b32 v18, v18, v19")
    a("v_and_b32 v17, 15, v17")
    a("v_lshl_add_u32 v17, v18, 4, v17")
    a(f"v_add_u32 v{WA3}, v16, v17")
    a("s_and_b32 s65, s22, 1")
    a("s_cmp_eq_u32 s48, 1")
    a(f"s_cbranch_scc1 {N}_raB")
    a("s_lshl_b32 s65, s65, 12")
    a(f"v_lshlrev_b32 v{TA}, 4, v1")
    a(f"v_add_u32 v{TA}, s65, v{TA}")
    a(f"s_branch {N}_radone")
    a(f"{N}_raB:")
    a("s_lshl_b32 s65, s65, 6")
    a("v_add_u32 v17, s65, v15")
    a("v_lshrrev_b32 v18, 4, v17")
    a("v_bfe_u32 v19, v2, 1, 1")
    a("v_lshlrev_b32 v19, 2, v19")
    a("v_xor_b32 v18, v18, v19")
    a("v_and_b32 v17, 15, v17")
    a("v_lshl_add_u32 v17, v18, 4, v17")
    a(f"v_lshl_add_u32 v{TA}, v2, 7, v17")
    a(f"{N}_radone:")
    a(f"v_add_u32 v{TA}, {TREG}, v{TA}")
    for r in range(ACC3, ACC3+16):
        a(f"v_mov_b32 v{r}, 0")
    def main(partB):
        nch = 7 if partB else 8
        nst = nch * 4
        base = [0]
        def reads(n):
            c, kk = n // 4, n % 4
            want = (c // 4) * 65536
            if want != base[0]:
                a(f"v_add_u32 v{WA3}, {want - base[0]:#x}, v{WA3}")
                base[0] = want
            woff = c * 16384 - want
            toff = (c % 4) * 8192
            b = n % 2
            if partB:
                a(f"ds_read_b64_tr_b16 {vr(TF[b],2)}, v{TA} offset:{toff + kk*16*128}")
                a(f"ds_read_b64_tr_b16 {vr(TF[b]+2,2)}, v{TA} offset:{toff + kk*16*128 + 8*128}")
            else:
                a(f"ds_read_b128 {vr(TF[b],4)}, v{TA} offset:{toff + kk*1024}")
            a(f"ds_read_b64_tr_b16 {vr(WF3[b],2)}, v{WA3} offset:{woff + kk*16*256}")
            a(f"ds_read_b64_tr_b16 {vr(WF3[b]+2,2)}, v{WA3} offset:{woff + kk*16*256 + 8*256}")
        nr = 4 if partB else 3
        a("s_barrier")
        reads(0)
        for n in range(nst):
            b = n % 2
            if n + 1 < nst:
                if (n + 1) % 4 == 0:
                    a(f"s_waitcnt lgkmcnt(0)")
                    a("s_barrier")
                    reads(n + 1)
                else:
                    reads(n + 1)
                    a(f"s_waitcnt lgkmcnt({nr})")
            else:
                a("s_waitcnt lgkmcnt(0)")
            d = vr(ACC3, 16)
            a(f"{MF32} {d}, {vr(WF3[b],4)}, {vr(TF[b],4)}, {d}")
        if partB: a("s_barrier")
        a("s_nop 15")
    a("s_cmp_eq_u32 s48, 1")
    a(f"s_cbranch_scc1 {N}_mainB")
    main(False)
    a(f"s_branch {N}_epi")
    a(f"{N}_mainB:")
    main(True)
    a(f"{N}_epi:")
    ST.n = 9; ST.stamp()
    dbgt(a, 8)
    a("s_cmp_eq_u32 s48, 1")
    a(f"s_mov_b32 s65, {f32bits(2.0/(2048*448)):#x}")
    a("s_cselect_b32 s65, s65, 1.0")
    for i in range(16):
        a(f"v_mul_f32 v{ACC3+i}, s65, v{ACC3+i}")
    for i in range(8):
        a(f"v_cvt_pk_bf16_f32 v{48+i}, v{ACC3+2*i}, v{ACC3+2*i+1}")
    a("s_barrier")
    a("v_and_b32 v2, 31, v1")
    a("s_and_b32 s65, s22, 1")
    a("s_lshl_b32 s65, s65, 5")
    a("v_add_u32 v2, s65, v2")
    a("v_mul_u32_u24 v2, 240, v2")
    a("v_lshrrev_b32 v3, 5, v1")
    a("v_lshl_add_u32 v2, v3, 3, v2")
    a("s_lshr_b32 s65, s22, 1")
    a("s_mul_i32 s65, s65, 56")
    a("v_add_u32 v2, s65, v2")
    for jp in range(3):
        a(f"ds_write_b64 v2, {vr(48+2*jp,2)} offset:{jp*16}")
    a("s_mov_b32 exec_hi, 0")
    a(f"ds_write_b64 v2, {vr(48+6,2)} offset:48")
    a("s_mov_b32 exec_hi, -1")
    a("s_waitcnt lgkmcnt(0)")
    a("s_barrier")
    a("s_mul_i32 s65, s48, 896")
    a("s_mul_i32 s66, s49, 224")
    a("s_add_u32 s65, s65, s66")
    def rb(it):
        a("s_lshl_b32 s66, s46, 6")
        a(f"v_add_u32 v4, {512*it}, v0")
        a("v_mul_u32_u24 v5, 4682, v4")
        a("v_lshrrev_b32 v5, 16, v5")
        a("v_mul_u32_u24 v6, 14, v5")
        a("v_sub_u32 v6, v4, v6")
        a("v_mul_u32_u24 v7, 240, v5")
        a("v_lshl_add_u32 v7, v6, 4, v7")
        a(f"ds_read_b128 {vr(32+4*it,4)}, v7")
        a("v_add_u32 v5, s66, v5")
        a("s_cmp_eq_u32 s48, 0")
        a(f"s_cbranch_scc1 {N}_tk{it}")
        a("v_and_b32 v8, 3, v5")
        a("v_bfe_u32 v9, v5, 6, 2")
        a("v_lshl_add_u32 v8, v9, 2, v8")
        a("v_lshrrev_b32 v9, 9, v5")
        a("v_lshl_add_u32 v8, v9, 4, v8")
        a("v_lshlrev_b32 v8, 5, v8")
        a("v_bfe_u32 v9, v5, 8, 1")
        a("v_lshl_add_u32 v8, v9, 4, v8")
        a("v_bfe_u32 v9, v5, 2, 4")
        a("v_add_u32 v5, v8, v9")
        a(f"{N}_tk{it}:")
        a("v_mul_u32_u24 v5, 1792, v5")
        a(f"v_lshl_add_u32 v{20+it}, v6, 4, v5")
    rb(0)
    a("s_waitcnt lgkmcnt(0)")
    a(f"buffer_store_dwordx4 {vr(32,4)}, v20, s[{SO}:{SO+3}], s65 offen")
    a("v_cmp_gt_u32 vcc, 384, v0")
    a("s_and_saveexec_b64 s[66:67], vcc")
    a(f"s_cbranch_execz {N}_fin")
    rb(1)
    a("s_waitcnt lgkmcnt(0)")
    a(f"buffer_store_dwordx4 {vr(36,4)}, v21, s[{SO}:{SO+3}], s65 offen")
    a(f"{N}_fin:")
    if DBGT:
        a("s_mov_b64 exec, -1")
        a("s_waitcnt vmcnt(0)")
        dbgt(a, 9)
        dbgt_dump(a)
    fin(a, ST)
```

```python
from asmlib import *
import struct, math, os
import tables
QF, KV, X1, WT, OF, UT, FL = 0x000000, 0x200000, 0x600000, 0x800000, 0xA00000, 0xC00000, 0xE00000
WS_SIZE = 0xE10000
F1, FW, FO, FU = FL, FL + 0x1000, FL + 0x2000, FL + 0x3000
OOB = 0xF00000 + 0x100000
def f32bits(x): return struct.unpack("<I", struct.pack("<f", x))[0]
QSCALE = f32bits((28 ** -0.5) * math.log2(math.e))
BLOCK = 768
LDS = 163840
MF32 = "v_mfma_f32_32x32x16_bf16"
MF16 = "v_mfma_f32_16x16x32_bf16"
SWS = 24
ws = "s[24:27]"
SC = " sc1"
SPIN = int(os.environ.get('SPIN', '400000'))
E = os.environ.get

def srd(a, d, lo, hi, size):
    a(f"s_mov_b32 s{d}, s{lo}")
    a(f"s_and_b32 s{d+1}, s{hi}, 0xffff")
    a(f"s_mov_b32 s{d+2}, {size}")
    a(f"s_mov_b32 s{d+3}, 0x20000")
def pack(a, src, dst, n=8):
    for i in range(n):
        a(f"v_cvt_pk_bf16_f32 v{dst+i}, v{src+2*i}, v{src+2*i+1}")

_uid = [0]
def uid():
    _uid[0] += 1
    return _uid[0]

def get_tag(a):
    n = uid()
    srd(a, 72, 18, 19, 256)
    a("v_mov_b32 v2, 0")
    a("s_mov_b32 s70, 0")
    a(f"tagL{n}:")
    a("buffer_load_dword v3, v2, s[72:75], 0 offen sc1")
    a("s_waitcnt vmcnt(0)")
    a("v_readfirstlane_b32 s23, v3")
    a("s_nop 3")
    a("s_cmp_lg_u32 s23, 0")
    a(f"s_cbranch_scc1 tagD{n}")
    a("s_add_u32 s70, s70, 1")
    a(f"s_cmp_lt_u32 s70, {SPIN}")
    a("s_sleep 1")
    a(f"s_cbranch_scc1 tagL{n}")
    a(f"tagD{n}:")

def poll(a, voffs, masks=None):
    n = uid()
    a("s_mov_b32 s70, 0")
    a("s_mov_b64 s[68:69], exec")
    a(f"plL{n}:")
    for i, vo in enumerate(voffs):
        if masks and masks[i] is not None: a(f"s_mov_b64 exec, {masks[i]}")
        else: a("s_mov_b64 exec, -1")
        a(f"buffer_load_dword v{160+i}, v{vo}, {ws}, 0 offen sc1")
    a("s_waitcnt vmcnt(0)")
    a("s_mov_b64 s[66:67], 0")
    for i, vo in enumerate(voffs):
        if masks and masks[i] is not None: a(f"s_mov_b64 exec, {masks[i]}")
        else: a("s_mov_b64 exec, -1")
        a(f"v_cmp_ne_u32 vcc, s23, v{160+i}")
        a("s_nop 1")
        a("s_or_b64 s[66:67], s[66:67], vcc")
    a("s_mov_b64 exec, s[68:69]")
    a("s_cmp_eq_u64 s[66:67], 0")
    a(f"s_cbranch_scc1 plD{n}")
    a("s_add_u32 s70, s70, 1")
    a(f"s_cmp_lt_u32 s70, {SPIN}")
    a("s_sleep 2")
    a(f"s_cbranch_scc1 plL{n}")
    a(f"plD{n}:")

def signal(a, off_sgpr):
    a("s_mov_b64 s[68:69], exec")
    a("s_mov_b64 exec, 1")
    a("v_mov_b32 v2, 0")
    a("v_mov_b32 v3, s23")
    a(f"buffer_store_dword v3, v2, {ws}, s{off_sgpr} offen sc1")
    a("s_mov_b64 exec, s[68:69]")

TAGL = 163840 - 16
def signal2(a, off_sgpr):
    a("s_mov_b64 s[62:63], exec")
    a("s_mov_b64 exec, 1")
    a("v_mov_b32 v2, 0")
    a("v_mov_b32 v3, s23")
    a(f"buffer_store_dword v3, v2, {ws}, s{off_sgpr} offen sc1")
    a("s_mov_b64 exec, s[62:63]")

DBGT = os.environ.get("DBGT")
def dbgt(a, idx, mn=False):
    if not DBGT: return
    a(f"s_memrealtime s[{76+2*idx}:{77+2*idx}]")
def dbgt_dump(a):
    if not DBGT: return
    n = uid()
    a("s_cmp_lg_u32 s22, 0")
    a(f"s_cbranch_scc1 dbt{n}")
    a(f"s_cmp_lg_u32 s2, {DBGT}")
    a(f"s_cbranch_scc1 dbt{n}")
    a("s_waitcnt lgkmcnt(0)")
    srd(a, 72, 18, 19, 256)
    a("s_mov_b64 exec, 1")
    a("v_mov_b32 v160, 0")
    for i in range(0, 11):
        a(f"s_sub_u32 s64, s{76+2*i}, s76")
        a("v_mov_b32 v161, s64")
        a(f"buffer_store_dword v161, v160, s[72:75], 0 offen offset:{4*(i+1)}")
        a("s_nop 1")
    a(f"s_sub_u32 s64, s76, s23")
    a("v_mov_b32 v161, s64")
    a(f"buffer_store_dword v161, v160, s[72:75], 0 offen offset:{4*12}")
    a(f"dbt{n}:")

DIAG = os.environ.get("DIAG")
class NoST:
    n = 0
    def stamp(self, *a): pass
    def end(self): pass
    def flush(self, *a): pass
def dg(a, tag, idx):
    if STAMP and DIAG == tag:
        a(f"{'s_memtime' if STAMP == 'cyc' else 's_memrealtime'} s[{76+2*idx}:{77+2*idx}]")

def gen(name):
    a = Asm()
    N = "F"
    ST = Stamps(a, 0, 22)
    if DIAG:
        real = ST
        class PST:
            n = 0
            def stamp(self, cyc=False):
                if self.n in (0, 1): real.n = self.n; real.stamp(cyc)
                self.n += 1
            def end(self): real.end()
            def flush(self, t): real.flush(t)
        ST = PST()
    a("s_cmp_ge_u32 s2, 256")
    a(f"s_cbranch_scc1 {N}_end")
    if STAMP:
        for i in range(76, 100): a(f"s_mov_b32 s{i}, 0")
    ST.stamp(); ST.stamp(True)
    dbgt(a, 0)
    a("s_load_dwordx16 s[4:19], s[0:1], 0")
    a("s_load_dwordx2 s[20:21], s[0:1], 64")
    a("v_and_b32 v1, 63, v0")
    a("v_lshrrev_b32 v2, 6, v0")
    a("s_nop 0")
    a("v_readfirstlane_b32 s22, v2")
    a("s_and_b32 s44, s2, 7")
    a("s_lshr_b32 s45, s2, 3")
    a("s_and_b32 s48, s44, 3")
    a("s_lshr_b32 s46, s44, 2")
    a("s_lshl_b32 s46, s46, 3")
    a("s_and_b32 s47, s45, 7")
    a("s_add_u32 s46, s46, s47")
    a("s_lshr_b32 s49, s45, 3")
    a("s_cmp_ge_u32 s22, 8")
    a(f"s_cbranch_scc1 {N}_aux")
    p1_addr(a)
    a("s_waitcnt lgkmcnt(0)")
    ST.stamp()
    srd(a, SWS, 20, 21, WS_SIZE)
    srd(a, 72, 18, 19, 256)
    a("s_cmp_lg_u32 s22, 0")
    a(f"s_cbranch_scc1 {N}_notag")
    a(f"v_mov_b32 v2, {TAGL}")
    a("v_mov_b32 v3, 0")
    a("ds_write_b32 v2, v3 offset:4")
    a("ds_write_b32 v2, v3 offset:8")
    a("ds_write_b32 v2, v3 offset:12")
    a("s_cmp_lg_u32 s2, 0")
    a(f"s_cbranch_scc1 {N}_tagw")
    a("s_memrealtime s[70:71]")
    a("v_mov_b32 v2, 0")
    a("buffer_load_dword v3, v2, s[72:75], 0 offen sc1")
    a("s_waitcnt vmcnt(0) lgkmcnt(0)")
    a("v_readfirstlane_b32 s23, v3")
    a("s_nop 3")
    a("s_cmp_lg_u32 s23, 0")
    a(f"s_cbranch_scc1 {N}_tagw")
    a("s_or_b32 s23, s70, 1")
    a("s_mov_b64 exec, 1")
    a("v_mov_b32 v3, s23")
    a("buffer_store_dword v3, v2, s[72:75], 0 offen sc1")
    a("s_mov_b64 exec, -1")
    a(f"{N}_tagw:")
    a("s_waitcnt lgkmcnt(0)")
    a(f"{N}_notag:")
    dbgt(a, 1)
    p1_compute(a, N, ST)
    a(f"{N}_p1done:")
    a("s_waitcnt vmcnt(0)")
    a(f"v_mov_b32 v2, {TAGL}")
    a("v_mov_b32 v3, 1")
    a("s_mov_b64 exec, 1")
    a("ds_add_rtn_u32 v4, v2, v3 offset:4")
    a("s_mov_b64 exec, -1")
    a("s_waitcnt lgkmcnt(0)")
    a("v_readfirstlane_b32 s50, v4")
    ST.n = 4; ST.stamp()
    a("s_nop 3")
    dbgt(a, 3)
    a("s_cmp_lg_u32 s50, 7")
    a(f"s_cbranch_scc1 {N}_nosig1")
    a("s_lshl_b32 s50, s48, 2")
    a("s_add_u32 s50, s50, s49")
    a("s_lshl_b32 s50, s50, 7")
    a("s_lshl_b32 s51, s46, 2")
    a("s_add_u32 s50, s50, s51")
    a(f"s_add_u32 s50, s50, {F1}")
    signal(a, 50)
    a(f"{N}_nosig1:")
    a("s_cmp_ge_u32 s22, 4")
    a(f"s_cbranch_scc1 {N}_kl")
    p2_attn(a, N, ST)
    a(f"s_branch {N}_p2end")
    a(f"{N}_kl:")
    p2_kvload(a, N, ST)
    a(f"{N}_p2end:")
    a("s_waitcnt vmcnt(0)")
    a("s_barrier")
    dg(a, "p2", 8)
    ST.n = 7; ST.stamp()
    dbgt(a, 6)
    p3_decode(a)
    a("s_cmp_lg_u32 s22, 0")
    a(f"s_cbranch_scc1 {N}_p3s")
    a("s_lshl_b32 s50, s42, 7")
    a("s_lshl_b32 s51, s41, 2")
    a("s_add_u32 s50, s50, s51")
    a(f"s_add_u32 s50, s50, {FO}")
    signal(a, 50)
    a("s_cmp_eq_u32 s48, 1")
    a(f"s_cbranch_scc1 {N}_pollU")
    a("s_lshr_b32 s50, s46, 1")
    a("s_lshl_b32 s50, s50, 7")
    a(f"s_add_u32 s50, s50, {FO}")
    a("v_lshlrev_b32 v4, 2, v1")
    a("v_add_u32 v4, s50, v4")
    a("s_mov_b32 s52, 0xffff")
    a("s_mov_b32 s53, 0")
    poll(a, [4], ["s[52:53]"])
    a(f"s_branch {N}_p3s")
    a(f"{N}_pollU:")
    a("v_lshlrev_b32 v4, 2, v1")
    a(f"v_add_u32 v4, {FU}, v4")
    for i in range(1, 4): a(f"v_add_u32 v{4+i}, {256*i}, v4")
    a("s_mov_b32 s52, -1")
    a("s_mov_b32 s53, 1")
    poll(a, [4, 5, 6, 7], [None, None, None, "s[52:53]"])
    a(f"{N}_p3s:")
    a("s_barrier")
    ST.stamp()
    dbgt(a, 7)
    p3_compute(a, N, ST)
    a(f"{N}_aux:")
    p1_loader(a, N, ST)
    ST.n = 3; ST.stamp()
    dg(a, "p2", 2)
    p2_fft(a, N, ST)
    a("s_barrier")
    p3_decode(a)
    p3_loader(a, N, ST)
    a(f"{N}_end:")
    a("s_endpgm")
    return a

def fin(a, ST):
    if STAMP:
        a("s_waitcnt vmcnt(0)")
        ST.end()
        ST.flush(0)
    a("s_endpgm")

ACC = 32
XF = [64, 68, 88]; WF = [[72, 76], [80, 84], [92, 96]]
XA = [4, 5, 6, 7]; WA = [8, 9]
NS1 = 4
def p1_addr(a):
    a("s_and_b32 s62, s22, 3")
    a("s_lshl_b32 s62, s62, 12")
    a("v_and_b32 v2, 31, v1")
    a("v_lshlrev_b32 v3, 7, v2")
    a("v_bfe_u32 v15, v1, 1, 3")
    a("v_lshrrev_b32 v25, 5, v1")
    a("v_xor_b32 v15, v15, v25")
    a("v_lshl_add_u32 v3, v15, 4, v3")
    a(f"v_add_u32 v{XA[0]}, s62, v3")
    for kk in range(1, 4):
        a(f"v_xor_b32 v{XA[kk]}, {kk*32}, v{XA[0]}")
    a("v_lshrrev_b32 v2, 5, v1")
    a("v_bfe_u32 v3, v1, 2, 2")
    a("v_lshl_add_u32 v2, v2, 3, v3")
    a("v_lshlrev_b32 v2, 8, v2")
    a("v_add_u32 v2, 16384, v2")
    a("v_bfe_u32 v15, v1, 4, 1")
    a("v_lshlrev_b32 v15, 5, v15")
    a("v_and_b32 v25, 3, v1")
    a("v_lshl_add_u32 v15, v25, 3, v15")
    a("s_lshr_b32 s62, s22, 2")
    a("s_mul_i32 s62, s62, 112")
    a("v_lshlrev_b32 v26, 2, v3")
    for g in range(2):
        a(f"v_add_u32 v25, s62, v15")
        if g: a(f"v_add_u32 v25, 56, v25")
        a(f"v_lshrrev_b32 v27, 4, v25")
        a(f"v_xor_b32 v27, v27, v26")
        a(f"v_and_b32 v25, 15, v25")
        a(f"v_lshl_add_u32 v25, v27, 4, v25")
        a(f"v_add_u32 v{WA[g]}, v2, v25")
    for r in range(ACC, ACC+32):
        a(f"v_mov_b32 v{r}, 0")

def p1_main(a, ST, qk):
    base = [0]
    def reads(n):
        c, kk = n // 4, n % 4
        slot = c % NS1
        want = (slot // 2) * 65536
        if want != base[0]:
            d = want - base[0]
            for r in XA + WA:
                a(f"v_add_u32 v{r}, {d & 0xffffffff:#x}, v{r}")
            base[0] = want
        off = slot * 32768 - want
        b = n % 3
        a(f"ds_read_b128 {vr(XF[b],4)}, v{XA[kk]} offset:{off}")
        for g in range(2):
            a(f"ds_read_b64_tr_b16 {vr(WF[b][g],2)}, v{WA[g]} offset:{off + kk*16*256}")
            a(f"ds_read_b64_tr_b16 {vr(WF[b][g]+2,2)}, v{WA[g]} offset:{off + kk*16*256 + 4*256}")
    a("s_barrier")
    dg(a, "p1", 2)
    reads(0); reads(1)
    for n in range(28):
        b = n % 3
        if n + 2 < 28:
            if (n + 2) % 4 == 0:
                a("s_barrier")
                dg(a, "p1", 2 + (n + 2) // 4)
            reads(n + 2)
            a("s_waitcnt lgkmcnt(10)")
        elif n + 1 < 28:
            a("s_waitcnt lgkmcnt(5)")
        else:
            a("s_waitcnt lgkmcnt(0)")
        for g in range(2):
            d = vr(ACC + 16*g, 16)
            if qk: a(f"{MF32} {d}, {vr(WF[b][g],4)}, {vr(XF[b],4)}, {d}")
            else:  a(f"{MF32} {d}, {vr(XF[b],4)}, {vr(WF[b][g],4)}, {d}")
        if n == 14:
            a("v_mov_b32 v101, 0")
            a("buffer_load_dword v100, v101, s[72:75], 0 offen sc1")
    a("s_nop 15")
    n_ = uid()
    a("s_waitcnt vmcnt(0)")
    a("v_readfirstlane_b32 s23, v100")
    a("s_nop 3")
    a("s_cmp_lg_u32 s23, 0")
    a(f"s_cbranch_scc1 tg{n_}")
    get_tag(a)
    a(f"tg{n_}:")

def p1_compute(a, N, ST):
    a("s_cmp_ge_u32 s48, 2")
    a(f"s_cbranch_scc1 {N}_vx")
    p1_main(a, ST, True)
    ST.n = 3; ST.stamp()
    dbgt(a, 2)
    def headtile():
        a("s_lshl_b32 s58, s49, 2")
        a("s_lshr_b32 s59, s22, 2")
        a("s_lshl_b32 s59, s59, 1")
        a("s_add_u32 s58, s58, s59")
        a("s_lshl_b32 s58, s58, 6")
        a("s_lshl_b32 s59, s46, 2")
        a("s_add_u32 s58, s58, s59")
        a("s_and_b32 s59, s22, 3")
        a("s_add_u32 s58, s58, s59")
    def stores(gstride):
        for g in range(2):
            for j in range(2):
                a(f"s_add_u32 s59, s58, {g*64*gstride + j*1024}")
                a(f"buffer_store_dwordx4 {vr(64+8*g+4*j,4)}, v2, {ws}, s59 offen{SC}")
    headtile()
    a("v_lshlrev_b32 v2, 4, v1")
    a("s_cmp_eq_u32 s48, 1")
    a(f"s_cbranch_scc1 {N}_kep")
    a(f"s_mov_b32 s62, {QSCALE:#x}")
    for r in range(ACC, ACC+32):
        a(f"v_mul_f32 v{r}, s62, v{r}")
    a("s_mov_b32 exec_lo, 0")
    for g in range(2):
        for r in range(12, 16):
            a(f"v_mov_b32 v{ACC+16*g+r}, 0")
    a("s_mov_b32 exec_lo, -1")
    pack(a, ACC, 64, 16)
    a("s_lshl_b32 s58, s58, 11")
    a(f"s_add_u32 s58, s58, {QF}")
    stores(2048)
    a(f"s_branch {N}_p1done")
    a(f"{N}_kep:")
    a("s_mov_b32 exec_lo, 0")
    for g in range(2):
        a(f"v_mov_b32 v{ACC+16*g+12}, 1.0")
        for r in range(13, 16):
            a(f"v_mov_b32 v{ACC+16*g+r}, 0")
    a("s_mov_b32 exec_lo, -1")
    pack(a, ACC, 64, 16)
    a("s_lshl_b32 s58, s58, 12")
    a(f"s_add_u32 s58, s58, {KV}")
    stores(4096)
    a(f"s_branch {N}_p1done")
    a(f"{N}_vx:")
    p1_main(a, ST, False)
    ST.n = 3; ST.stamp()
    dbgt(a, 2)
    a("s_cmp_eq_u32 s48, 3")
    a(f"s_cbranch_scc1 {N}_xep")
    a("v_and_b32 v2, 31, v1")
    a("v_cmp_lt_u32 vcc, 27, v2")
    a("s_and_saveexec_b64 s[64:65], vcc")
    a("v_cmp_eq_u32 vcc, 28, v2")
    a("s_nop 1")
    a("v_cndmask_b32 v3, 0, 1.0, vcc")
    for r in range(ACC, ACC+32):
        a(f"v_mov_b32 v{r}, v3")
    a("s_mov_b64 exec, s[64:65]")
    pack(a, ACC, 64, 16)
    headtile()
    a("s_lshl_b32 s58, s58, 12")
    a(f"s_add_u32 s58, s58, {KV+2048}")
    a("v_lshlrev_b32 v2, 4, v1")
    stores(4096)
    a(f"s_branch {N}_p1done")
    a(f"{N}_xep:")
    pack(a, ACC, 64, 16)
    a("s_barrier")
    a("s_lshr_b32 s58, s22, 2")
    a("s_mul_i32 s58, s58, 56")
    a("v_and_b32 v2, 31, v1")
    a("v_lshrrev_b32 v3, 5, v1")
    a("s_and_b32 s59, s22, 3")
    a("s_lshl_b32 s59, s59, 2")
    a("v_add_u32 v3, s59, v3")
    a("v_cmp_gt_u32 vcc, 28, v2")
    a("s_and_saveexec_b64 s[64:65], vcc")
    for g in range(2):
        a(f"v_add_u32 v4, s58, v2")
        if g: a("v_add_u32 v4, 28, v4")
        a("v_and_b32 v5, 15, v4")
        for j in range(2):
            a(f"v_add_u32 v6, {2*j}, v3")
            a("v_xor_b32 v6, v6, v5")
            a("v_lshlrev_b32 v6, 4, v6")
            a("v_lshl_add_u32 v6, v4, 8, v6")
            a(f"ds_write_b128 v6, {vr(64+8*g+4*j,4)}")
    a("s_mov_b64 exec, s[64:65]")
    a("s_waitcnt lgkmcnt(0)")
    a("s_barrier")
    a("s_mul_i32 s58, s49, 112")
    a("s_lshl_b32 s58, s58, 12")
    a("s_lshr_b32 s59, s46, 1")
    a("s_lshl_b32 s59, s59, 9")
    a("s_add_u32 s58, s58, s59")
    a("s_and_b32 s59, s46, 1")
    a("s_lshl_b32 s59, s59, 8")
    a("s_add_u32 s58, s58, s59")
    a(f"s_add_u32 s58, s58, {X1}")
    a("v_lshrrev_b32 v2, 4, v0")
    a("v_and_b32 v3, 15, v0")
    def rb(it):
        a(f"v_add_u32 v4, {32*it}, v2")
        a("v_and_b32 v5, 15, v4")
        a("v_xor_b32 v5, v5, v3")
        a("v_lshlrev_b32 v5, 4, v5")
        a("v_lshl_add_u32 v5, v4, 8, v5")
        a(f"ds_read_b128 {vr(32+4*it,4)}, v5")
        a("v_lshlrev_b32 v6, 12, v4")
        a(f"v_lshl_add_u32 v{8+it}, v3, 4, v6")
    for it in range(3):
        rb(it)
    a("s_waitcnt lgkmcnt(0)")
    for it in range(3):
        a(f"buffer_store_dwordx4 {vr(32+4*it,4)}, v{8+it}, {ws}, s58 offen{SC}")
    a("v_add_u32 v4, 96, v2")
    a("v_cmp_gt_u32 vcc, 112, v4")
    a("s_and_saveexec_b64 s[64:65], vcc")
    a(f"s_cbranch_execz {N}_xfin")
    rb(3)
    a("s_waitcnt lgkmcnt(0)")
    a(f"buffer_store_dwordx4 {vr(32+12,4)}, v{8+3}, {ws}, s58 offen{SC}")
    a(f"{N}_xfin:")
    a("s_mov_b64 exec, s[64:65]")

def p1_loader(a, N, ST):
    SX, SW = 28, 32
    VX0, VX1, VW = 10, 11, 12
    PER = 4
    a("s_sub_u32 s51, s22, 8")
    a("s_getpc_b64 s[52:53]")
    a("s_add_u32 s52, s52, HTAB@rel32@lo+4")
    a("s_addc_u32 s53, s53, HTAB@rel32@hi+12")
    a("v_lshrrev_b32 v2, 3, v1")
    a("s_cmp_eq_u32 s48, 3")
    a(f"s_cbranch_scc0 {N}_lp")
    a("v_and_b32 v3, 3, v2")
    a("v_lshlrev_b32 v3, 5, v3")
    a("v_lshrrev_b32 v2, 5, v1")
    a("v_add_u32 v2, v2, v3")
    a(f"{N}_lp:")
    a("v_mul_u32_u24 v2, 896, v2")
    a("v_and_b32 v3, 7, v1")
    a("v_lshrrev_b32 v4, 4, v1")
    a("v_xor_b32 v5, v3, v4")
    a(f"v_lshl_add_u32 v{VX0}, v5, 4, v2")
    a("v_xor_b32 v5, 4, v5")
    a(f"v_lshl_add_u32 v{VX1}, v5, 4, v2")
    TK = 56
    a("s_cmp_eq_u32 s48, 3")
    a(f"s_cbranch_scc1 {N}_ltX")
    a("s_lshl_b32 s66, s46, 7")
    a(f"s_mul_i32 s67, s51, {8*PER}")
    a("s_add_u32 s66, s66, s67")
    for ii in range(PER):
        a(f"s_add_u32 s{TK+ii}, s66, {8*ii}")
    a(f"s_branch {N}_ltd")
    a(f"{N}_ltX:")
    a("s_lshr_b32 s66, s46, 1")
    a("s_lshl_b32 s66, s66, 8")
    a("s_and_b32 s67, s46, 1")
    a("s_lshl_b32 s67, s67, 4")
    a("s_add_u32 s66, s66, s67")
    a(f"s_mul_i32 s67, s51, {PER}")
    a("s_add_u32 s66, s66, s67")
    for ii in range(PER):
        a(f"s_add_u32 s{TK+ii}, s66, {128*(ii&1) + 4*(ii>>2) + 2*((ii>>1)&1)}")
    a(f"{N}_ltd:")
    for ii in range(PER):
        a(f"s_mulk_i32 s{TK+ii}, 896")
    a("s_cmp_eq_u32 s48, 3")
    a(f"s_movk_i32 s64, 2688")
    a(f"s_cselect_b32 s64, 896, s64")
    a("s_mul_i32 s65, s48, 896")
    a("s_cselect_b32 s65, 0, s65")
    a("s_mul_i32 s66, s49, 224")
    a("s_add_u32 s65, s65, s66")
    a("v_lshrrev_b32 v2, 4, v1")
    a("v_mul_lo_u32 v3, v2, s64")
    a("v_lshlrev_b32 v4, 2, v2")
    a("v_and_b32 v5, 15, v1")
    a("v_xor_b32 v4, v4, v5")
    a(f"v_lshl_add_u32 v{VW}, v4, 4, v3")
    a(f"v_add_u32 v{VW}, s65, v{VW}")
    a("s_lshl_b32 s65, s64, 2")
    a(f"s_mul_i32 s66, s64, {4*PER}")
    a("s_mul_i32 s66, s66, s51")
    a("s_lshl_b32 s67, s64, 6")
    a(f"s_mul_i32 s68, s51, {PER*1024}")
    a("s_lshr_b32 s69, s45, 3")
    a("s_add_u32 s69, s69, s45")
    a("s_and_b32 s69, s69, 3")
    a("s_lshl_b32 s69, s69, 1")
    a("s_waitcnt lgkmcnt(0)")
    ST.n = 2; ST.stamp()
    srd(a, SWS, 20, 21, WS_SIZE)
    a("s_cmp_eq_u32 s48, 3")
    a("s_cselect_b32 s54, s10, s4")
    a("s_cselect_b32 s55, s11, s5")
    srd(a, SX, 54, 55, 2048*896)
    a("s_cmp_eq_u32 s48, 3")
    a("s_cselect_b32 s54, s52, s6")
    a("s_cselect_b32 s55, s53, s7")
    a(f"s_mov_b32 s{SW}, s54")
    a(f"s_and_b32 s{SW+1}, s55, 0xffff")
    a("s_cmp_eq_u32 s48, 3")
    a(f"s_mov_b32 s70, {448*2688}")
    a(f"s_cselect_b32 s{SW+2}, {448*896}, s70")
    a(f"s_mov_b32 s{SW+3}, 0x20000")
    def dma(c):
        slot = c % NS1
        a("s_lshl_b32 s70, s69, 7")
        a("s_mul_i32 s71, s69, s67")
        a("s_add_u32 s71, s71, s66")
        for ii in range(PER):
            a(f"s_add_u32 m0, s68, {slot*32768 + ii*1024}")
            a(f"s_add_u32 s54, s{TK+ii}, s70")
            a(f"buffer_load_dwordx4 v{VX0 if ii % 2 == 0 else VX1}, s[{SX}:{SX+3}], s54 offen lds")
            a(f"s_add_u32 m0, s68, {slot*32768 + 16384 + ii*1024}")
            if ii: a("s_add_u32 s71, s71, s65")
            else: a("s_nop 0")
            a(f"buffer_load_dwordx4 v{VW}, s[{SW}:{SW+3}], s71 offen lds")
        a("s_add_u32 s69, s69, 1")
        a("s_cmp_eq_u32 s69, 7")
        a("s_cselect_b32 s69, 0, s69")
    dma(0); dma(1)
    P2 = 2*PER
    waits = {5: P2 + 16, 6: 16}
    for c in range(7):
        a(f"s_waitcnt vmcnt({waits.get(c, P2)})")
        a("s_barrier")
        if c + 2 <= 6: dma(c + 2)
        if c == 4: p1_side_loads(a)
    fft_col(a, 40)
    a("s_mov_b32 s39, s48")
    a("s_cmp_eq_u32 s39, 3")
    a(f"s_cbranch_scc0 {N}_noxe")
    a("s_barrier")
    a("s_barrier")
    a(f"{N}_noxe:")
    p1_side_finish(a, N)
    a("s_cmp_gt_u32 s40, 224")
    a(f"s_cbranch_scc1 {N}_nocol")
    fft_consts(a, N)
    a(f"{N}_nocol:")

SJ = 16
SXB = 131072
def p1_side_loads(a):
    srd(a, 36, 12, 13, 2048*450)
    srd(a, 72, 14, 15, 2048*450)
    a("v_lshlrev_b32 v13, 1, v1")
    a("s_and_b32 s63, s2, 3")
    a("s_lshl_b32 s63, s63, 7")
    for q in range(2):
        a("s_lshr_b32 s60, s2, 2")
        a("s_lshl_b32 s60, s60, 3")
        a("s_lshl_b32 s61, s51, 1")
        a("s_add_u32 s60, s60, s61")
        if q: a("s_add_u32 s60, s60, 1")
        a("s_and_b32 s61, s60, 15")
        a("s_lshr_b32 s62, s60, 7")
        a("s_lshl_b32 s62, s62, 4")
        a("s_add_u32 s61, s61, s62")
        a("s_bfe_u32 s62, s60, 0x10006")
        a("s_lshl_b32 s62, s62, 4")
        a("s_bfe_u32 s54, s60, 0x20004")
        a("s_lshl_b32 s54, s54, 2")
        a("s_add_u32 s62, s62, s54")
        a("s_lshl_b32 s62, s62, 6")
        a("s_add_u32 s61, s61, s62")
        a("s_mulk_i32 s61, 450")
        a("s_add_u32 s61, s61, s63")
        for i in range(4):
            a(f"s_add_u32 s62, s61, {i*28800}")
            a(f"buffer_load_ushort v{SJ+8*q+i}, v13, s[36:39], s62 offen")
            a(f"buffer_load_ushort v{SJ+8*q+4+i}, v13, s[72:75], s62 offen")

def p1_side_finish(a, N):
    get_tag(a)
    a("s_waitcnt vmcnt(0)")
    for q in range(2):
        for i in range(4):
            a(f"v_lshl_or_b32 v{SJ+8*q+i}, v{SJ+8*q+4+i}, 16, v{SJ+8*q+i}")
    a("v_mul_u32_u24 v14, 144, v1")
    a("s_lshl_b32 s60, s51, 5")
    a(f"s_add_u32 s60, s60, {SXB}")
    a("v_add_u32 v14, s60, v14")
    a(f"ds_write_b128 v14, {vr(SJ,4)}")
    a(f"ds_write_b128 v14, {vr(SJ+8,4)} offset:16")
    a(f"v_mov_b32 v2, {TAGL}")
    a("v_mov_b32 v3, 1")
    a("s_waitcnt lgkmcnt(0)")
    a("s_mov_b64 exec, 1")
    a("ds_add_u32 v2, v3 offset:8")
    a("s_mov_b64 exec, -1")
    a("s_mov_b32 s60, 0")
    a(f"{N}_sjw:")
    a("ds_read_b32 v4, v2 offset:8")
    a("s_waitcnt lgkmcnt(0)")
    a("v_readfirstlane_b32 s61, v4")
    a("s_nop 3")
    a("s_cmp_ge_u32 s61, 4")
    a(f"s_cbranch_scc1 {N}_sjd")
    a("s_add_u32 s60, s60, 1")
    a(f"s_cmp_lt_u32 s60, {SPIN}")
    a("s_sleep 1")
    a(f"s_cbranch_scc1 {N}_sjw")
    a(f"{N}_sjd:")
    a("v_lshrrev_b32 v4, 3, v1")
    a("s_lshl_b32 s60, s51, 4")
    a("v_add_u32 v4, s60, v4")
    a("v_and_b32 v5, 7, v1")
    a("v_mul_u32_u24 v6, 144, v4")
    a("v_lshl_add_u32 v6, v5, 4, v6")
    a(f"v_add_u32 v6, {SXB}, v6")
    a(f"ds_read_b128 {vr(SJ,4)}, v6")
    a(f"ds_read_b128 {vr(SJ+4,4)}, v6 offset:{8*144}")
    a("s_and_b32 s60, s2, 3")
    a("s_lshl_b32 s60, s60, 6")
    a("v_add_u32 v4, s60, v4")
    a("v_lshlrev_b32 v7, 13, v4")
    a("v_lshl_add_u32 v7, v5, 4, v7")
    a("s_lshr_b32 s61, s2, 2")
    a("s_lshl_b32 s61, s61, 7")
    a(f"s_add_u32 s61, s61, {WT}")
    a("s_waitcnt lgkmcnt(0)")
    a("v_cmp_gt_u32 vcc, 225, v4")
    a("s_and_saveexec_b64 s[62:63], vcc")
    a(f"buffer_store_dwordx4 {vr(SJ,4)}, v7, {ws}, s61 offen{SC}")
    a("s_mov_b64 exec, s[62:63]")
    a("v_add_u32 v4, 8, v4")
    a(f"s_add_u32 s61, s61, {8*8192}")
    a("v_cmp_gt_u32 vcc, 225, v4")
    a("s_and_saveexec_b64 s[62:63], vcc")
    a(f"buffer_store_dwordx4 {vr(SJ+4,4)}, v7, {ws}, s61 offen{SC}")
    a("s_mov_b64 exec, s[62:63]")

def p1_side_signal(a, N, younger):
    a(f"s_waitcnt vmcnt({younger})")
    a(f"v_mov_b32 v2, {TAGL}")
    a("v_mov_b32 v3, 1")
    a("s_mov_b64 exec, 1")
    a("ds_add_rtn_u32 v4, v2, v3 offset:12")
    a("s_mov_b64 exec, -1")
    a("s_waitcnt lgkmcnt(0)")
    a("v_readfirstlane_b32 s60, v4")
    a("s_nop 3")
    a("s_cmp_lg_u32 s60, 3")
    a(f"s_cbranch_scc1 {N}_sjn")
    a("s_and_b32 s60, s2, 3")
    a("s_lshl_b32 s60, s60, 8")
    a("s_lshr_b32 s61, s2, 2")
    a("s_lshl_b32 s61, s61, 2")
    a("s_add_u32 s60, s60, s61")
    a(f"s_add_u32 s60, s60, {FW}")
    signal2(a, 60)
    a(f"{N}_sjn:")

RING = 131072
XB = RING
FLAG = RING + 9216
def p2_heads(a):
    a("s_and_b32 s41, s2, 7")
    a("s_lshl_b32 s41, s41, 1")
    a("s_bfe_u32 s42, s2, 0x10003")
    a("s_add_u32 s41, s41, s42")
    a("s_lshr_b32 s42, s2, 4")

def p2_kvload(a, N, ST):
    VL = 4
    p2_heads(a)
    a("s_sub_u32 s43, s22, 4")
    a(f"v_lshlrev_b32 v{VL}, 4, v1")
    a(f"v_mov_b32 v2, {TAGL}")
    a("s_mov_b32 s60, 0")
    a(f"{N}_klw:")
    a("ds_read_b32 v3, v2 offset:4")
    a("s_waitcnt lgkmcnt(0)")
    a("v_readfirstlane_b32 s61, v3")
    a("s_nop 3")
    a("s_cmp_ge_u32 s61, 8")
    a(f"s_cbranch_scc1 {N}_kld")
    a("s_add_u32 s60, s60, 1")
    a(f"s_cmp_lt_u32 s60, {SPIN}")
    a("s_sleep 1")
    a(f"s_cbranch_scc1 {N}_klw")
    a(f"{N}_kld:")
    a(f"v_mov_b32 v2, {FLAG}")
    a("v_mov_b32 v3, 0")
    a("ds_write_b32 v2, v3")
    a("s_lshr_b32 s44, s41, 2")
    a("v_and_b32 v5, 15, v1")
    a("v_lshlrev_b32 v5, 2, v5")
    a("v_bfe_u32 v6, v1, 4, 1")
    a("v_add_u32 v6, 1, v6")
    a("v_lshlrev_b32 v6, 9, v6")
    a("s_lshl_b32 s44, s44, 7")
    a(f"s_add_u32 s44, s44, {F1}")
    a("v_add3_u32 v5, v5, v6, s44")
    a("s_mov_b32 s45, 0")
    a("s_lshl_b32 s48, s41, 6")
    a("s_add_u32 s48, s48, s43")
    a("s_lshl_b32 s48, s48, 12")
    a(f"s_add_u32 s48, s48, {KV}")
    a("s_lshl_b32 s49, s43, 12")
    def need(step_s):
        n = uid()
        a(f"s_lshl_b32 s46, 0x01010101, s{step_s}")
        a("s_mov_b32 s60, 0")
        a(f"nd{n}:")
        a("s_and_b32 s47, s45, s46")
        a("s_cmp_eq_u32 s47, s46")
        a(f"s_cbranch_scc1 ndd{n}")
        a(f"buffer_load_dword v7, v5, {ws}, 0 offen sc1")
        a("s_waitcnt vmcnt(0)")
        a("v_cmp_eq_u32 vcc, s23, v7")
        a("s_nop 1")
        a("s_mov_b32 s45, vcc_lo")
        a("s_add_u32 s60, s60, 1")
        a(f"s_cmp_lt_u32 s60, {SPIN}")
        a(f"s_cbranch_scc1 nd{n}")
        a(f"ndd{n}:")
    def dma_step(step_s):
        a(f"s_lshl_b32 s52, s{step_s}, 14")
        a("s_add_u32 s52, s52, s48")
        a(f"s_cmp_gt_u32 s{step_s}, 7")
        a(f"s_cselect_b32 s52, {OOB}, s52")
        a(f"s_and_b32 s53, s{step_s}, 3")
        a("s_lshl_b32 s53, s53, 15")
        a("s_add_u32 s53, s53, s49")
        for hf in range(2):
            for i in range(4):
                a(f"s_add_u32 m0, s53, {hf*16384 + i*1024}")
                a(f"s_add_u32 s54, s52, {hf*32*4096 + i*1024}")
                a(f"buffer_load_dwordx4 v{VL}, {ws}, s54 offen{SC} lds")
    a(f"{N}_klrestart:")
    for st_ in range(3):
        a(f"s_mov_b32 s50, {st_}")
        need(50)
        dma_step(50)
    a("s_waitcnt vmcnt(16) lgkmcnt(0)")
    a("s_barrier")
    a("s_mov_b32 s51, 0")
    a(f"{N}_klloop:")
    a("s_waitcnt vmcnt(8)")
    a("s_barrier")
    a("s_add_u32 s50, s51, 3")
    a("s_min_u32 s55, s50, 7")
    need(55)
    dma_step(50)
    a("s_add_u32 s51, s51, 1")
    a("s_cmp_lt_u32 s51, 8")
    a(f"s_cbranch_scc1 {N}_klloop")
    a("s_waitcnt vmcnt(0)")
    a("s_barrier")
    a(f"v_mov_b32 v2, {FLAG}")
    a("ds_read_b32 v2, v2")
    a("s_waitcnt lgkmcnt(0)")
    a("v_readfirstlane_b32 s56, v2")
    a("s_nop 3")
    a("s_cmp_eq_u32 s56, 1")
    a(f"s_cbranch_scc0 {N}_klend")
    a("s_barrier")
    a(f"s_branch {N}_klrestart")
    a(f"{N}_klend:")

def p2_attn(a, N, ST):
    QA, QB = 4, 12
    SA, SB = 20, 36
    PR = 52
    OA, OB = 60, 76
    KF = [92, 100]; VF = [108, 116]
    VL, VC, VN = 124, 125, 126
    MRA, MRB = 127, 128
    T0, T1, T2, T3, T4, T5 = 129, 130, 131, 132, 133, 134
    p2_heads(a)
    a("s_and_b32 s43, s22, 1")
    a("s_lshr_b32 s44, s22, 1")
    a(f"v_lshlrev_b32 v{VL}, 4, v1")
    a("s_lshr_b32 s50, s41, 2")
    a("s_lshl_b32 s50, s50, 7")
    a("s_lshl_b32 s51, s42, 2")
    a("s_add_u32 s50, s50, s51")
    a(f"s_add_u32 s50, s50, {F1}")
    a("v_mov_b32 v2, s50")
    a("s_mov_b32 s52, 1")
    a("s_mov_b32 s53, 0")
    poll(a, [2], ["s[52:53]"])
    a("s_lshl_b32 s45, s41, 6")
    a("s_lshl_b32 s46, s42, 2")
    a("s_lshl_b32 s47, s43, 1")
    a("s_add_u32 s46, s46, s47")
    a("s_add_u32 s47, s45, s46")
    a("s_lshl_b32 s47, s47, 11")
    a(f"s_add_u32 s47, s47, {QF}")
    for i, r in enumerate((QA, QA+4)):
        a(f"buffer_load_dwordx4 {vr(r,4)}, v{VL}, {ws}, s47 offen offset:{i*1024}{SC}")
    for i, r in enumerate((QB, QB+4)):
        a(f"buffer_load_dwordx4 {vr(r,4)}, v{VL}, {ws}, s47 offen offset:{2048+i*1024}{SC}")
    a("s_lshl_b32 s50, s44, 14")
    a(f"v_add_u32 v{VC}, s50, v{VL}")
    a("s_mov_b32 s51, 0")
    a(f"{N}_restart:")
    a(f"v_add_u32 v{VN}, 0x8000, v{VC}")
    for r in list(range(OA, OA+32)) + list(range(PR+4, PR+8)) + list(range(VF[1]+4, VF[1]+8)):
        a(f"v_mov_b32 v{r}, 0")
    a("s_waitcnt vmcnt(0)")
    a("s_barrier")
    dg(a, "p2", 3)
    def rd(dst, base, off):
        a(f"ds_read_b128 {vr(dst,4)}, v{base} offset:{off}")
    def smf1(S, kb, Q): return f"{MF32} {vr(S,16)}, {vr(KF[kb],4)}, {vr(Q,4)}, 0"
    def smf2(S, kb, Q): return f"{MF32} {vr(S,16)}, {vr(KF[kb]+4,4)}, {vr(Q+4,4)}, {vr(S,16)}"
    rd(KF[0], VC, 0); rd(KF[0]+4, VC, 1024)
    rd(VF[0], VC, 2048); rd(VF[0]+4, VC, 3072)
    a("s_cmp_lg_u32 s51, 0")
    a(f"s_cbranch_scc1 {N}_havem")
    a("s_waitcnt lgkmcnt(2)")
    a(smf1(SA, 0, QA)); a(smf1(SB, 0, QB)); a(smf2(SA, 0, QA)); a(smf2(SB, 0, QB))
    a("s_nop 15")
    for (s_, Q, MR) in ((SA, QA, MRA), (SB, QB, MRB)):
        a(f"v_max3_f32 v{T0}, v{s_}, v{s_+1}, v{s_+2}")
        a(f"v_max3_f32 v{T1}, v{s_+3}, v{s_+4}, v{s_+5}")
        a(f"v_max3_f32 v{T2}, v{s_+6}, v{s_+7}, v{s_+8}")
        a(f"v_max3_f32 v{T3}, v{s_+9}, v{s_+10}, v{s_+11}")
        a(f"v_max3_f32 v{T0}, v{T0}, v{s_+12}, v{s_+13}")
        a(f"v_max3_f32 v{T1}, v{T1}, v{s_+14}, v{s_+15}")
        a(f"v_max3_f32 v{T0}, v{T0}, v{T1}, v{T2}")
        a(f"v_max_f32 v{T0}, v{T0}, v{T3}")
        set_m(a, Q, MR, T0, T1)
    a(f"{N}_havem:")
    a("s_waitcnt lgkmcnt(0)")
    a("s_nop 1")
    a(smf1(SA, 0, QA)); a(smf2(SA, 0, QA))
    a("s_nop 11")
    ST.n = 6; ST.stamp()
    dg(a, "p2", 4)
    dbgt(a, 5)
    Ex = lambda S, i: a(f"v_exp_f32 v{S+i}, v{S+i}")
    C = lambda S, i: a(f"v_cvt_pk_bf16_f32 v{PR+i}, v{S+2*i}, v{S+2*i+1}")
    a("s_mov_b32 s55, 0")
    a(f"{N}_loop:")
    for u in range(8):
        tt, q = u // 2, u % 2
        S, Sn = (SA, SB) if q == 0 else (SB, SA)
        O, Op = (OA, OB) if q == 0 else (OB, OA)
        Qn = QB if q == 0 else QA
        kb_n = tt % 2 if q == 0 else (tt + 1) % 2
        vb = tt % 2
        pvb = (tt + 1) % 2 if q == 0 else tt % 2
        if u == 6:
            a("s_barrier")
        nb, noff = (VC, (tt + 1) * 4096) if tt + 1 < 4 else (VN, 0)
        Ex(S, 0); Ex(S, 1)
        a(f"{MF32} {vr(Op,16)}, {vr(VF[pvb]+4,4)}, {vr(PR+4,4)}, {vr(Op,16)}")
        if q == 0: rd(KF[(tt + 1) % 2], nb, noff)
        Ex(S, 2); Ex(S, 3); Ex(S, 4); C(S, 0); C(S, 1)
        if q == 1: a("s_waitcnt lgkmcnt(0)")
        a(smf1(Sn, kb_n, Qn))
        if q == 0: rd(KF[(tt + 1) % 2] + 4, nb, noff + 1024)
        else: rd(VF[(tt + 1) % 2], nb, noff + 2048)
        Ex(S, 5); Ex(S, 6); Ex(S, 7); Ex(S, 8); C(S, 2)
        a(smf2(Sn, kb_n, Qn))
        if q == 1: rd(VF[(tt + 1) % 2] + 4, nb, noff + 3072)
        C(S, 3); Ex(S, 9); Ex(S, 10); Ex(S, 11)
        if q == 0: a("s_waitcnt lgkmcnt(2)")
        a(f"{MF32} {vr(O,16)}, {vr(VF[vb],4)}, {vr(PR,4)}, {vr(O,16)}")
        Ex(S, 12); Ex(S, 13); C(S, 4); Ex(S, 14); Ex(S, 15); C(S, 5); C(S, 6); C(S, 7)
    a(f"v_mov_b32 v{VC}, v{VN}")
    a(f"v_add_u32 v{VN}, 0x8000, v{VN}")
    a(f"v_and_b32 v{VN}, 0x1ffff, v{VN}")
    a("s_add_u32 s55, s55, 1")
    a("s_cmp_lt_u32 s55, 8")
    a(f"s_cbranch_scc1 {N}_loop")
    a(f"{MF32} {vr(OB,16)}, {vr(VF[1]+4,4)}, {vr(PR+4,4)}, {vr(OB,16)}")
    a("s_nop 15")
    a("s_waitcnt lgkmcnt(0)")
    dg(a, "p2", 6)
    LA, LB = T0, T1
    for (O, L) in ((OA, LA), (OB, LB)):
        a(f"v_mov_b32 v{T2}, v{O+12}")
        a(f"v_mov_b32 v{L}, v{O+12}")
        a("s_nop 1")
        a(f"v_permlane32_swap_b32 v{T2}, v{L}")
    a("s_cmp_lg_u32 s51, 0")
    a(f"s_cbranch_scc1 {N}_nochk")
    a(f"s_mov_b32 s56, {f32bits(2.0**64):#x}")
    a(f"v_max_f32 v{T2}, v{LA}, v{LB}")
    a(f"v_cmp_u_f32 s[58:59], v{LA}, v{LB}")
    a(f"v_cmp_ngt_f32 vcc, s56, v{T2}")
    a("s_nop 1")
    a("s_or_b64 vcc, vcc, s[58:59]")
    a(f"s_cbranch_vccz {N}_nochk")
    a(f"v_mov_b32 v{T2}, {FLAG}")
    a(f"v_mov_b32 v{T3}, 1")
    a(f"ds_write_b32 v{T2}, v{T3}")
    a(f"{N}_nochk:")
    a("s_mul_i32 s57, s22, 4608")
    a("s_xor_b32 s58, s22, 2")
    a("s_mul_i32 s58, s58, 4608")
    a(f"v_add_u32 v{T2}, s57, v{VL}")
    a(f"v_lshlrev_b32 v{T3}, 3, v1")
    a(f"v_add_u32 v{T3}, s57, v{T3}")
    a("s_cmp_eq_u32 s44, 0")
    a(f"s_cbranch_scc1 {N}_send1")
    for i in range(4): a(f"ds_write_b128 v{T2}, {vr(OA+4*i,4)} offset:{i*1024}")
    a(f"v_mov_b32 v{T4+1}, v{MRA}".replace(f"v{T4+1}", f"v{T4+1}"))
    a(f"v_mov_b32 v{T4+2}, v{LA}")
    for i in range(16): a(f"v_mov_b32 v{SA+i}, v{OB+i}")
    a(f"v_mov_b32 v{MRA}, v{MRB}")
    a(f"v_mov_b32 v{LA}, v{LB}")
    a(f"s_branch {N}_sent")
    a(f"{N}_send1:")
    for i in range(4): a(f"ds_write_b128 v{T2}, {vr(OB+4*i,4)} offset:{i*1024}")
    a(f"v_mov_b32 v{T4+1}, v{MRB}")
    a(f"v_mov_b32 v{T4+2}, v{LB}")
    for i in range(16): a(f"v_mov_b32 v{SA+i}, v{OA+i}")
    a(f"{N}_sent:")
    a(f"ds_write_b64 v{T3}, {vr(T4+1,2)} offset:4096")
    a("s_waitcnt lgkmcnt(0)")
    a("s_barrier")
    dg(a, "p2", 7)
    a(f"v_add_u32 v{T2}, s58, v{VL}")
    a(f"v_lshlrev_b32 v{T3}, 3, v1")
    a(f"v_add_u32 v{T3}, s58, v{T3}")
    a(f"v_mov_b32 v{T4}, {FLAG}")
    a(f"ds_read_b32 v{T4}, v{T4}")
    for i in range(4): a(f"ds_read_b128 {vr(SB+4*i,4)}, v{T2} offset:{i*1024}")
    a(f"ds_read_b64 {vr(PR,2)}, v{T3} offset:4096")
    a("s_waitcnt lgkmcnt(0)")
    a(f"v_readfirstlane_b32 s56, v{T4}")
    a("s_nop 3")
    a("s_cmp_eq_u32 s56, 1")
    a(f"s_cbranch_scc1 {N}_slow")
    MP, LP = PR, PR+1
    a(f"v_max_f32 v{T1}, v{MRA}, v{MP}")
    a(f"v_sub_f32 v{T2}, v{MRA}, v{T1}")
    a(f"v_sub_f32 v{T3}, v{MP}, v{T1}")
    a(f"v_exp_f32 v{T2}, v{T2}")
    a(f"v_exp_f32 v{T3}, v{T3}")
    a("s_nop 0")
    a(f"v_mul_f32 v{T1}, v{T2}, v{LA}")
    a(f"v_fmac_f32 v{T1}, v{T3}, v{LP}")
    a(f"v_rcp_f32 v{T1}, v{T1}")
    a("s_nop 0")
    a(f"v_mul_f32 v{T2}, v{T2}, v{T1}")
    a(f"v_mul_f32 v{T3}, v{T3}, v{T1}")
    for i in range(16):
        a(f"v_mul_f32 v{SA+i}, v{T2}, v{SA+i}")
    for i in range(16):
        a(f"v_fmac_f32 v{SA+i}, v{T3}, v{SB+i}")
    a("s_mov_b32 exec_lo, 0")
    for i in range(12, 16): a(f"v_mov_b32 v{SA+i}, 0")
    a("s_mov_b32 exec_lo, -1")
    for i in range(8): a(f"v_cvt_pk_bf16_f32 v{OA+i}, v{SA+2*i}, v{SA+2*i+1}")
    a("s_add_u32 s56, s46, s44")
    a("s_lshl_b32 s56, s56, 4")
    a("s_add_u32 s56, s56, s41")
    a("s_lshl_b32 s56, s56, 11")
    a(f"s_add_u32 s56, s56, {OF}")
    a(f"buffer_store_dwordx4 {vr(OA,4)}, v{VL}, {ws}, s56 offen{SC}")
    a(f"buffer_store_dwordx4 {vr(OA+4,4)}, v{VL}, {ws}, s56 offen offset:1024{SC}")
    a(f"s_branch {N}_p2done")
    a(f"{N}_slow:")
    a("s_mov_b32 s51, 1")
    a("s_mov_b32 exec_lo, 0")
    a(f"v_mov_b32 v{QA+6}, 0")
    a(f"v_mov_b32 v{QB+6}, 0")
    a("s_mov_b32 exec_lo, -1")
    a(f"v_mov_b32 v{T4}, 0xff7fffff")
    a(f"v_mov_b32 v{T5}, 0xff7fffff")
    a("s_lshl_b32 s56, s44, 5")
    a("s_add_u32 s56, s56, s45")
    a("s_lshl_b32 s56, s56, 12")
    a(f"s_add_u32 s56, s56, {KV}")
    a("s_mov_b32 s57, 0")
    a(f"{N}_sloop:")
    a(f"buffer_load_dwordx4 {vr(KF[0],4)}, v{VL}, {ws}, s56 offen{SC}")
    a(f"buffer_load_dwordx4 {vr(KF[0]+4,4)}, v{VL}, {ws}, s56 offen offset:1024{SC}")
    a("s_waitcnt vmcnt(0)")
    a(smf1(SA, 0, QA)); a(smf1(SB, 0, QB)); a(smf2(SA, 0, QA)); a(smf2(SB, 0, QB))
    a("s_nop 15")
    for i in range(0, 16, 2):
        a(f"v_max3_f32 v{T4}, v{T4}, v{SA+i}, v{SA+i+1}")
        a(f"v_max3_f32 v{T5}, v{T5}, v{SB+i}, v{SB+i+1}")
    a("s_add_u32 s56, s56, 4096")
    a("s_add_u32 s57, s57, 1")
    a("s_cmp_lt_u32 s57, 32")
    a(f"s_cbranch_scc1 {N}_sloop")
    a(f"v_mov_b32 v{T0}, v{T4}")
    set_m(a, QA, MRA, T0, T1)
    a(f"v_mov_b32 v{T0}, v{T5}")
    set_m(a, QB, MRB, T0, T1)
    a("s_lshl_b32 s50, s44, 14")
    a(f"v_add_u32 v{VC}, s50, v{VL}")
    a("s_barrier")
    a(f"v_mov_b32 v{T2}, {FLAG}")
    a(f"v_mov_b32 v{T3}, 2")
    a(f"ds_write_b32 v{T2}, v{T3}")
    a("s_waitcnt lgkmcnt(0)")
    a(f"s_branch {N}_restart")
    a(f"{N}_p2done:")

def set_m(a, QR, MR, T0, T1):
    a(f"v_mov_b32 v{T1}, v{T0}")
    a("s_nop 1")
    a(f"v_permlane32_swap_b32 v{T0}, v{T1}")
    a("s_nop 0")
    a(f"v_max_f32 v{T0}, v{T0}, v{T1}")
    a(f"v_cvt_pk_bf16_f32 v{T1}, -v{T0}, 0")
    a(f"v_lshlrev_b32 v{MR}, 16, v{T1}")
    a(f"v_xor_b32 v{MR}, 0x80000000, v{MR}")
    a("s_mov_b32 exec_lo, 0")
    a(f"v_mov_b32 v{QR+6}, v{T1}")
    a("s_mov_b32 exec_lo, -1")

A_, B_ = 4, 20
C1, C3, TW, WW = 36, 60, 84, 100
TW2R = 108
AD = 164
TR, TI = 124, 132
PK = 140
T = 148
SFT = 28
ft = "s[28:31]"
def fft_ld(a, dst, n, sreg, srd_, flag=""):
    for i in range(n):
        if i and i % 4 == 0:
            a(f"s_add_u32 s{sreg}, s{sreg}, 4096")
        a(f"buffer_load_dwordx4 {vr(dst+4*i,4)}, v2, {srd_}, s{sreg} offen offset:{(i%4)*1024}{flag}")
def fft_col(a, d):
    a(f"s_and_b32 s{d}, s2, 7")
    a(f"s_mul_i32 s{d}, s{d}, 28")
    a("s_lshr_b32 s41, s2, 3")
    a(f"s_add_u32 s{d}, s{d}, s41")
    a("s_cmp_lt_u32 s41, 28")
    a(f"s_cselect_b32 s{d}, s{d}, 255")
    a("s_cmp_eq_u32 s2, 224")
    a(f"s_cselect_b32 s{d}, 224, s{d}")
    if E("F_NOFFT"): a(f"s_mov_b32 s{d}, 255")
def fft_consts(a, N):
    offs, blob = tables.build()
    a("s_getpc_b64 s[28:29]")
    a("s_add_u32 s28, s28, FTAB@rel32@lo+4")
    a("s_addc_u32 s29, s29, FTAB@rel32@hi+12")
    a("s_and_b32 s29, s29, 0xffff")
    a(f"s_mov_b32 s30, {blob.size*2}")
    a(f"s_mov_b32 s31, 0x20000")
    a("s_sub_u32 s41, s22, 8")
    a("v_lshlrev_b32 v2, 4, v1")
    a("s_mul_i32 s45, s41, 6144")
    a(f"s_add_u32 s46, s45, {offs['C1']}")
    fft_ld(a, C1, 6, 46, ft)
    a("s_lshl_b32 s47, s41, 12")
    a(f"s_add_u32 s46, s47, {offs['TW1']}")
    fft_ld(a, TW, 4, 46, ft)
    a(f"s_mov_b32 s46, {offs['C3']}")
    fft_ld(a, C3, 6, 46, ft)
    a(f"s_add_u32 s46, s47, {offs['TW2']}")
    fft_ld(a, TW2R, 4, 46, ft)

def p2_fft(a, N, ST):
    a("s_cmp_gt_u32 s40, 224")
    a(f"s_cbranch_scc1 {N}_nofft0")
    p1_side_signal(a, N + "a", 20)
    a("s_barrier")
    a("s_barrier")
    a("s_mul_i32 s50, s40, 586")
    a("s_lshr_b32 s50, s50, 16")
    a("s_sub_u32 s51, 448, s40")
    a("s_cmp_eq_u32 s40, 0")
    a("s_cselect_b32 s51, 0, s51")
    a("s_mul_i32 s51, s51, 586")
    a("s_lshr_b32 s51, s51, 16")
    a("v_and_b32 v150, 15, v1")
    a("v_lshlrev_b32 v150, 2, v150")
    a("v_cmp_lt_u32 vcc, 15, v1")
    a("v_mov_b32 v151, s50")
    a("v_mov_b32 v152, s51")
    a("v_cndmask_b32 v151, v151, v152, vcc")
    a("v_lshlrev_b32 v151, 7, v151")
    a("v_add_u32 v150, v150, v151")
    a(f"v_add_u32 v150, {F1 + 12*128}, v150")
    a("s_lshr_b32 s50, s40, 6")
    a("s_lshl_b32 s50, s50, 8")
    a(f"s_add_u32 s50, s50, {FW}")
    a("v_lshlrev_b32 v151, 2, v1")
    a("v_add_u32 v151, s50, v151")
    a("s_mov_b32 s52, -1")
    a("s_mov_b32 s53, 0")
    poll(a, [150, 151], ["s[52:53]", None])
    a("s_setprio 2")
    a("s_sub_u32 s41, s22, 8")
    a("v_lshlrev_b32 v2, 4, v1")
    a("v_lshrrev_b32 v3, 4, v1")
    a("v_lshlrev_b32 v3, 9, v3")
    a(f"v_and_b32 v{T}, 15, v1")
    a(f"v_lshl_add_u32 v3, v{T}, 4, v3")
    a("s_lshl_b32 s42, s40, 12")
    a(f"s_add_u32 s42, s42, {X1}")
    a("s_sub_u32 s43, 448, s40")
    a("s_cmp_eq_u32 s40, 0")
    a("s_cselect_b32 s43, 0, s43")
    a("s_lshl_b32 s44, s43, 12")
    a(f"s_add_u32 s44, s44, {X1}")
    for t in range(2):
        for ks in range(2):
            a(f"buffer_load_dwordx4 {vr(A_+4*(2*t+ks),4)}, v3, {ws}, s42 offen offset:{ks*2048+t*256}{SC}")
            a(f"buffer_load_dwordx4 {vr(B_+4*(2*t+ks),4)}, v3, {ws}, s44 offen offset:{ks*2048+t*256}{SC}")
    a("s_lshl_b32 s46, s40, 13")
    a("s_lshl_b32 s48, s41, 11")
    a("s_add_u32 s46, s46, s48")
    a(f"s_add_u32 s46, s46, {WT}")
    fft_ld(a, WW, 2, 46, ws, SC)
    a("s_barrier")
    dg(a, "p2", 3)
    a("s_waitcnt vmcnt(0)")
    P = lambda ks: vr(C1+4*ks, 4); Q = lambda ks: vr(C1+8+4*ks, 4); NQ = lambda ks: vr(C1+16+4*ks, 4)
    da = lambda t, ks: vr(A_+4*(2*t+ks), 4); db = lambda t, ks: vr(B_+4*(2*t+ks), 4)
    tr = lambda t: vr(TR+4*t, 4); ti = lambda t: vr(TI+4*t, 4)
    for step in range(4):
        ks = step % 2
        for t in range(2):
            cr = "0" if step == 0 else tr(t); ci = "0" if step == 0 else ti(t)
            if step < 2:
                a(f"{MF16} {tr(t)}, {da(t,ks)}, {P(ks)}, {cr}")
                a(f"{MF16} {ti(t)}, {da(t,ks)}, {NQ(ks)}, {ci}")
            else:
                a(f"{MF16} {tr(t)}, {db(t,ks)}, {Q(ks)}, {cr}")
                a(f"{MF16} {ti(t)}, {db(t,ks)}, {P(ks)}, {ci}")
    a("s_nop 7")
    def cmul(xr, xi, c, s, outr, outi):
        for p in range(0, 4, 2):
            a(f"v_pk_mul_f32 {vr(T+p,2)}, {vr(xi+p,2)}, {vr(s+p,2)}")
            a(f"v_pk_mul_f32 {vr(T+4+p,2)}, {vr(xi+p,2)}, {vr(c+p,2)}")
        for p in range(0, 4, 2):
            a(f"v_pk_fma_f32 {vr(outr+p,2)}, {vr(xr+p,2)}, {vr(c+p,2)}, {vr(T+p,2)} neg_lo:[0,0,1] neg_hi:[0,0,1]")
            a(f"v_pk_fma_f32 {vr(outi+p,2)}, {vr(xr+p,2)}, {vr(s+p,2)}, {vr(T+4+p,2)}")
    O1 = T + 8
    def packRI(t):
        a(f"v_cvt_pk_bf16_f32 v{PK+2*t}, v{O1}, v{O1+1}")
        a(f"v_cvt_pk_bf16_f32 v{PK+2*t+1}, v{O1+2}, v{O1+3}")
        a(f"v_cvt_pk_bf16_f32 v{PK+4+2*t}, v{O1+4}, v{O1+5}")
        a(f"v_cvt_pk_bf16_f32 v{PK+4+2*t+1}, v{O1+6}, v{O1+7}")
    for t in range(2):
        cmul(TR+4*t, TI+4*t, TW+8*t, TW+8*t+4, O1, O1+4)
        packRI(t)
    a("s_nop 1")
    Fr = lambda u: vr(C3+4*u, 4); Fi = lambda u: vr(C3+8+4*u, 4); NFi = lambda u: vr(C3+16+4*u, 4)
    BR, BI = vr(PK, 4), vr(PK+4, 4)
    for u in range(2):
        a(f"{MF16} {tr(u)}, {Fr(u)}, {BR}, 0")
        a(f"{MF16} {ti(u)}, {Fi(u)}, {BR}, 0")
    for u in range(2):
        a(f"{MF16} {tr(u)}, {NFi(u)}, {BI}, {tr(u)}")
        a(f"{MF16} {ti(u)}, {Fr(u)}, {BI}, {ti(u)}")
    ST.n = 5; ST.stamp()
    dg(a, "p2", 4)
    for u in range(2):
        for i in range(4):
            a(f"v_lshlrev_b32 v{A_+8*u+i}, 16, v{WW+4*u+i}")
            a(f"v_and_b32 v{A_+8*u+4+i}, 0xffff0000, v{WW+4*u+i}")
    for u in range(2):
        cmul(TR+4*u, TI+4*u, A_+8*u, A_+8*u+4, O1, O1+4)
        packRI(u)
    a("s_nop 1")
    AR, AI = vr(PK, 4), vr(PK+4, 4)
    for t in range(2):
        a(f"{MF16} {tr(t)}, {AR}, {Fr(t)}, 0")
        a(f"{MF16} {ti(t)}, {AR}, {NFi(t)}, 0")
    for t in range(2):
        a(f"{MF16} {tr(t)}, {AI}, {Fi(t)}, {tr(t)}")
        a(f"{MF16} {ti(t)}, {AI}, {Fr(t)}, {ti(t)}")
    a(f"v_and_b32 v{AD}, 15, v1")
    a(f"v_mul_u32_u24 v{AD}, 144, v{AD}")
    a(f"v_lshrrev_b32 v{AD+1}, 4, v1")
    a(f"v_lshl_add_u32 v{AD+2}, v{AD+1}, 3, v{AD}")
    a("s_lshl_b32 s46, s41, 5")
    a(f"s_add_u32 s46, s46, {XB}")
    a(f"v_add_u32 v{AD+2}, s46, v{AD+2}")
    a(f"v_lshl_add_u32 v{AD+3}, v{AD+1}, 4, v{AD}")
    a(f"v_add_u32 v{AD+3}, {XB}, v{AD+3}")
    a("s_nop 1")
    for t in range(2):
        cmul(TR+4*t, TI+4*t, TW2R+8*t, TW2R+8*t+4, O1, O1+4)
        packRI(t)
        a(f"ds_write_b64 v{AD+2}, {vr(PK+2*t,2)} offset:{t*16*144}")
        a(f"ds_write_b64 v{AD+2}, {vr(PK+4+2*t,2)} offset:{4608+t*16*144}")
    a("s_waitcnt lgkmcnt(0)")
    dg(a, "p2", 5)
    a("s_barrier")
    DR = 60
    for part in range(2):
        for t in range(2):
            for ks in range(2):
                a(f"ds_read_b128 {vr(DR+4*(part*4+t*2+ks),4)}, v{AD+3} offset:{part*4608+t*16*144+ks*64}")
    A1, A2, NA2 = P, Q, NQ
    br = lambda t, ks: vr(DR+4*(t*2+ks), 4); bi = lambda t, ks: vr(DR+4*(4+t*2+ks), 4)
    a("s_waitcnt lgkmcnt(0)")
    for step in range(4):
        ks = step % 2
        for t in range(2):
            cm = "0" if step == 0 else tr(t); cp = "0" if step == 0 else ti(t)
            if step < 2:
                a(f"{MF16} {tr(t)}, {A1(ks)}, {br(t,ks)}, {cm}")
                a(f"{MF16} {ti(t)}, {A2(ks)}, {br(t,ks)}, {cp}")
            else:
                a(f"{MF16} {tr(t)}, {NA2(ks)}, {bi(t,ks)}, {cm}")
                a(f"{MF16} {ti(t)}, {A1(ks)}, {bi(t,ks)}, {cp}")
    a("s_nop 7")
    a("s_cmp_eq_u32 s40, 0")
    a(f"s_cbranch_scc1 {N}_avg")
    a("s_cmp_eq_u32 s40, 224")
    a(f"s_cbranch_scc0 {N}_noavg")
    a(f"{N}_avg:")
    for i in range(8):
        a(f"v_add_f32 v{TR+i}, v{TR+i}, v{TI+i}")
        a(f"v_mul_f32 v{TR+i}, 0.5, v{TR+i}")
        a(f"v_mov_b32 v{TI+i}, v{TR+i}")
    a(f"{N}_noavg:")
    for t in range(2):
        a(f"v_cvt_pk_bf16_f32 v{PK+2*t}, v{TR+4*t}, v{TR+4*t+1}")
        a(f"v_cvt_pk_bf16_f32 v{PK+2*t+1}, v{TR+4*t+2}, v{TR+4*t+3}")
        a(f"v_cvt_pk_bf16_f32 v{PK+4+2*t}, v{TI+4*t}, v{TI+4*t+1}")
        a(f"v_cvt_pk_bf16_f32 v{PK+4+2*t+1}, v{TI+4*t+2}, v{TI+4*t+3}")
    a("v_lshlrev_b32 v2, 3, v1")
    a("s_lshl_b32 s46, s41, 10")
    a("s_lshl_b32 s47, s40, 12")
    a("s_add_u32 s47, s47, s46")
    a(f"s_add_u32 s47, s47, {UT}")
    a("s_lshl_b32 s48, s43, 12")
    a("s_add_u32 s48, s48, s46")
    a(f"s_add_u32 s48, s48, {UT}")
    for t in range(2):
        a(f"buffer_store_dwordx2 {vr(PK+2*t,2)}, v2, {ws}, s47 offen offset:{t*512}{SC}")
        a(f"buffer_store_dwordx2 {vr(PK+4+2*t,2)}, v2, {ws}, s48 offen offset:{t*512}{SC}")
    a("s_setprio 0")
    ST.n = 6; ST.stamp()
    dg(a, "p2", 6)
    a("s_barrier")
    a("s_waitcnt vmcnt(0)")
    dg(a, "p2", 7)
    a("s_barrier")
    dg(a, "p2", 8)
    a("s_cmp_lg_u32 s22, 8")
    a(f"s_cbranch_scc1 {N}_fftd")
    a("s_lshl_b32 s50, s40, 2")
    a(f"s_add_u32 s50, s50, {FU}")
    signal(a, 50)
    a(f"{N}_fftd:")
    for i in range(3): a("s_barrier")
    a(f"s_branch {N}_fftmb")
    a(f"{N}_nofft0:")
    p1_side_signal(a, N + "b", 0)
    for i in range(9): a("s_barrier")
    a(f"{N}_fftmb:")
    a("s_barrier")
    a(f"v_mov_b32 v2, {FLAG}")
    a("ds_read_b32 v2, v2")
    a("s_waitcnt lgkmcnt(0)")
    a("v_readfirstlane_b32 s56, v2")
    a("s_nop 3")
    a("s_cmp_eq_u32 s56, 1")
    a(f"s_cbranch_scc0 {N}_fftok")
    for i in range(11): a("s_barrier")
    a(f"{N}_fftok:")

WREG = 0
TREG = 131072
def p3_decode(a):
    a("s_and_b32 s60, s2, 7")
    a("s_lshr_b32 s45, s2, 3")
    a("s_and_b32 s48, s60, 1")
    a("s_lshr_b32 s46, s60, 1")
    a("s_lshl_b32 s46, s46, 3")
    a("s_and_b32 s47, s45, 7")
    a("s_add_u32 s46, s46, s47")
    a("s_lshr_b32 s49, s45, 3")

def p3_loader(a, N, ST):
    SW = 28
    VT, VW = 10, 12
    a("s_sub_u32 s51, s22, 8")
    a("s_getpc_b64 s[52:53]")
    a("s_add_u32 s52, s52, HTAB@rel32@lo+4")
    a("s_addc_u32 s53, s53, HTAB@rel32@hi+12")
    a("s_cmp_eq_u32 s48, 1")
    a("s_cselect_b32 s54, s52, s8")
    a("s_cselect_b32 s55, s53, s9")
    srd(a, SW, 54, 55, 448*896)
    a("v_lshrrev_b32 v2, 4, v1")
    a("v_mul_u32_u24 v3, 896, v2")
    a("v_lshlrev_b32 v4, 2, v2")
    a("v_and_b32 v5, 15, v1")
    a("v_xor_b32 v4, v4, v5")
    a(f"v_lshl_add_u32 v{VW}, v4, 4, v3")
    a("s_mul_i32 s57, s49, 224")
    a(f"v_add_u32 v{VW}, s57, v{VW}")
    a("s_cmp_eq_u32 s48, 1")
    a(f"s_cbranch_scc1 {N}_wrB")
    a("s_lshr_b32 s61, s51, 1")
    a("s_mul_i32 s61, s61, 28")
    a("s_and_b32 s62, s51, 1")
    a("s_lshl_b32 s63, s62, 4")
    a("s_add_u32 s61, s61, s63")
    a("s_add_u32 s56, s61, 0")
    a("s_add_u32 s57, s61, 4")
    a("s_add_u32 s58, s61, 8")
    a("s_add_u32 s59, s61, 12")
    a("s_cmp_eq_u32 s62, 1")
    a("s_cselect_b32 s59, s58, s59")
    a("s_mov_b32 s60, 56")
    a("s_mov_b32 s64, 8")
    a(f"s_branch {N}_wrd")
    a(f"{N}_wrB:")
    a("s_lshl_b32 s61, s51, 4")
    for ii in range(4): a(f"s_add_u32 s{56+ii}, s61, {4*ii}")
    a("s_mov_b32 s60, 64")
    a("s_mov_b32 s64, 7")
    a(f"{N}_wrd:")
    for ii in range(4): a(f"s_mulk_i32 s{56+ii}, 896")
    a("s_mulk_i32 s60, 896")
    a("s_lshl_b32 s61, s51, 12")
    for c in range(8):
        for ii in range(4):
            a(f"s_add_u32 m0, s61, {WREG + c*16384 + ii*1024}")
            a(f"s_mul_i32 s62, s60, {c}")
            a(f"s_add_u32 s62, s62, s{56+ii}")
            a(f"buffer_load_dwordx4 v{VW}, s[{SW}:{SW+3}], s62 offen lds")
    a("s_cmp_eq_u32 s48, 1")
    a(f"s_cbranch_scc1 {N}_tB")
    a("s_lshl_b32 s56, s46, 1")
    a("s_lshr_b32 s57, s51, 1")
    a("s_add_u32 s56, s56, s57")
    a("s_lshl_b32 s56, s56, 4")
    a("s_and_b32 s57, s51, 1")
    a("s_add_u32 s56, s56, s57")
    a("s_lshl_b32 s56, s56, 11")
    a(f"s_add_u32 s56, s56, {OF}")
    a(f"v_lshlrev_b32 v{VT}, 4, v1")
    a("s_movk_i32 s57, 4096")
    a("s_movk_i32 s58, 1024")
    a(f"s_branch {N}_tD")
    a(f"{N}_tB:")
    a("v_lshrrev_b32 v2, 3, v1")
    a("v_bfe_u32 v3, v1, 4, 1")
    a("v_lshlrev_b32 v3, 2, v3")
    a("v_and_b32 v4, 7, v1")
    a("v_xor_b32 v3, v3, v4")
    a("v_lshlrev_b32 v3, 4, v3")
    a(f"v_lshl_add_u32 v{VT}, v2, 12, v3")
    a("s_lshl_b32 s56, s51, 16")
    a("s_lshl_b32 s57, s46, 7")
    a("s_add_u32 s56, s56, s57")
    a(f"s_add_u32 s56, s56, {UT}")
    a(f"s_mov_b32 s57, {64*4096}")
    a(f"s_mov_b32 s58, {8*4096}")
    a(f"{N}_tD:")
    a("s_lshl_b32 s59, s51, 11")
    a("s_barrier")
    def tok(c):
        slot = c % 4
        a(f"s_add_u32 m0, s59, {TREG + slot*8192}")
        a("s_add_u32 s62, s56, s58")
        a(f"buffer_load_dwordx4 v{VT}, {ws}, s56 offen{SC} lds")
        a(f"s_add_u32 m0, s59, {TREG + slot*8192 + 1024}")
        a("s_nop 0")
        a(f"buffer_load_dwordx4 v{VT}, {ws}, s62 offen{SC} lds")
        a("s_add_u32 s56, s56, s57")
    for c in range(4): tok(c)
    issued = 4
    for c in range(8):
        a(f"s_waitcnt vmcnt({2 * (issued - (c + 1))})")
        a("s_barrier")
        if c >= 1 and issued < 8:
            tok(issued); issued += 1
    fin(a, ST)

def p3_compute(a, N, ST):
    SO = 32
    ACC3 = 32
    TF = [48, 52]; WF3 = [56, 60]
    WA3, TA = 4, 5
    srd(a, SO, 16, 17, 2048*1792)
    a("v_lshrrev_b32 v2, 5, v1")
    a("v_bfe_u32 v3, v1, 2, 2")
    a("v_lshl_add_u32 v2, v2, 2, v3")
    a("v_lshlrev_b32 v16, 8, v2")
    a("v_bfe_u32 v15, v1, 4, 1")
    a("v_lshlrev_b32 v15, 5, v15")
    a("v_and_b32 v17, 3, v1")
    a("v_lshl_add_u32 v15, v17, 3, v15")
    a("s_lshr_b32 s65, s22, 1")
    a("s_mul_i32 s65, s65, 56")
    a("v_add_u32 v17, s65, v15")
    a("v_lshrrev_b32 v18, 4, v17")
    a("v_lshlrev_b32 v19, 2, v3")
    a("v_xor_b32 v18, v18, v19")
    a("v_and_b32 v17, 15, v17")
    a("v_lshl_add_u32 v17, v18, 4, v17")
    a(f"v_add_u32 v{WA3}, v16, v17")
    a("s_and_b32 s65, s22, 1")
    a("s_cmp_eq_u32 s48, 1")
    a(f"s_cbranch_scc1 {N}_raB")
    a("s_lshl_b32 s65, s65, 12")
    a(f"v_lshlrev_b32 v{TA}, 4, v1")
    a(f"v_add_u32 v{TA}, s65, v{TA}")
    a(f"s_branch {N}_radone")
    a(f"{N}_raB:")
    a("s_lshl_b32 s65, s65, 6")
    a("v_add_u32 v17, s65, v15")
    a("v_lshrrev_b32 v18, 4, v17")
    a("v_bfe_u32 v19, v2, 1, 1")
    a("v_lshlrev_b32 v19, 2, v19")
    a("v_xor_b32 v18, v18, v19")
    a("v_and_b32 v17, 15, v17")
    a("v_lshl_add_u32 v17, v18, 4, v17")
    a(f"v_lshl_add_u32 v{TA}, v2, 7, v17")
    a(f"{N}_radone:")
    a(f"v_add_u32 v{TA}, {TREG}, v{TA}")
    for r in range(ACC3, ACC3+16):
        a(f"v_mov_b32 v{r}, 0")
    def main(partB):
        nch = 7 if partB else 8
        nst = nch * 4
        base = [0]
        def reads(n):
            c, kk = n // 4, n % 4
            want = (c // 4) * 65536
            if want != base[0]:
                a(f"v_add_u32 v{WA3}, {want - base[0]:#x}, v{WA3}")
                base[0] = want
            woff = c * 16384 - want
            toff = (c % 4) * 8192
            b = n % 2
            if partB:
                a(f"ds_read_b64_tr_b16 {vr(TF[b],2)}, v{TA} offset:{toff + kk*16*128}")
                a(f"ds_read_b64_tr_b16 {vr(TF[b]+2,2)}, v{TA} offset:{toff + kk*16*128 + 8*128}")
            else:
                a(f"ds_read_b128 {vr(TF[b],4)}, v{TA} offset:{toff + kk*1024}")
            a(f"ds_read_b64_tr_b16 {vr(WF3[b],2)}, v{WA3} offset:{woff + kk*16*256}")
            a(f"ds_read_b64_tr_b16 {vr(WF3[b]+2,2)}, v{WA3} offset:{woff + kk*16*256 + 8*256}")
        nr = 4 if partB else 3
        a("s_barrier")
        reads(0)
        for n in range(nst):
            b = n % 2
            if n + 1 < nst:
                if (n + 1) % 4 == 0:
                    a(f"s_waitcnt lgkmcnt(0)")
                    a("s_barrier")
                    reads(n + 1)
                else:
                    reads(n + 1)
                    a(f"s_waitcnt lgkmcnt({nr})")
            else:
                a("s_waitcnt lgkmcnt(0)")
            d = vr(ACC3, 16)
            a(f"{MF32} {d}, {vr(WF3[b],4)}, {vr(TF[b],4)}, {d}")
        if partB: a("s_barrier")
        a("s_nop 15")
    a("s_cmp_eq_u32 s48, 1")
    a(f"s_cbranch_scc1 {N}_mainB")
    main(False)
    a(f"s_branch {N}_epi")
    a(f"{N}_mainB:")
    main(True)
    a(f"{N}_epi:")
    ST.n = 9; ST.stamp()
    dbgt(a, 8)
    a("s_cmp_eq_u32 s48, 1")
    a(f"s_mov_b32 s65, {f32bits(2.0/(2048*448)):#x}")
    a("s_cselect_b32 s65, s65, 1.0")
    for i in range(16):
        a(f"v_mul_f32 v{ACC3+i}, s65, v{ACC3+i}")
    for i in range(8):
        a(f"v_cvt_pk_bf16_f32 v{48+i}, v{ACC3+2*i}, v{ACC3+2*i+1}")
    a("s_barrier")
    a("v_and_b32 v2, 31, v1")
    a("s_and_b32 s65, s22, 1")
    a("s_lshl_b32 s65, s65, 5")
    a("v_add_u32 v2, s65, v2")
    a("v_mul_u32_u24 v2, 240, v2")
    a("v_lshrrev_b32 v3, 5, v1")
    a("v_lshl_add_u32 v2, v3, 3, v2")
    a("s_lshr_b32 s65, s22, 1")
    a("s_mul_i32 s65, s65, 56")
    a("v_add_u32 v2, s65, v2")
    for jp in range(3):
        a(f"ds_write_b64 v2, {vr(48+2*jp,2)} offset:{jp*16}")
    a("s_mov_b32 exec_hi, 0")
    a(f"ds_write_b64 v2, {vr(48+6,2)} offset:48")
    a("s_mov_b32 exec_hi, -1")
    a("s_waitcnt lgkmcnt(0)")
    a("s_barrier")
    a("s_mul_i32 s65, s48, 896")
    a("s_mul_i32 s66, s49, 224")
    a("s_add_u32 s65, s65, s66")
    def rb(it):
        a("s_lshl_b32 s66, s46, 6")
        a(f"v_add_u32 v4, {512*it}, v0")
        a("v_mul_u32_u24 v5, 4682, v4")
        a("v_lshrrev_b32 v5, 16, v5")
        a("v_mul_u32_u24 v6, 14, v5")
        a("v_sub_u32 v6, v4, v6")
        a("v_mul_u32_u24 v7, 240, v5")
        a("v_lshl_add_u32 v7, v6, 4, v7")
        a(f"ds_read_b128 {vr(32+4*it,4)}, v7")
        a("v_add_u32 v5, s66, v5")
        a("s_cmp_eq_u32 s48, 0")
        a(f"s_cbranch_scc1 {N}_tk{it}")
        a("v_and_b32 v8, 3, v5")
        a("v_bfe_u32 v9, v5, 6, 2")
        a("v_lshl_add_u32 v8, v9, 2, v8")
        a("v_lshrrev_b32 v9, 9, v5")
        a("v_lshl_add_u32 v8, v9, 4, v8")
        a("v_lshlrev_b32 v8, 5, v8")
        a("v_bfe_u32 v9, v5, 8, 1")
        a("v_lshl_add_u32 v8, v9, 4, v8")
        a("v_bfe_u32 v9, v5, 2, 4")
        a("v_add_u32 v5, v8, v9")
        a(f"{N}_tk{it}:")
        a("v_mul_u32_u24 v5, 1792, v5")
        a(f"v_lshl_add_u32 v{20+it}, v6, 4, v5")
    rb(0)
    a("s_waitcnt lgkmcnt(0)")
    a(f"buffer_store_dwordx4 {vr(32,4)}, v20, s[{SO}:{SO+3}], s65 offen")
    a("v_cmp_gt_u32 vcc, 384, v0")
    a("s_and_saveexec_b64 s[66:67], vcc")
    a(f"s_cbranch_execz {N}_fin")
    rb(1)
    a("s_waitcnt lgkmcnt(0)")
    a(f"buffer_store_dwordx4 {vr(36,4)}, v21, s[{SO}:{SO+3}], s65 offen")
    a(f"{N}_fin:")
    if DBGT:
        a("s_mov_b64 exec, -1")
        a("s_waitcnt vmcnt(0)")
        dbgt(a, 9)
        dbgt_dump(a)
    fin(a, ST)
```

```python
from asmlib import *
import struct, math, os
import tables
QF, KV, X1, WT, OF, UT, FL = 0x000000, 0x200000, 0x600000, 0x800000, 0xA00000, 0xC00000, 0xE00000
WS_SIZE = 0xE10000
F1, FW, FO, FU = FL, FL + 0x1000, FL + 0x2000, FL + 0x3000
OOB = 0xF00000 + 0x100000
def f32bits(x): return struct.unpack("<I", struct.pack("<f", x))[0]
QSCALE = f32bits((28 ** -0.5) * math.log2(math.e))
BLOCK = 768
LDS = 163840
MF32 = "v_mfma_f32_32x32x16_bf16"
MF16 = "v_mfma_f32_16x16x32_bf16"
SWS = 24
ws = "s[24:27]"
SC = " sc1"
SPIN = int(os.environ.get('SPIN', '400000'))
E = os.environ.get

def srd(a, d, lo, hi, size):
    a(f"s_mov_b32 s{d}, s{lo}")
    a(f"s_and_b32 s{d+1}, s{hi}, 0xffff")
    a(f"s_mov_b32 s{d+2}, {size}")
    a(f"s_mov_b32 s{d+3}, 0x20000")
def pack(a, src, dst, n=8):
    for i in range(n):
        a(f"v_cvt_pk_bf16_f32 v{dst+i}, v{src+2*i}, v{src+2*i+1}")

_uid = [0]
def uid():
    _uid[0] += 1
    return _uid[0]

def get_tag(a):
    n = uid()
    srd(a, 72, 18, 19, 256)
    a("v_mov_b32 v2, 0")
    a("s_mov_b32 s70, 0")
    a(f"tagL{n}:")
    a("buffer_load_dword v3, v2, s[72:75], 0 offen sc1")
    a("s_waitcnt vmcnt(0)")
    a("v_readfirstlane_b32 s23, v3")
    a("s_nop 3")
    a("s_cmp_lg_u32 s23, 0")
    a(f"s_cbranch_scc1 tagD{n}")
    a("s_add_u32 s70, s70, 1")
    a(f"s_cmp_lt_u32 s70, {SPIN}")
    a("s_sleep 1")
    a(f"s_cbranch_scc1 tagL{n}")
    a(f"tagD{n}:")

def poll(a, voffs, masks=None):
    n = uid()
    a("s_mov_b32 s70, 0")
    a("s_mov_b64 s[68:69], exec")
    a(f"plL{n}:")
    for i, vo in enumerate(voffs):
        if masks and masks[i] is not None: a(f"s_mov_b64 exec, {masks[i]}")
        else: a("s_mov_b64 exec, -1")
        a(f"buffer_load_dword v{160+i}, v{vo}, {ws}, 0 offen sc1")
    a("s_waitcnt vmcnt(0)")
    a("s_mov_b64 s[66:67], 0")
    for i, vo in enumerate(voffs):
        if masks and masks[i] is not None: a(f"s_mov_b64 exec, {masks[i]}")
        else: a("s_mov_b64 exec, -1")
        a(f"v_cmp_ne_u32 vcc, s23, v{160+i}")
        a("s_nop 1")
        a("s_or_b64 s[66:67], s[66:67], vcc")
    a("s_mov_b64 exec, s[68:69]")
    a("s_cmp_eq_u64 s[66:67], 0")
    a(f"s_cbranch_scc1 plD{n}")
    a("s_add_u32 s70, s70, 1")
    a(f"s_cmp_lt_u32 s70, {SPIN}")
    a("s_sleep 2")
    a(f"s_cbranch_scc1 plL{n}")
    a(f"plD{n}:")

def signal(a, off_sgpr):
    a("s_mov_b64 s[68:69], exec")
    a("s_mov_b64 exec, 1")
    a("v_mov_b32 v2, 0")
    a("v_mov_b32 v3, s23")
    a(f"buffer_store_dword v3, v2, {ws}, s{off_sgpr} offen sc1")
    a("s_mov_b64 exec, s[68:69]")

TAGL = 163840 - 16
def signal2(a, off_sgpr):
    a("s_mov_b64 s[62:63], exec")
    a("s_mov_b64 exec, 1")
    a("v_mov_b32 v2, 0")
    a("v_mov_b32 v3, s23")
    a(f"buffer_store_dword v3, v2, {ws}, s{off_sgpr} offen sc1")
    a("s_mov_b64 exec, s[62:63]")

DBGT = os.environ.get("DBGT")
def dbgt(a, idx, mn=False):
    if not DBGT: return
    a(f"s_memrealtime s[{76+2*idx}:{77+2*idx}]")
def dbgt_dump(a):
    if not DBGT: return
    n = uid()
    a("s_cmp_lg_u32 s22, 0")
    a(f"s_cbranch_scc1 dbt{n}")
    a(f"s_cmp_lg_u32 s2, {DBGT}")
    a(f"s_cbranch_scc1 dbt{n}")
    a("s_waitcnt lgkmcnt(0)")
    srd(a, 72, 18, 19, 256)
    a("s_mov_b64 exec, 1")
    a("v_mov_b32 v160, 0")
    for i in range(0, 11):
        a(f"s_sub_u32 s64, s{76+2*i}, s76")
        a("v_mov_b32 v161, s64")
        a(f"buffer_store_dword v161, v160, s[72:75], 0 offen offset:{4*(i+1)}")
        a("s_nop 1")
    a(f"s_sub_u32 s64, s76, s23")
    a("v_mov_b32 v161, s64")
    a(f"buffer_store_dword v161, v160, s[72:75], 0 offen offset:{4*12}")
    a(f"dbt{n}:")

DIAG = os.environ.get("DIAG")
class NoST:
    n = 0
    def stamp(self, *a): pass
    def end(self): pass
    def flush(self, *a): pass
def dg(a, tag, idx):
    if STAMP and DIAG == tag:
        a(f"{'s_memtime' if STAMP == 'cyc' else 's_memrealtime'} s[{76+2*idx}:{77+2*idx}]")

def gen(name):
    a = Asm()
    N = "F"
    ST = Stamps(a, 0, 22)
    if DIAG:
        real = ST
        class PST:
            n = 0
            def stamp(self, cyc=False):
                if self.n in (0, 1): real.n = self.n; real.stamp(cyc)
                self.n += 1
            def end(self): real.end()
            def flush(self, t): real.flush(t)
        ST = PST()
    a("s_cmp_ge_u32 s2, 256")
    a(f"s_cbranch_scc1 {N}_end")
    if STAMP:
        for i in range(76, 100): a(f"s_mov_b32 s{i}, 0")
    ST.stamp(); ST.stamp(True)
    dbgt(a, 0)
    a("s_load_dwordx16 s[4:19], s[0:1], 0")
    a("s_load_dwordx2 s[20:21], s[0:1], 64")
    a("v_and_b32 v1, 63, v0")
    a("v_lshrrev_b32 v2, 6, v0")
    a("s_nop 0")
    a("v_readfirstlane_b32 s22, v2")
    a("s_and_b32 s44, s2, 7")
    a("s_lshr_b32 s45, s2, 3")
    a("s_and_b32 s48, s44, 3")
    a("s_lshr_b32 s46, s44, 2")
    a("s_lshl_b32 s46, s46, 3")
    a("s_and_b32 s47, s45, 7")
    a("s_add_u32 s46, s46, s47")
    a("s_lshr_b32 s49, s45, 3")
    a("s_cmp_ge_u32 s22, 8")
    a(f"s_cbranch_scc1 {N}_aux")
    p1_addr(a)
    a("s_waitcnt lgkmcnt(0)")
    ST.stamp()
    srd(a, SWS, 20, 21, WS_SIZE)
    srd(a, 72, 18, 19, 256)
    a("s_cmp_lg_u32 s22, 0")
    a(f"s_cbranch_scc1 {N}_notag")
    a(f"v_mov_b32 v2, {TAGL}")
    a("v_mov_b32 v3, 0")
    a("ds_write_b32 v2, v3")
    a("ds_write_b32 v2, v3 offset:4")
    a("ds_write_b32 v2, v3 offset:8")
    a("ds_write_b32 v2, v3 offset:12")
    a("s_cmp_lg_u32 s2, 0")
    a(f"s_cbranch_scc1 {N}_tagw")
    a("s_memrealtime s[70:71]")
    a("v_mov_b32 v2, 0")
    a("buffer_load_dword v3, v2, s[72:75], 0 offen sc1")
    a("s_waitcnt vmcnt(0) lgkmcnt(0)")
    a("v_readfirstlane_b32 s23, v3")
    a("s_nop 3")
    a("s_cmp_lg_u32 s23, 0")
    a(f"s_cbranch_scc1 {N}_tagw")
    a("s_or_b32 s23, s70, 1")
    a("s_mov_b64 exec, 1")
    a("v_mov_b32 v3, s23")
    a("buffer_store_dword v3, v2, s[72:75], 0 offen sc1")
    a("s_mov_b64 exec, -1")
    a(f"{N}_tagw:")
    a("s_waitcnt lgkmcnt(0)")
    a(f"{N}_notag:")
    dbgt(a, 1)
    p1_compute(a, N, ST)
    a(f"{N}_p1done:")
    a("s_waitcnt vmcnt(0)")
    a(f"v_mov_b32 v2, {TAGL}")
    a("v_mov_b32 v3, 1")
    a("s_mov_b64 exec, 1")
    a("ds_add_rtn_u32 v4, v2, v3 offset:4")
    a("s_mov_b64 exec, -1")
    a("s_waitcnt lgkmcnt(0)")
    a("v_readfirstlane_b32 s50, v4")
    ST.n = 4; ST.stamp()
    a("s_nop 3")
    dbgt(a, 3)
    a("s_cmp_lg_u32 s50, 7")
    a(f"s_cbranch_scc1 {N}_nosig1")
    a("s_lshl_b32 s50, s48, 2")
    a("s_add_u32 s50, s50, s49")
    a("s_lshl_b32 s50, s50, 7")
    a("s_lshl_b32 s51, s46, 2")
    a("s_add_u32 s50, s50, s51")
    a(f"s_add_u32 s50, s50, {F1}")
    signal(a, 50)
    a(f"{N}_nosig1:")
    a("s_cmp_ge_u32 s22, 4")
    a(f"s_cbranch_scc1 {N}_kl")
    p2_attn(a, N, ST)
    a(f"s_branch {N}_p2end")
    a(f"{N}_kl:")
    p2_kvload(a, N, ST)
    a(f"{N}_p2end:")
    a("s_waitcnt vmcnt(0)")
    a("s_barrier")
    dg(a, "p2", 8)
    ST.n = 7; ST.stamp()
    dbgt(a, 6)
    dg(a, "p3", 2)
    p3_decode(a)
    p3_compute(a, N, ST)
    a(f"{N}_aux:")
    p1_loader(a, N, ST)
    ST.n = 3; ST.stamp()
    dg(a, "p2", 2)
    p2_fft(a, N, ST)
    a("s_barrier")
    p3_decode(a)
    p3_loader(a, N, ST)
    a(f"{N}_end:")
    a("s_endpgm")
    return a

def fin(a, ST):
    if STAMP:
        a("s_waitcnt vmcnt(0)")
        ST.end()
        ST.flush(0)
    a("s_endpgm")

ACC = 32
XF = [64, 68, 88]; WF = [[72, 76], [80, 84], [92, 96]]
XA = [4, 5, 6, 7]; WA = [8, 9]
NS1 = 4
def p1_addr(a):
    a("s_and_b32 s62, s22, 3")
    a("s_lshl_b32 s62, s62, 12")
    a("v_and_b32 v2, 31, v1")
    a("v_lshlrev_b32 v3, 7, v2")
    a("v_bfe_u32 v15, v1, 1, 3")
    a("v_lshrrev_b32 v25, 5, v1")
    a("v_xor_b32 v15, v15, v25")
    a("v_lshl_add_u32 v3, v15, 4, v3")
    a(f"v_add_u32 v{XA[0]}, s62, v3")
    for kk in range(1, 4):
        a(f"v_xor_b32 v{XA[kk]}, {kk*32}, v{XA[0]}")
    a("v_lshrrev_b32 v2, 5, v1")
    a("v_bfe_u32 v3, v1, 2, 2")
    a("v_lshl_add_u32 v2, v2, 3, v3")
    a("v_lshlrev_b32 v2, 8, v2")
    a("v_add_u32 v2, 16384, v2")
    a("v_bfe_u32 v15, v1, 4, 1")
    a("v_lshlrev_b32 v15, 5, v15")
    a("v_and_b32 v25, 3, v1")
    a("v_lshl_add_u32 v15, v25, 3, v15")
    a("s_lshr_b32 s62, s22, 2")
    a("s_mul_i32 s62, s62, 112")
    a("v_lshlrev_b32 v26, 2, v3")
    for g in range(2):
        a(f"v_add_u32 v25, s62, v15")
        if g: a(f"v_add_u32 v25, 56, v25")
        a(f"v_lshrrev_b32 v27, 4, v25")
        a(f"v_xor_b32 v27, v27, v26")
        a(f"v_and_b32 v25, 15, v25")
        a(f"v_lshl_add_u32 v25, v27, 4, v25")
        a(f"v_add_u32 v{WA[g]}, v2, v25")
    for r in range(ACC, ACC+32):
        a(f"v_mov_b32 v{r}, 0")

def p1_main(a, ST, qk):
    base = [0]
    def reads(n):
        c, kk = n // 4, n % 4
        slot = c % NS1
        want = (slot // 2) * 65536
        if want != base[0]:
            d = want - base[0]
            for r in XA + WA:
                a(f"v_add_u32 v{r}, {d & 0xffffffff:#x}, v{r}")
            base[0] = want
        off = slot * 32768 - want
        b = n % 3
        a(f"ds_read_b128 {vr(XF[b],4)}, v{XA[kk]} offset:{off}")
        for g in range(2):
            a(f"ds_read_b64_tr_b16 {vr(WF[b][g],2)}, v{WA[g]} offset:{off + kk*16*256}")
            a(f"ds_read_b64_tr_b16 {vr(WF[b][g]+2,2)}, v{WA[g]} offset:{off + kk*16*256 + 4*256}")
    a("s_barrier")
    dg(a, "p1", 2)
    reads(0); reads(1)
    for n in range(28):
        b = n % 3
        if n + 2 < 28:
            if (n + 2) % 4 == 0:
                a("s_barrier")
                dg(a, "p1", 2 + (n + 2) // 4)
            reads(n + 2)
            a("s_waitcnt lgkmcnt(10)")
        elif n + 1 < 28:
            a("s_waitcnt lgkmcnt(5)")
        else:
            a("s_waitcnt lgkmcnt(0)")
        for g in range(2):
            d = vr(ACC + 16*g, 16)
            if qk: a(f"{MF32} {d}, {vr(WF[b][g],4)}, {vr(XF[b],4)}, {d}")
            else:  a(f"{MF32} {d}, {vr(XF[b],4)}, {vr(WF[b][g],4)}, {d}")
        if n == 14:
            a("v_mov_b32 v101, 0")
            a("buffer_load_dword v100, v101, s[72:75], 0 offen sc1")
    a("s_nop 15")
    n_ = uid()
    a("s_waitcnt vmcnt(0)")
    a("v_readfirstlane_b32 s23, v100")
    a("s_nop 3")
    a("s_cmp_lg_u32 s23, 0")
    a(f"s_cbranch_scc1 tg{n_}")
    get_tag(a)
    a(f"tg{n_}:")

def p1_compute(a, N, ST):
    a("s_cmp_ge_u32 s48, 2")
    a(f"s_cbranch_scc1 {N}_vx")
    p1_main(a, ST, True)
    ST.n = 3; ST.stamp()
    dbgt(a, 2)
    def headtile():
        a("s_lshl_b32 s58, s49, 2")
        a("s_lshr_b32 s59, s22, 2")
        a("s_lshl_b32 s59, s59, 1")
        a("s_add_u32 s58, s58, s59")
        a("s_lshl_b32 s58, s58, 6")
        a("s_lshl_b32 s59, s46, 2")
        a("s_add_u32 s58, s58, s59")
        a("s_and_b32 s59, s22, 3")
        a("s_add_u32 s58, s58, s59")
    def stores(gstride):
        for g in range(2):
            for j in range(2):
                a(f"s_add_u32 s59, s58, {g*64*gstride + j*1024}")
                a(f"buffer_store_dwordx4 {vr(64+8*g+4*j,4)}, v2, {ws}, s59 offen{SC}")
    headtile()
    a("v_lshlrev_b32 v2, 4, v1")
    a("s_cmp_eq_u32 s48, 1")
    a(f"s_cbranch_scc1 {N}_kep")
    a(f"s_mov_b32 s62, {QSCALE:#x}")
    for r in range(ACC, ACC+32):
        a(f"v_mul_f32 v{r}, s62, v{r}")
    a("s_mov_b32 exec_lo, 0")
    for g in range(2):
        for r in range(12, 16):
            a(f"v_mov_b32 v{ACC+16*g+r}, 0")
    a("s_mov_b32 exec_lo, -1")
    pack(a, ACC, 64, 16)
    a("s_lshl_b32 s58, s58, 11")
    a(f"s_add_u32 s58, s58, {QF}")
    stores(2048)
    a(f"s_branch {N}_p1done")
    a(f"{N}_kep:")
    a("s_mov_b32 exec_lo, 0")
    for g in range(2):
        a(f"v_mov_b32 v{ACC+16*g+12}, 1.0")
        for r in range(13, 16):
            a(f"v_mov_b32 v{ACC+16*g+r}, 0")
    a("s_mov_b32 exec_lo, -1")
    pack(a, ACC, 64, 16)
    a("s_lshl_b32 s58, s58, 12")
    a(f"s_add_u32 s58, s58, {KV}")
    stores(4096)
    a(f"s_branch {N}_p1done")
    a(f"{N}_vx:")
    p1_main(a, ST, False)
    ST.n = 3; ST.stamp()
    dbgt(a, 2)
    a("s_cmp_eq_u32 s48, 3")
    a(f"s_cbranch_scc1 {N}_xep")
    a("v_and_b32 v2, 31, v1")
    a("v_cmp_lt_u32 vcc, 27, v2")
    a("s_and_saveexec_b64 s[64:65], vcc")
    a("v_cmp_eq_u32 vcc, 28, v2")
    a("s_nop 1")
    a("v_cndmask_b32 v3, 0, 1.0, vcc")
    for r in range(ACC, ACC+32):
        a(f"v_mov_b32 v{r}, v3")
    a("s_mov_b64 exec, s[64:65]")
    pack(a, ACC, 64, 16)
    headtile()
    a("s_lshl_b32 s58, s58, 12")
    a(f"s_add_u32 s58, s58, {KV+2048}")
    a("v_lshlrev_b32 v2, 4, v1")
    stores(4096)
    a(f"s_branch {N}_p1done")
    a(f"{N}_xep:")
    pack(a, ACC, 64, 16)
    a("s_barrier")
    a("s_lshr_b32 s58, s22, 2")
    a("s_mul_i32 s58, s58, 56")
    a("v_and_b32 v2, 31, v1")
    a("v_lshrrev_b32 v3, 5, v1")
    a("s_and_b32 s59, s22, 3")
    a("s_lshl_b32 s59, s59, 2")
    a("v_add_u32 v3, s59, v3")
    a("v_cmp_gt_u32 vcc, 28, v2")
    a("s_and_saveexec_b64 s[64:65], vcc")
    for g in range(2):
        a(f"v_add_u32 v4, s58, v2")
        if g: a("v_add_u32 v4, 28, v4")
        a("v_and_b32 v5, 15, v4")
        for j in range(2):
            a(f"v_add_u32 v6, {2*j}, v3")
            a("v_xor_b32 v6, v6, v5")
            a("v_lshlrev_b32 v6, 4, v6")
            a("v_lshl_add_u32 v6, v4, 8, v6")
            a(f"ds_write_b128 v6, {vr(64+8*g+4*j,4)}")
    a("s_mov_b64 exec, s[64:65]")
    a("s_waitcnt lgkmcnt(0)")
    a("s_barrier")
    a("s_mul_i32 s58, s49, 112")
    a("s_lshl_b32 s58, s58, 12")
    a("s_lshr_b32 s59, s46, 1")
    a("s_lshl_b32 s59, s59, 9")
    a("s_add_u32 s58, s58, s59")
    a("s_and_b32 s59, s46, 1")
    a("s_lshl_b32 s59, s59, 8")
    a("s_add_u32 s58, s58, s59")
    a(f"s_add_u32 s58, s58, {X1}")
    a("v_lshrrev_b32 v2, 4, v0")
    a("v_and_b32 v3, 15, v0")
    def rb(it):
        a(f"v_add_u32 v4, {32*it}, v2")
        a("v_and_b32 v5, 15, v4")
        a("v_xor_b32 v5, v5, v3")
        a("v_lshlrev_b32 v5, 4, v5")
        a("v_lshl_add_u32 v5, v4, 8, v5")
        a(f"ds_read_b128 {vr(32+4*it,4)}, v5")
        a("v_lshlrev_b32 v6, 12, v4")
        a(f"v_lshl_add_u32 v{8+it}, v3, 4, v6")
    for it in range(3):
        rb(it)
    a("s_waitcnt lgkmcnt(0)")
    for it in range(3):
        a(f"buffer_store_dwordx4 {vr(32+4*it,4)}, v{8+it}, {ws}, s58 offen{SC}")
    a("v_add_u32 v4, 96, v2")
    a("v_cmp_gt_u32 vcc, 112, v4")
    a("s_and_saveexec_b64 s[64:65], vcc")
    a(f"s_cbranch_execz {N}_xfin")
    rb(3)
    a("s_waitcnt lgkmcnt(0)")
    a(f"buffer_store_dwordx4 {vr(32+12,4)}, v{8+3}, {ws}, s58 offen{SC}")
    a(f"{N}_xfin:")
    a("s_mov_b64 exec, s[64:65]")

def p1_loader(a, N, ST):
    SX, SW = 28, 32
    VX0, VX1, VW = 10, 11, 12
    PER = 4
    a("s_sub_u32 s51, s22, 8")
    a("s_getpc_b64 s[52:53]")
    a("s_add_u32 s52, s52, HTAB@rel32@lo+4")
    a("s_addc_u32 s53, s53, HTAB@rel32@hi+12")
    a("v_lshrrev_b32 v2, 3, v1")
    a("s_cmp_eq_u32 s48, 3")
    a(f"s_cbranch_scc0 {N}_lp")
    a("v_and_b32 v3, 3, v2")
    a("v_lshlrev_b32 v3, 5, v3")
    a("v_lshrrev_b32 v2, 5, v1")
    a("v_add_u32 v2, v2, v3")
    a(f"{N}_lp:")
    a("v_mul_u32_u24 v2, 896, v2")
    a("v_and_b32 v3, 7, v1")
    a("v_lshrrev_b32 v4, 4, v1")
    a("v_xor_b32 v5, v3, v4")
    a(f"v_lshl_add_u32 v{VX0}, v5, 4, v2")
    a("v_xor_b32 v5, 4, v5")
    a(f"v_lshl_add_u32 v{VX1}, v5, 4, v2")
    TK = 56
    a("s_cmp_eq_u32 s48, 3")
    a(f"s_cbranch_scc1 {N}_ltX")
    a("s_lshl_b32 s66, s46, 7")
    a(f"s_mul_i32 s67, s51, {8*PER}")
    a("s_add_u32 s66, s66, s67")
    for ii in range(PER):
        a(f"s_add_u32 s{TK+ii}, s66, {8*ii}")
    a(f"s_branch {N}_ltd")
    a(f"{N}_ltX:")
    a("s_lshr_b32 s66, s46, 1")
    a("s_lshl_b32 s66, s66, 8")
    a("s_and_b32 s67, s46, 1")
    a("s_lshl_b32 s67, s67, 4")
    a("s_add_u32 s66, s66, s67")
    a(f"s_mul_i32 s67, s51, {PER}")
    a("s_add_u32 s66, s66, s67")
    for ii in range(PER):
        a(f"s_add_u32 s{TK+ii}, s66, {128*(ii&1) + 4*(ii>>2) + 2*((ii>>1)&1)}")
    a(f"{N}_ltd:")
    for ii in range(PER):
        a(f"s_mulk_i32 s{TK+ii}, 896")
    a("s_cmp_eq_u32 s48, 3")
    a(f"s_movk_i32 s64, 2688")
    a(f"s_cselect_b32 s64, 896, s64")
    a("s_mul_i32 s65, s48, 896")
    a("s_cselect_b32 s65, 0, s65")
    a("s_mul_i32 s66, s49, 224")
    a("s_add_u32 s65, s65, s66")
    a("v_lshrrev_b32 v2, 4, v1")
    a("v_mul_lo_u32 v3, v2, s64")
    a("v_lshlrev_b32 v4, 2, v2")
    a("v_and_b32 v5, 15, v1")
    a("v_xor_b32 v4, v4, v5")
    a(f"v_lshl_add_u32 v{VW}, v4, 4, v3")
    a(f"v_add_u32 v{VW}, s65, v{VW}")
    a("s_lshl_b32 s65, s64, 2")
    a(f"s_mul_i32 s66, s64, {4*PER}")
    a("s_mul_i32 s66, s66, s51")
    a("s_lshl_b32 s67, s64, 6")
    a(f"s_mul_i32 s68, s51, {PER*1024}")
    a("s_lshr_b32 s69, s45, 3")
    a("s_add_u32 s69, s69, s45")
    a("s_and_b32 s69, s69, 3")
    a("s_lshl_b32 s69, s69, 1")
    a("s_waitcnt lgkmcnt(0)")
    ST.n = 2; ST.stamp()
    srd(a, SWS, 20, 21, WS_SIZE)
    a("s_cmp_eq_u32 s48, 3")
    a("s_cselect_b32 s54, s10, s4")
    a("s_cselect_b32 s55, s11, s5")
    srd(a, SX, 54, 55, 2048*896)
    a("s_cmp_eq_u32 s48, 3")
    a("s_cselect_b32 s54, s52, s6")
    a("s_cselect_b32 s55, s53, s7")
    a(f"s_mov_b32 s{SW}, s54")
    a(f"s_and_b32 s{SW+1}, s55, 0xffff")
    a("s_cmp_eq_u32 s48, 3")
    a(f"s_mov_b32 s70, {448*2688}")
    a(f"s_cselect_b32 s{SW+2}, {448*896}, s70")
    a(f"s_mov_b32 s{SW+3}, 0x20000")
    def dma(c):
        slot = c % NS1
        a("s_lshl_b32 s70, s69, 7")
        a("s_mul_i32 s71, s69, s67")
        a("s_add_u32 s71, s71, s66")
        for ii in range(PER):
            a(f"s_add_u32 m0, s68, {slot*32768 + ii*1024}")
            a(f"s_add_u32 s54, s{TK+ii}, s70")
            a(f"buffer_load_dwordx4 v{VX0 if ii % 2 == 0 else VX1}, s[{SX}:{SX+3}], s54 offen lds")
            a(f"s_add_u32 m0, s68, {slot*32768 + 16384 + ii*1024}")
            if ii: a("s_add_u32 s71, s71, s65")
            else: a("s_nop 0")
            a(f"buffer_load_dwordx4 v{VW}, s[{SW}:{SW+3}], s71 offen lds")
        a("s_add_u32 s69, s69, 1")
        a("s_cmp_eq_u32 s69, 7")
        a("s_cselect_b32 s69, 0, s69")
    dma(0); dma(1)
    if not E("NOTOUCH"):
        offs_, blob_ = tables.build()
        a("s_getpc_b64 s[60:61]")
        a("s_add_u32 s60, s60, FTAB@rel32@lo+4")
        a("s_addc_u32 s61, s61, FTAB@rel32@hi+12")
        a("s_mov_b32 s36, s60")
        a("s_and_b32 s37, s61, 0xffff")
        a(f"s_mov_b32 s38, {blob_.size*2}")
        a("s_mov_b32 s39, 0x20000")
        a("s_bfe_u32 s62, s2, 0x20003")
        a("s_lshl_b32 s62, s62, 2")
        a("s_add_u32 s62, s62, s51")
        a("s_lshl_b32 s62, s62, 12")
        a("v_lshlrev_b32 v34, 6, v1")
        a("buffer_load_dword v35, v34, s[36:39], s62 offen")
    P2 = 2*PER
    waits = {5: P2 + 17, 6: 17}
    for c in range(7):
        a(f"s_waitcnt vmcnt({waits.get(c, P2) + (1 if (c == 0 and not E('NOTOUCH')) else 0)})")
        a("s_barrier")
        if c + 2 <= 6: dma(c + 2)
        if c == 4: p1_side_loads(a)
    fft_col(a, 40)
    a("s_mov_b32 s39, s48")
    a("s_cmp_eq_u32 s39, 3")
    a(f"s_cbranch_scc0 {N}_noxe")
    a("s_barrier")
    a("s_barrier")
    a(f"{N}_noxe:")
    p1_side_finish(a, N)

SJ = 16
SXB = 131072
def p1_side_loads(a):
    srd(a, 72, 18, 19, 256)
    a("v_mov_b32 v33, 0")
    a("buffer_load_dword v32, v33, s[72:75], 0 offen sc1")
    srd(a, 36, 12, 13, 2048*450)
    srd(a, 72, 14, 15, 2048*450)
    a("v_lshlrev_b32 v13, 1, v1")
    a("s_and_b32 s63, s2, 3")
    a("s_lshl_b32 s63, s63, 7")
    for q in range(2):
        a("s_lshr_b32 s60, s2, 2")
        a("s_lshl_b32 s60, s60, 3")
        a("s_lshl_b32 s61, s51, 1")
        a("s_add_u32 s60, s60, s61")
        if q: a("s_add_u32 s60, s60, 1")
        a("s_and_b32 s61, s60, 15")
        a("s_lshr_b32 s62, s60, 7")
        a("s_lshl_b32 s62, s62, 4")
        a("s_add_u32 s61, s61, s62")
        a("s_bfe_u32 s62, s60, 0x10006")
        a("s_lshl_b32 s62, s62, 4")
        a("s_bfe_u32 s54, s60, 0x20004")
        a("s_lshl_b32 s54, s54, 2")
        a("s_add_u32 s62, s62, s54")
        a("s_lshl_b32 s62, s62, 6")
        a("s_add_u32 s61, s61, s62")
        a("s_mulk_i32 s61, 450")
        a("s_add_u32 s61, s61, s63")
        for i in range(4):
            a(f"s_add_u32 s62, s61, {i*28800}")
            a(f"buffer_load_ushort v{SJ+8*q+i}, v13, s[36:39], s62 offen")
            a(f"buffer_load_ushort v{SJ+8*q+4+i}, v13, s[72:75], s62 offen")

def p1_side_finish(a, N):
    a("s_waitcnt vmcnt(0)")
    a("v_readfirstlane_b32 s23, v32")
    a("s_nop 3")
    a("s_cmp_lg_u32 s23, 0")
    a(f"s_cbranch_scc1 {N}_sjtag")
    get_tag(a)
    a(f"{N}_sjtag:")
    for q in range(2):
        for i in range(4):
            a(f"v_lshl_or_b32 v{SJ+8*q+i}, v{SJ+8*q+4+i}, 16, v{SJ+8*q+i}")
    a("v_mul_u32_u24 v14, 144, v1")
    a("s_lshl_b32 s60, s51, 5")
    a(f"s_add_u32 s60, s60, {SXB}")
    a("v_add_u32 v14, s60, v14")
    a(f"ds_write_b128 v14, {vr(SJ,4)}")
    a(f"ds_write_b128 v14, {vr(SJ+8,4)} offset:16")
    a(f"v_mov_b32 v2, {TAGL}")
    a("v_mov_b32 v3, 1")
    a("s_waitcnt lgkmcnt(0)")
    a("s_mov_b64 exec, 1")
    a("ds_add_u32 v2, v3 offset:8")
    a("s_mov_b64 exec, -1")
    a("s_mov_b32 s60, 0")
    a(f"{N}_sjw:")
    a("ds_read_b32 v4, v2 offset:8")
    a("s_waitcnt lgkmcnt(0)")
    a("v_readfirstlane_b32 s61, v4")
    a("s_nop 3")
    a("s_cmp_ge_u32 s61, 4")
    a(f"s_cbranch_scc1 {N}_sjd")
    a("s_add_u32 s60, s60, 1")
    a(f"s_cmp_lt_u32 s60, {SPIN}")
    a("s_sleep 1")
    a(f"s_cbranch_scc1 {N}_sjw")
    a(f"{N}_sjd:")
    a("v_lshrrev_b32 v4, 3, v1")
    a("s_lshl_b32 s60, s51, 4")
    a("v_add_u32 v4, s60, v4")
    a("v_and_b32 v5, 7, v1")
    a("v_mul_u32_u24 v6, 144, v4")
    a("v_lshl_add_u32 v6, v5, 4, v6")
    a(f"v_add_u32 v6, {SXB}, v6")
    a(f"ds_read_b128 {vr(SJ,4)}, v6")
    a(f"ds_read_b128 {vr(SJ+4,4)}, v6 offset:{8*144}")
    a("s_and_b32 s60, s2, 3")
    a("s_lshl_b32 s60, s60, 6")
    a("v_add_u32 v4, s60, v4")
    a("v_lshlrev_b32 v7, 13, v4")
    a("v_lshl_add_u32 v7, v5, 4, v7")
    a("s_lshr_b32 s61, s2, 2")
    a("s_lshl_b32 s61, s61, 7")
    a(f"s_add_u32 s61, s61, {WT}")
    a("s_waitcnt lgkmcnt(0)")
    a("v_cmp_gt_u32 vcc, 225, v4")
    a("s_and_saveexec_b64 s[62:63], vcc")
    a(f"buffer_store_dwordx4 {vr(SJ,4)}, v7, {ws}, s61 offen{SC}")
    a("s_mov_b64 exec, s[62:63]")
    a("v_add_u32 v4, 8, v4")
    a(f"s_add_u32 s61, s61, {8*8192}")
    a("v_cmp_gt_u32 vcc, 225, v4")
    a("s_and_saveexec_b64 s[62:63], vcc")
    a(f"buffer_store_dwordx4 {vr(SJ+4,4)}, v7, {ws}, s61 offen{SC}")
    a("s_mov_b64 exec, s[62:63]")

def p1_side_signal(a, N, younger):
    a(f"s_waitcnt vmcnt({younger})")
    a(f"v_mov_b32 v2, {TAGL}")
    a("v_mov_b32 v3, 1")
    a("s_mov_b64 exec, 1")
    a("ds_add_rtn_u32 v4, v2, v3 offset:12")
    a("s_mov_b64 exec, -1")
    a("s_waitcnt lgkmcnt(0)")
    a("v_readfirstlane_b32 s60, v4")
    a("s_nop 3")
    a("s_cmp_lg_u32 s60, 3")
    a(f"s_cbranch_scc1 {N}_sjn")
    a("s_and_b32 s60, s2, 3")
    a("s_lshl_b32 s60, s60, 8")
    a("s_lshr_b32 s61, s2, 2")
    a("s_lshl_b32 s61, s61, 2")
    a("s_add_u32 s60, s60, s61")
    a(f"s_add_u32 s60, s60, {FW}")
    signal2(a, 60)
    a(f"{N}_sjn:")

RING = 131072
XB = RING
FLAG = RING + 9216
MRG = RING + 9216 + 64
def p2_heads(a):
    a("s_and_b32 s41, s2, 7")
    a("s_lshl_b32 s41, s41, 1")
    a("s_bfe_u32 s42, s2, 0x10003")
    a("s_add_u32 s41, s41, s42")
    a("s_lshr_b32 s42, s2, 4")

def p2_kvload(a, N, ST):
    VL = 4
    p2_heads(a)
    a("s_sub_u32 s43, s22, 4")
    a(f"v_lshlrev_b32 v{VL}, 4, v1")
    a(f"v_mov_b32 v2, {TAGL}")
    a("s_mov_b32 s60, 0")
    a(f"{N}_klw:")
    a("ds_read_b32 v3, v2 offset:4")
    a("s_waitcnt lgkmcnt(0)")
    a("v_readfirstlane_b32 s61, v3")
    a("s_nop 3")
    a("s_cmp_ge_u32 s61, 8")
    a(f"s_cbranch_scc1 {N}_kld")
    a("s_add_u32 s60, s60, 1")
    a(f"s_cmp_lt_u32 s60, {SPIN}")
    a("s_sleep 1")
    a(f"s_cbranch_scc1 {N}_klw")
    a(f"{N}_kld:")
    a(f"v_mov_b32 v2, {FLAG}")
    a("v_mov_b32 v3, 0")
    a("ds_write_b32 v2, v3")
    a("s_lshr_b32 s44, s41, 2")
    a("v_and_b32 v5, 15, v1")
    a("v_lshlrev_b32 v5, 2, v5")
    a("v_bfe_u32 v6, v1, 4, 1")
    a("v_add_u32 v6, 1, v6")
    a("v_lshlrev_b32 v6, 9, v6")
    a("s_lshl_b32 s44, s44, 7")
    a(f"s_add_u32 s44, s44, {F1}")
    a("v_add3_u32 v5, v5, v6, s44")
    a("s_mov_b32 s45, 0")
    a("s_lshl_b32 s48, s41, 6")
    a("s_add_u32 s48, s48, s43")
    a("s_lshl_b32 s48, s48, 12")
    a(f"s_add_u32 s48, s48, {KV}")
    a("s_lshl_b32 s49, s43, 12")
    p3_wsetup(a, N)
    def need(step_s):
        n = uid()
        a(f"s_lshl_b32 s46, 0x01010101, s{step_s}")
        a("s_mov_b32 s60, 0")
        a(f"nd{n}:")
        a("s_and_b32 s47, s45, s46")
        a("s_cmp_eq_u32 s47, s46")
        a(f"s_cbranch_scc1 ndd{n}")
        a(f"buffer_load_dword v7, v5, {ws}, 0 offen sc1")
        a("s_waitcnt vmcnt(0)")
        a("v_cmp_eq_u32 vcc, s23, v7")
        a("s_nop 1")
        a("s_mov_b32 s45, vcc_lo")
        a("s_add_u32 s60, s60, 1")
        a(f"s_cmp_lt_u32 s60, {SPIN}")
        a(f"s_cbranch_scc1 nd{n}")
        a(f"ndd{n}:")
    def dma_step(step_s):
        a(f"s_lshl_b32 s52, s{step_s}, 14")
        a("s_add_u32 s52, s52, s48")
        a(f"s_cmp_gt_u32 s{step_s}, 7")
        a(f"s_cselect_b32 s52, {OOB}, s52")
        a(f"s_and_b32 s53, s{step_s}, 3")
        a("s_lshl_b32 s53, s53, 15")
        a("s_add_u32 s53, s53, s49")
        for hf in range(2):
            for i in range(4):
                a(f"s_add_u32 m0, s53, {hf*16384 + i*1024}")
                a(f"s_add_u32 s54, s52, {hf*32*4096 + i*1024}")
                a(f"buffer_load_dwordx4 v{VL}, {ws}, s54 offen{SC} lds")
    a(f"{N}_klrestart:")
    for st_ in range(3):
        a(f"s_mov_b32 s50, {st_}")
        need(50)
        dma_step(50)
    a("s_waitcnt vmcnt(16) lgkmcnt(0)")
    a("s_barrier")
    a("s_mov_b32 s51, 0")
    a(f"{N}_klloop:")
    a("s_waitcnt vmcnt(8)")
    a("s_barrier")
    a("s_add_u32 s50, s51, 3")
    a("s_cmp_gt_u32 s50, 7")
    a(f"s_cbranch_scc1 {N}_klw3")
    need(50)
    dma_step(50)
    a(f"s_branch {N}_klnx")
    a(f"{N}_klw3:")
    a("s_sub_u32 s50, s50, 8")
    p3_wissue(a, 50)
    a(f"{N}_klnx:")
    a("s_add_u32 s51, s51, 1")
    a("s_cmp_lt_u32 s51, 8")
    a(f"s_cbranch_scc1 {N}_klloop")
    a("s_waitcnt vmcnt(0)")
    a("s_barrier")
    a(f"v_mov_b32 v2, {FLAG}")
    a("ds_read_b32 v2, v2")
    a("s_waitcnt lgkmcnt(0)")
    a("v_readfirstlane_b32 s56, v2")
    a("s_nop 3")
    a("s_cmp_eq_u32 s56, 1")
    a(f"s_cbranch_scc0 {N}_klend")
    a("s_barrier")
    a(f"s_branch {N}_klrestart")
    a(f"{N}_klend:")
    a("s_mov_b32 s50, 3")
    p3_wissue(a, 50)

def p2_attn(a, N, ST):
    QA, QB = 4, 12
    SA, SB = 20, 36
    PR = 52
    OA, OB = 60, 76
    KF = [92, 100]; VF = [108, 116]
    VL, VC, VN = 124, 125, 126
    MRA, MRB = 127, 128
    T0, T1, T2, T3, T4, T5 = 129, 130, 131, 132, 133, 134
    p2_heads(a)
    a("s_and_b32 s43, s22, 1")
    a("s_lshr_b32 s44, s22, 1")
    a(f"v_lshlrev_b32 v{VL}, 4, v1")
    a("s_lshr_b32 s50, s41, 2")
    a("s_lshl_b32 s50, s50, 7")
    a("s_lshl_b32 s51, s42, 2")
    a("s_add_u32 s50, s50, s51")
    a(f"s_add_u32 s50, s50, {F1}")
    a("v_mov_b32 v2, s50")
    a("s_mov_b32 s52, 1")
    a("s_mov_b32 s53, 0")
    poll(a, [2], ["s[52:53]"])
    a("s_lshl_b32 s45, s41, 6")
    a("s_lshl_b32 s46, s42, 2")
    a("s_lshl_b32 s47, s43, 1")
    a("s_add_u32 s46, s46, s47")
    a("s_add_u32 s47, s45, s46")
    a("s_lshl_b32 s47, s47, 11")
    a(f"s_add_u32 s47, s47, {QF}")
    for i, r in enumerate((QA, QA+4)):
        a(f"buffer_load_dwordx4 {vr(r,4)}, v{VL}, {ws}, s47 offen offset:{i*1024}{SC}")
    for i, r in enumerate((QB, QB+4)):
        a(f"buffer_load_dwordx4 {vr(r,4)}, v{VL}, {ws}, s47 offen offset:{2048+i*1024}{SC}")
    a("s_lshl_b32 s50, s44, 14")
    a(f"v_add_u32 v{VC}, s50, v{VL}")
    a("s_mov_b32 s51, 0")
    a(f"{N}_restart:")
    a(f"v_add_u32 v{VN}, 0x8000, v{VC}")
    for r in list(range(OA, OA+32)) + list(range(PR+4, PR+8)) + list(range(VF[1]+4, VF[1]+8)):
        a(f"v_mov_b32 v{r}, 0")
    a("s_waitcnt vmcnt(0)")
    a("s_barrier")
    dg(a, "p2", 3)
    def rd(dst, base, off):
        a(f"ds_read_b128 {vr(dst,4)}, v{base} offset:{off}")
    def smf1(S, kb, Q): return f"{MF32} {vr(S,16)}, {vr(KF[kb],4)}, {vr(Q,4)}, 0"
    def smf2(S, kb, Q): return f"{MF32} {vr(S,16)}, {vr(KF[kb]+4,4)}, {vr(Q+4,4)}, {vr(S,16)}"
    rd(KF[0], VC, 0); rd(KF[0]+4, VC, 1024)
    rd(VF[0], VC, 2048); rd(VF[0]+4, VC, 3072)
    a("s_cmp_lg_u32 s51, 0")
    a(f"s_cbranch_scc1 {N}_havem")
    a("s_waitcnt lgkmcnt(2)")
    a(smf1(SA, 0, QA)); a(smf1(SB, 0, QB)); a(smf2(SA, 0, QA)); a(smf2(SB, 0, QB))
    a("s_nop 15")
    for (s_, Q, MR) in ((SA, QA, MRA), (SB, QB, MRB)):
        a(f"v_max3_f32 v{T0}, v{s_}, v{s_+1}, v{s_+2}")
        a(f"v_max3_f32 v{T1}, v{s_+3}, v{s_+4}, v{s_+5}")
        a(f"v_max3_f32 v{T2}, v{s_+6}, v{s_+7}, v{s_+8}")
        a(f"v_max3_f32 v{T3}, v{s_+9}, v{s_+10}, v{s_+11}")
        a(f"v_max3_f32 v{T0}, v{T0}, v{s_+12}, v{s_+13}")
        a(f"v_max3_f32 v{T1}, v{T1}, v{s_+14}, v{s_+15}")
        a(f"v_max3_f32 v{T0}, v{T0}, v{T1}, v{T2}")
        a(f"v_max_f32 v{T0}, v{T0}, v{T3}")
        set_m(a, Q, MR, T0, T1)
    a(f"{N}_havem:")
    a("s_waitcnt lgkmcnt(0)")
    a("s_nop 1")
    a(smf1(SA, 0, QA)); a(smf2(SA, 0, QA))
    a("s_nop 11")
    ST.n = 6; ST.stamp()
    dg(a, "p2", 4)
    dbgt(a, 5)
    Ex = lambda S, i: a(f"v_exp_f32 v{S+i}, v{S+i}")
    C = lambda S, i: a(f"v_cvt_pk_bf16_f32 v{PR+i}, v{S+2*i}, v{S+2*i+1}")
    a("s_mov_b32 s55, 0")
    a(f"{N}_loop:")
    for u16 in range(16):
        u = u16 % 8
        tt, q = u // 2, u % 2
        S, Sn = (SA, SB) if q == 0 else (SB, SA)
        O, Op = (OA, OB) if q == 0 else (OB, OA)
        Qn = QB if q == 0 else QA
        kb_n = tt % 2 if q == 0 else (tt + 1) % 2
        vb = tt % 2
        pvb = (tt + 1) % 2 if q == 0 else tt % 2
        if u == 6:
            a("s_barrier")
        nb, noff = (VC, (tt + 1) * 4096) if tt + 1 < 4 else (VN, 0)
        Ex(S, 0); Ex(S, 1)
        a(f"{MF32} {vr(Op,16)}, {vr(VF[pvb]+4,4)}, {vr(PR+4,4)}, {vr(Op,16)}")
        if q == 0: rd(KF[(tt + 1) % 2], nb, noff)
        Ex(S, 2); Ex(S, 3); Ex(S, 4); C(S, 0); C(S, 1)
        if q == 1: a("s_waitcnt lgkmcnt(0)")
        a(smf1(Sn, kb_n, Qn))
        if q == 0: rd(KF[(tt + 1) % 2] + 4, nb, noff + 1024)
        else: rd(VF[(tt + 1) % 2], nb, noff + 2048)
        Ex(S, 5); Ex(S, 6); Ex(S, 7); Ex(S, 8); C(S, 2)
        a(smf2(Sn, kb_n, Qn))
        if q == 1: rd(VF[(tt + 1) % 2] + 4, nb, noff + 3072)
        C(S, 3); Ex(S, 9); Ex(S, 10); Ex(S, 11)
        if q == 0: a("s_waitcnt lgkmcnt(2)")
        a(f"{MF32} {vr(O,16)}, {vr(VF[vb],4)}, {vr(PR,4)}, {vr(O,16)}")
        Ex(S, 12); Ex(S, 13); C(S, 4); Ex(S, 14); Ex(S, 15); C(S, 5); C(S, 6); C(S, 7)
        if u == 7:
            a(f"v_mov_b32 v{VC}, v{VN}")
            a(f"v_add_u32 v{VN}, 0x8000, v{VN}")
            a(f"v_and_b32 v{VN}, 0x1ffff, v{VN}")
    a("s_add_u32 s55, s55, 1")
    a("s_cmp_lt_u32 s55, 4")
    a(f"s_cbranch_scc1 {N}_loop")
    a(f"{MF32} {vr(OB,16)}, {vr(VF[1]+4,4)}, {vr(PR+4,4)}, {vr(OB,16)}")
    a("s_nop 15")
    a("s_waitcnt lgkmcnt(0)")
    dg(a, "p2", 6)
    LA, LB = T0, T1
    for (O, L) in ((OA, LA), (OB, LB)):
        a(f"v_mov_b32 v{T2}, v{O+12}")
        a(f"v_mov_b32 v{L}, v{O+12}")
        a("s_nop 1")
        a(f"v_permlane32_swap_b32 v{T2}, v{L}")
    a("s_cmp_lg_u32 s51, 0")
    a(f"s_cbranch_scc1 {N}_nochk")
    a(f"s_mov_b32 s56, {f32bits(2.0**64):#x}")
    a(f"v_max_f32 v{T2}, v{LA}, v{LB}")
    a(f"v_cmp_u_f32 s[58:59], v{LA}, v{LB}")
    a(f"v_cmp_ngt_f32 vcc, s56, v{T2}")
    a("s_nop 1")
    a("s_or_b64 vcc, vcc, s[58:59]")
    a(f"s_cbranch_vccz {N}_nochk")
    a(f"v_mov_b32 v{T2}, {FLAG}")
    a(f"v_mov_b32 v{T3}, 1")
    a(f"ds_write_b32 v{T2}, v{T3}")
    a(f"{N}_nochk:")
    a("s_mul_i32 s57, s22, 4608")
    a(f"s_add_u32 s57, s57, {MRG}")
    a("s_xor_b32 s58, s22, 2")
    a("s_mul_i32 s58, s58, 4608")
    a(f"s_add_u32 s58, s58, {MRG}")
    a(f"v_add_u32 v{T2}, s57, v{VL}")
    a(f"v_lshlrev_b32 v{T3}, 3, v1")
    a(f"v_add_u32 v{T3}, s57, v{T3}")
    a("s_cmp_eq_u32 s44, 0")
    a(f"s_cbranch_scc1 {N}_send1")
    for i in range(4): a(f"ds_write_b128 v{T2}, {vr(OA+4*i,4)} offset:{i*1024}")
    a(f"v_mov_b32 v{T4+1}, v{MRA}".replace(f"v{T4+1}", f"v{T4+1}"))
    a(f"v_mov_b32 v{T4+2}, v{LA}")
    for i in range(16): a(f"v_mov_b32 v{SA+i}, v{OB+i}")
    a(f"v_mov_b32 v{MRA}, v{MRB}")
    a(f"v_mov_b32 v{LA}, v{LB}")
    a(f"s_branch {N}_sent")
    a(f"{N}_send1:")
    for i in range(4): a(f"ds_write_b128 v{T2}, {vr(OB+4*i,4)} offset:{i*1024}")
    a(f"v_mov_b32 v{T4+1}, v{MRB}")
    a(f"v_mov_b32 v{T4+2}, v{LB}")
    for i in range(16): a(f"v_mov_b32 v{SA+i}, v{OA+i}")
    a(f"{N}_sent:")
    a(f"ds_write_b64 v{T3}, {vr(T4+1,2)} offset:4096")
    a("s_waitcnt lgkmcnt(0)")
    a("s_barrier")
    dg(a, "p2", 7)
    a(f"v_add_u32 v{T2}, s58, v{VL}")
    a(f"v_lshlrev_b32 v{T3}, 3, v1")
    a(f"v_add_u32 v{T3}, s58, v{T3}")
    a(f"v_mov_b32 v{T4}, {FLAG}")
    a(f"ds_read_b32 v{T4}, v{T4}")
    for i in range(4): a(f"ds_read_b128 {vr(SB+4*i,4)}, v{T2} offset:{i*1024}")
    a(f"ds_read_b64 {vr(PR,2)}, v{T3} offset:4096")
    a("s_waitcnt lgkmcnt(0)")
    a(f"v_readfirstlane_b32 s56, v{T4}")
    a("s_nop 3")
    a("s_cmp_eq_u32 s56, 1")
    a(f"s_cbranch_scc1 {N}_slow")
    MP, LP = PR, PR+1
    a(f"v_max_f32 v{T1}, v{MRA}, v{MP}")
    a(f"v_sub_f32 v{T2}, v{MRA}, v{T1}")
    a(f"v_sub_f32 v{T3}, v{MP}, v{T1}")
    a(f"v_exp_f32 v{T2}, v{T2}")
    a(f"v_exp_f32 v{T3}, v{T3}")
    a("s_nop 0")
    a(f"v_mul_f32 v{T1}, v{T2}, v{LA}")
    a(f"v_fmac_f32 v{T1}, v{T3}, v{LP}")
    a(f"v_rcp_f32 v{T1}, v{T1}")
    a("s_nop 0")
    a(f"v_mul_f32 v{T2}, v{T2}, v{T1}")
    a(f"v_mul_f32 v{T3}, v{T3}, v{T1}")
    for i in range(16):
        a(f"v_mul_f32 v{SA+i}, v{T2}, v{SA+i}")
    for i in range(16):
        a(f"v_fmac_f32 v{SA+i}, v{T3}, v{SB+i}")
    a("s_mov_b32 exec_lo, 0")
    for i in range(12, 16): a(f"v_mov_b32 v{SA+i}, 0")
    a("s_mov_b32 exec_lo, -1")
    for i in range(8): a(f"v_cvt_pk_bf16_f32 v{OA+i}, v{SA+2*i}, v{SA+2*i+1}")
    a("s_add_u32 s56, s46, s44")
    a("s_lshl_b32 s56, s56, 4")
    a("s_add_u32 s56, s56, s41")
    a("s_lshl_b32 s56, s56, 11")
    a(f"s_add_u32 s56, s56, {OF}")
    a(f"buffer_store_dwordx4 {vr(OA,4)}, v{VL}, {ws}, s56 offen{SC}")
    a(f"buffer_store_dwordx4 {vr(OA+4,4)}, v{VL}, {ws}, s56 offen offset:1024{SC}")
    a(f"v_mov_b32 v2, {TAGL}")
    a("v_mov_b32 v3, 1")
    a("s_waitcnt vmcnt(0)")
    a("s_mov_b64 exec, 1")
    a("ds_add_rtn_u32 v4, v2, v3")
    a("s_mov_b64 exec, -1")
    a("s_waitcnt lgkmcnt(0)")
    a("v_readfirstlane_b32 s56, v4")
    a("s_nop 3")
    a("s_cmp_lg_u32 s56, 3")
    a(f"s_cbranch_scc1 {N}_p2done")
    a("s_lshl_b32 s50, s42, 7")
    a("s_lshl_b32 s56, s41, 2")
    a("s_add_u32 s50, s50, s56")
    a(f"s_add_u32 s50, s50, {FO}")
    signal(a, 50)
    a(f"s_branch {N}_p2done")
    a(f"{N}_slow:")
    a("s_mov_b32 s51, 1")
    a("s_mov_b32 exec_lo, 0")
    a(f"v_mov_b32 v{QA+6}, 0")
    a(f"v_mov_b32 v{QB+6}, 0")
    a("s_mov_b32 exec_lo, -1")
    a(f"v_mov_b32 v{T4}, 0xff7fffff")
    a(f"v_mov_b32 v{T5}, 0xff7fffff")
    a("s_lshl_b32 s56, s44, 5")
    a("s_add_u32 s56, s56, s45")
    a("s_lshl_b32 s56, s56, 12")
    a(f"s_add_u32 s56, s56, {KV}")
    a("s_mov_b32 s57, 0")
    a(f"{N}_sloop:")
    a(f"buffer_load_dwordx4 {vr(KF[0],4)}, v{VL}, {ws}, s56 offen{SC}")
    a(f"buffer_load_dwordx4 {vr(KF[0]+4,4)}, v{VL}, {ws}, s56 offen offset:1024{SC}")
    a("s_waitcnt vmcnt(0)")
    a(smf1(SA, 0, QA)); a(smf1(SB, 0, QB)); a(smf2(SA, 0, QA)); a(smf2(SB, 0, QB))
    a("s_nop 15")
    for i in range(0, 16, 2):
        a(f"v_max3_f32 v{T4}, v{T4}, v{SA+i}, v{SA+i+1}")
        a(f"v_max3_f32 v{T5}, v{T5}, v{SB+i}, v{SB+i+1}")
    a("s_add_u32 s56, s56, 4096")
    a("s_add_u32 s57, s57, 1")
    a("s_cmp_lt_u32 s57, 32")
    a(f"s_cbranch_scc1 {N}_sloop")
    a(f"v_mov_b32 v{T0}, v{T4}")
    set_m(a, QA, MRA, T0, T1)
    a(f"v_mov_b32 v{T0}, v{T5}")
    set_m(a, QB, MRB, T0, T1)
    a("s_lshl_b32 s50, s44, 14")
    a(f"v_add_u32 v{VC}, s50, v{VL}")
    a("s_barrier")
    a(f"v_mov_b32 v{T2}, {FLAG}")
    a(f"v_mov_b32 v{T3}, 2")
    a(f"ds_write_b32 v{T2}, v{T3}")
    a("s_waitcnt lgkmcnt(0)")
    a(f"s_branch {N}_restart")
    a(f"{N}_p2done:")

def set_m(a, QR, MR, T0, T1):
    a(f"v_mov_b32 v{T1}, v{T0}")
    a("s_nop 1")
    a(f"v_permlane32_swap_b32 v{T0}, v{T1}")
    a("s_nop 0")
    a(f"v_max_f32 v{T0}, v{T0}, v{T1}")
    a(f"v_cvt_pk_bf16_f32 v{T1}, -v{T0}, 0")
    a(f"v_lshlrev_b32 v{MR}, 16, v{T1}")
    a(f"v_xor_b32 v{MR}, 0x80000000, v{MR}")
    a("s_mov_b32 exec_lo, 0")
    a(f"v_mov_b32 v{QR+6}, v{T1}")
    a("s_mov_b32 exec_lo, -1")

A_, B_ = 4, 20
C1, C3, TW, WW = 36, 60, 84, 100
TW2R = 108
AD = 164
TR, TI = 124, 132
PK = 140
T = 148
SFT = 28
ft = "s[28:31]"
def fft_ld(a, dst, n, sreg, srd_, flag=""):
    for i in range(n):
        if i and i % 4 == 0:
            a(f"s_add_u32 s{sreg}, s{sreg}, 4096")
        a(f"buffer_load_dwordx4 {vr(dst+4*i,4)}, v2, {srd_}, s{sreg} offen offset:{(i%4)*1024}{flag}")
def fft_col(a, d):
    a(f"s_and_b32 s{d}, s2, 7")
    a(f"s_mul_i32 s{d}, s{d}, 28")
    a("s_lshr_b32 s41, s2, 3")
    a(f"s_add_u32 s{d}, s{d}, s41")
    a("s_cmp_lt_u32 s41, 28")
    a(f"s_cselect_b32 s{d}, s{d}, 255")
    a("s_cmp_eq_u32 s2, 224")
    a(f"s_cselect_b32 s{d}, 224, s{d}")
    if E("F_NOFFT"): a(f"s_mov_b32 s{d}, 255")
def fft_consts(a, N):
    offs, blob = tables.build()
    a("s_getpc_b64 s[28:29]")
    a("s_add_u32 s28, s28, FTAB@rel32@lo+4")
    a("s_addc_u32 s29, s29, FTAB@rel32@hi+12")
    a("s_and_b32 s29, s29, 0xffff")
    a(f"s_mov_b32 s30, {blob.size*2}")
    a(f"s_mov_b32 s31, 0x20000")
    a("s_sub_u32 s41, s22, 8")
    a("v_lshlrev_b32 v2, 4, v1")
    a("s_mul_i32 s45, s41, 6144")
    a(f"s_add_u32 s46, s45, {offs['C1']}")
    fft_ld(a, C1, 6, 46, ft)
    a("s_lshl_b32 s47, s41, 12")
    a(f"s_add_u32 s46, s47, {offs['TW1']}")
    fft_ld(a, TW, 4, 46, ft)
    a(f"s_mov_b32 s46, {offs['C3']}")
    fft_ld(a, C3, 6, 46, ft)
    a(f"s_add_u32 s46, s47, {offs['TW2']}")
    fft_ld(a, TW2R, 4, 46, ft)

def p2_fft(a, N, ST):
    a("s_cmp_gt_u32 s40, 224")
    a(f"s_cbranch_scc1 {N}_nofft0")
    a("s_barrier")
    p1_side_signal(a, N + "a", 0)
    fft_consts(a, N)
    a("s_barrier")
    a("s_mul_i32 s50, s40, 586")
    a("s_lshr_b32 s50, s50, 16")
    a("s_sub_u32 s51, 448, s40")
    a("s_cmp_eq_u32 s40, 0")
    a("s_cselect_b32 s51, 0, s51")
    a("s_mul_i32 s51, s51, 586")
    a("s_lshr_b32 s51, s51, 16")
    a("v_and_b32 v150, 15, v1")
    a("v_lshlrev_b32 v150, 2, v150")
    a("v_cmp_lt_u32 vcc, 15, v1")
    a("v_mov_b32 v151, s50")
    a("v_mov_b32 v152, s51")
    a("v_cndmask_b32 v151, v151, v152, vcc")
    a("v_lshlrev_b32 v151, 7, v151")
    a("v_add_u32 v150, v150, v151")
    a(f"v_add_u32 v150, {F1 + 12*128}, v150")
    a("s_lshr_b32 s50, s40, 6")
    a("s_lshl_b32 s50, s50, 8")
    a(f"s_add_u32 s50, s50, {FW}")
    a("v_lshlrev_b32 v151, 2, v1")
    a("v_add_u32 v151, s50, v151")
    a("s_mov_b32 s52, -1")
    a("s_mov_b32 s53, 0")
    poll(a, [150, 151], ["s[52:53]", None])
    a(f"s_setprio {E('FFT_PRIO', '2')}")
    a("s_sub_u32 s41, s22, 8")
    a("v_lshlrev_b32 v2, 4, v1")
    a("v_lshrrev_b32 v3, 4, v1")
    a("v_lshlrev_b32 v3, 9, v3")
    a(f"v_and_b32 v{T}, 15, v1")
    a(f"v_lshl_add_u32 v3, v{T}, 4, v3")
    a("s_lshl_b32 s42, s40, 12")
    a(f"s_add_u32 s42, s42, {X1}")
    a("s_sub_u32 s43, 448, s40")
    a("s_cmp_eq_u32 s40, 0")
    a("s_cselect_b32 s43, 0, s43")
    a("s_lshl_b32 s44, s43, 12")
    a(f"s_add_u32 s44, s44, {X1}")
    for t in range(2):
        for ks in range(2):
            a(f"buffer_load_dwordx4 {vr(A_+4*(2*t+ks),4)}, v3, {ws}, s42 offen offset:{ks*2048+t*256}{SC}")
            a(f"buffer_load_dwordx4 {vr(B_+4*(2*t+ks),4)}, v3, {ws}, s44 offen offset:{ks*2048+t*256}{SC}")
    a("s_lshl_b32 s46, s40, 13")
    a("s_lshl_b32 s48, s41, 11")
    a("s_add_u32 s46, s46, s48")
    a(f"s_add_u32 s46, s46, {WT}")
    fft_ld(a, WW, 2, 46, ws, SC)
    a("s_barrier")
    dg(a, "p2", 3)
    a("s_waitcnt vmcnt(0)")
    P = lambda ks: vr(C1+4*ks, 4); Q = lambda ks: vr(C1+8+4*ks, 4); NQ = lambda ks: vr(C1+16+4*ks, 4)
    da = lambda t, ks: vr(A_+4*(2*t+ks), 4); db = lambda t, ks: vr(B_+4*(2*t+ks), 4)
    tr = lambda t: vr(TR+4*t, 4); ti = lambda t: vr(TI+4*t, 4)
    for step in range(4):
        ks = step % 2
        for t in range(2):
            cr = "0" if step == 0 else tr(t); ci = "0" if step == 0 else ti(t)
            if step < 2:
                a(f"{MF16} {tr(t)}, {da(t,ks)}, {P(ks)}, {cr}")
                a(f"{MF16} {ti(t)}, {da(t,ks)}, {NQ(ks)}, {ci}")
            else:
                a(f"{MF16} {tr(t)}, {db(t,ks)}, {Q(ks)}, {cr}")
                a(f"{MF16} {ti(t)}, {db(t,ks)}, {P(ks)}, {ci}")
    SPREAD = E("FFT_SPREAD") == "1"
    if SPREAD: a("s_barrier")
    a("s_nop 7")
    def cmul(xr, xi, c, s, outr, outi):
        for p in range(0, 4, 2):
            a(f"v_pk_mul_f32 {vr(T+p,2)}, {vr(xi+p,2)}, {vr(s+p,2)}")
            a(f"v_pk_mul_f32 {vr(T+4+p,2)}, {vr(xi+p,2)}, {vr(c+p,2)}")
        for p in range(0, 4, 2):
            a(f"v_pk_fma_f32 {vr(outr+p,2)}, {vr(xr+p,2)}, {vr(c+p,2)}, {vr(T+p,2)} neg_lo:[0,0,1] neg_hi:[0,0,1]")
            a(f"v_pk_fma_f32 {vr(outi+p,2)}, {vr(xr+p,2)}, {vr(s+p,2)}, {vr(T+4+p,2)}")
    O1 = T + 8
    def packRI(t):
        a(f"v_cvt_pk_bf16_f32 v{PK+2*t}, v{O1}, v{O1+1}")
        a(f"v_cvt_pk_bf16_f32 v{PK+2*t+1}, v{O1+2}, v{O1+3}")
        a(f"v_cvt_pk_bf16_f32 v{PK+4+2*t}, v{O1+4}, v{O1+5}")
        a(f"v_cvt_pk_bf16_f32 v{PK+4+2*t+1}, v{O1+6}, v{O1+7}")
    for t in range(2):
        cmul(TR+4*t, TI+4*t, TW+8*t, TW+8*t+4, O1, O1+4)
        packRI(t)
    a("s_nop 1")
    Fr = lambda u: vr(C3+4*u, 4); Fi = lambda u: vr(C3+8+4*u, 4); NFi = lambda u: vr(C3+16+4*u, 4)
    BR, BI = vr(PK, 4), vr(PK+4, 4)
    for u in range(2):
        a(f"{MF16} {tr(u)}, {Fr(u)}, {BR}, 0")
        a(f"{MF16} {ti(u)}, {Fi(u)}, {BR}, 0")
    for u in range(2):
        a(f"{MF16} {tr(u)}, {NFi(u)}, {BI}, {tr(u)}")
        a(f"{MF16} {ti(u)}, {Fr(u)}, {BI}, {ti(u)}")
    if SPREAD: a("s_barrier")
    ST.n = 5; ST.stamp()
    dg(a, "p2", 4)
    a("s_nop 7")
    for u in range(2):
        for i in range(4):
            a(f"v_lshlrev_b32 v{A_+8*u+i}, 16, v{WW+4*u+i}")
            a(f"v_and_b32 v{A_+8*u+4+i}, 0xffff0000, v{WW+4*u+i}")
    for u in range(2):
        cmul(TR+4*u, TI+4*u, A_+8*u, A_+8*u+4, O1, O1+4)
        packRI(u)
    a("s_nop 1")
    AR, AI = vr(PK, 4), vr(PK+4, 4)
    for t in range(2):
        a(f"{MF16} {tr(t)}, {AR}, {Fr(t)}, 0")
        a(f"{MF16} {ti(t)}, {AR}, {NFi(t)}, 0")
    for t in range(2):
        a(f"{MF16} {tr(t)}, {AI}, {Fi(t)}, {tr(t)}")
        a(f"{MF16} {ti(t)}, {AI}, {Fr(t)}, {ti(t)}")
    if SPREAD: a("s_barrier")
    a("s_nop 3")
    a(f"v_and_b32 v{AD}, 15, v1")
    a(f"v_mul_u32_u24 v{AD}, 144, v{AD}")
    a(f"v_lshrrev_b32 v{AD+1}, 4, v1")
    a(f"v_lshl_add_u32 v{AD+2}, v{AD+1}, 3, v{AD}")
    a("s_lshl_b32 s46, s41, 5")
    a(f"s_add_u32 s46, s46, {XB}")
    a(f"v_add_u32 v{AD+2}, s46, v{AD+2}")
    a(f"v_lshl_add_u32 v{AD+3}, v{AD+1}, 4, v{AD}")
    a(f"v_add_u32 v{AD+3}, {XB}, v{AD+3}")
    a("s_nop 1")
    for t in range(2):
        cmul(TR+4*t, TI+4*t, TW2R+8*t, TW2R+8*t+4, O1, O1+4)
        packRI(t)
        a(f"ds_write_b64 v{AD+2}, {vr(PK+2*t,2)} offset:{t*16*144}")
        a(f"ds_write_b64 v{AD+2}, {vr(PK+4+2*t,2)} offset:{4608+t*16*144}")
    a("s_waitcnt lgkmcnt(0)")
    dg(a, "p2", 5)
    a("s_barrier")
    DR = 60
    for part in range(2):
        for t in range(2):
            for ks in range(2):
                a(f"ds_read_b128 {vr(DR+4*(part*4+t*2+ks),4)}, v{AD+3} offset:{part*4608+t*16*144+ks*64}")
    A1, A2, NA2 = P, Q, NQ
    br = lambda t, ks: vr(DR+4*(t*2+ks), 4); bi = lambda t, ks: vr(DR+4*(4+t*2+ks), 4)
    a("s_waitcnt lgkmcnt(0)")
    for step in range(4):
        ks = step % 2
        for t in range(2):
            cm = "0" if step == 0 else tr(t); cp = "0" if step == 0 else ti(t)
            if step < 2:
                a(f"{MF16} {tr(t)}, {A1(ks)}, {br(t,ks)}, {cm}")
                a(f"{MF16} {ti(t)}, {A2(ks)}, {br(t,ks)}, {cp}")
            else:
                a(f"{MF16} {tr(t)}, {NA2(ks)}, {bi(t,ks)}, {cm}")
                a(f"{MF16} {ti(t)}, {A1(ks)}, {bi(t,ks)}, {cp}")
    a("s_nop 7")
    a("s_cmp_eq_u32 s40, 0")
    a(f"s_cbranch_scc1 {N}_avg")
    a("s_cmp_eq_u32 s40, 224")
    a(f"s_cbranch_scc0 {N}_noavg")
    a(f"{N}_avg:")
    for i in range(8):
        a(f"v_add_f32 v{TR+i}, v{TR+i}, v{TI+i}")
        a(f"v_mul_f32 v{TR+i}, 0.5, v{TR+i}")
        a(f"v_mov_b32 v{TI+i}, v{TR+i}")
    a(f"{N}_noavg:")
    for t in range(2):
        a(f"v_cvt_pk_bf16_f32 v{PK+2*t}, v{TR+4*t}, v{TR+4*t+1}")
        a(f"v_cvt_pk_bf16_f32 v{PK+2*t+1}, v{TR+4*t+2}, v{TR+4*t+3}")
        a(f"v_cvt_pk_bf16_f32 v{PK+4+2*t}, v{TI+4*t}, v{TI+4*t+1}")
        a(f"v_cvt_pk_bf16_f32 v{PK+4+2*t+1}, v{TI+4*t+2}, v{TI+4*t+3}")
    a("v_lshlrev_b32 v2, 3, v1")
    a("s_lshl_b32 s46, s41, 10")
    a("s_lshl_b32 s47, s40, 12")
    a("s_add_u32 s47, s47, s46")
    a(f"s_add_u32 s47, s47, {UT}")
    a("s_lshl_b32 s48, s43, 12")
    a("s_add_u32 s48, s48, s46")
    a(f"s_add_u32 s48, s48, {UT}")
    for t in range(2):
        a(f"buffer_store_dwordx2 {vr(PK+2*t,2)}, v2, {ws}, s47 offen offset:{t*512}{SC}")
        a(f"buffer_store_dwordx2 {vr(PK+4+2*t,2)}, v2, {ws}, s48 offen offset:{t*512}{SC}")
    a("s_setprio 0")
    ST.n = 6; ST.stamp()
    dg(a, "p2", 6)
    a("s_barrier")
    a("s_waitcnt vmcnt(0)")
    dg(a, "p2", 7)
    a("s_barrier")
    dg(a, "p2", 8)
    a("s_cmp_lg_u32 s22, 8")
    a(f"s_cbranch_scc1 {N}_fftd")
    a("s_lshl_b32 s50, s40, 2")
    a(f"s_add_u32 s50, s50, {FU}")
    signal(a, 50)
    a(f"{N}_fftd:")
    if not SPREAD:
        for i in range(3): a("s_barrier")
    a(f"s_branch {N}_fftmb")
    a(f"{N}_nofft0:")
    p1_side_signal(a, N + "b", 0)
    for i in range(9): a("s_barrier")
    a(f"{N}_fftmb:")
    a("s_barrier")
    a(f"v_mov_b32 v2, {FLAG}")
    a("ds_read_b32 v2, v2")
    a("s_waitcnt lgkmcnt(0)")
    a("v_readfirstlane_b32 s56, v2")
    a("s_nop 3")
    a("s_cmp_eq_u32 s56, 1")
    a(f"s_cbranch_scc0 {N}_fftok")
    for i in range(11): a("s_barrier")
    a(f"{N}_fftok:")

WREG = 0
TREG = 131072
def p3_decode(a):
    a("s_and_b32 s60, s2, 7")
    a("s_lshr_b32 s45, s2, 3")
    a("s_and_b32 s48, s60, 1")
    a("s_lshr_b32 s46, s60, 1")
    a("s_lshl_b32 s46, s46, 3")
    a("s_and_b32 s47, s45, 7")
    a("s_add_u32 s46, s46, s47")
    a("s_lshr_b32 s49, s45, 3")

def p3_wsetup(a, N):
    SW = 28
    VW = 12
    a("s_and_b32 s60, s2, 7")
    a("s_and_b32 s62, s60, 1")
    a("s_lshr_b32 s63, s2, 6")
    a("s_sub_u32 s61, s22, 4")
    a("s_getpc_b64 s[56:57]")
    a("s_add_u32 s56, s56, HTAB@rel32@lo+4")
    a("s_addc_u32 s57, s57, HTAB@rel32@hi+12")
    a("s_cmp_eq_u32 s62, 1")
    a("s_cselect_b32 s58, s56, s8")
    a("s_cselect_b32 s59, s57, s9")
    srd(a, SW, 58, 59, 448*896)
    a("v_lshrrev_b32 v8, 4, v1")
    a("v_mul_u32_u24 v9, 896, v8")
    a("v_lshlrev_b32 v10, 2, v8")
    a("v_and_b32 v11, 15, v1")
    a("v_xor_b32 v10, v10, v11")
    a(f"v_lshl_add_u32 v{VW}, v10, 4, v9")
    a("s_mul_i32 s57, s63, 224")
    a(f"v_add_u32 v{VW}, s57, v{VW}")
    a("s_cmp_eq_u32 s62, 1")
    a(f"s_cbranch_scc1 {N}_wrB")
    a("s_lshr_b32 s56, s61, 1")
    a("s_mul_i32 s56, s56, 28")
    a("s_and_b32 s57, s61, 1")
    a("s_lshl_b32 s58, s57, 4")
    a("s_add_u32 s56, s56, s58")
    a("s_add_u32 s64, s56, 0")
    a("s_add_u32 s65, s56, 4")
    a("s_add_u32 s66, s56, 8")
    a("s_add_u32 s67, s56, 12")
    a("s_cmp_eq_u32 s57, 1")
    a("s_cselect_b32 s67, s66, s67")
    a("s_mov_b32 s68, 56")
    a(f"s_branch {N}_wrd")
    a(f"{N}_wrB:")
    a("s_lshl_b32 s56, s61, 4")
    for ii in range(4): a(f"s_add_u32 s{64+ii}, s56, {4*ii}")
    a("s_mov_b32 s68, 64")
    a(f"{N}_wrd:")
    for ii in range(4): a(f"s_mulk_i32 s{64+ii}, 896")
    a("s_mulk_i32 s68, 896")
    a("s_lshl_b32 s69, s61, 12")

def p3_wissue(a, pair_s):
    for cc in range(2):
        a(f"s_lshl_b32 s56, s{pair_s}, 1")
        if cc: a("s_add_u32 s56, s56, 1")
        a("s_mul_i32 s57, s56, s68")
        a("s_lshl_b32 s58, s56, 14")
        a("s_add_u32 s58, s58, s69")
        for ii in range(4):
            a(f"s_add_u32 m0, s58, {WREG + ii*1024}")
            a(f"s_add_u32 s59, s57, s{64+ii}")
            a(f"buffer_load_dwordx4 v12, s[28:31], s59 offen lds")

def p3_loader(a, N, ST):
    VT = 10
    a("s_sub_u32 s51, s22, 8")
    a("s_cmp_eq_u32 s48, 1")
    a(f"s_cbranch_scc1 {N}_tB")
    a("s_lshl_b32 s56, s46, 1")
    a("s_lshr_b32 s57, s51, 1")
    a("s_add_u32 s56, s56, s57")
    a("s_lshl_b32 s56, s56, 4")
    a("s_and_b32 s57, s51, 1")
    a("s_add_u32 s56, s56, s57")
    a("s_lshl_b32 s56, s56, 11")
    a(f"s_add_u32 s56, s56, {OF}")
    a(f"v_lshlrev_b32 v{VT}, 4, v1")
    a("s_movk_i32 s57, 4096")
    a("s_movk_i32 s58, 1024")
    a(f"s_branch {N}_tD")
    a(f"{N}_tB:")
    a("v_lshrrev_b32 v2, 3, v1")
    a("v_bfe_u32 v3, v1, 4, 1")
    a("v_lshlrev_b32 v3, 2, v3")
    a("v_and_b32 v4, 7, v1")
    a("v_xor_b32 v3, v3, v4")
    a("v_lshlrev_b32 v3, 4, v3")
    a(f"v_lshl_add_u32 v{VT}, v2, 12, v3")
    a("s_lshl_b32 s56, s51, 16")
    a("s_lshl_b32 s57, s46, 7")
    a("s_add_u32 s56, s56, s57")
    a(f"s_add_u32 s56, s56, {UT}")
    a(f"s_mov_b32 s57, {64*4096}")
    a(f"s_mov_b32 s58, {8*4096}")
    a(f"{N}_tD:")
    a("s_lshl_b32 s59, s51, 11")
    a("s_mov_b32 s45, 0")
    a("s_cmp_eq_u32 s48, 1")
    a(f"s_cbranch_scc0 {N}_p3A")
    a("v_lshlrev_b32 v4, 2, v1")
    a(f"v_add_u32 v4, {FU}, v4")
    for i in range(1, 4): a(f"v_add_u32 v{4+i}, {256*i}, v4")
    a("s_mov_b32 s52, -1")
    a("s_mov_b32 s53, 1")
    poll(a, [4, 5, 6, 7], [None, None, None, "s[52:53]"])
    a("s_mov_b32 s45, -1")
    a(f"{N}_p3A:")
    a("s_lshr_b32 s50, s46, 1")
    a("s_lshl_b32 s50, s50, 7")
    a(f"s_add_u32 s50, s50, {FO}")
    a("v_and_b32 v5, 15, v1")
    a("v_lshlrev_b32 v5, 2, v5")
    a("v_add_u32 v5, s50, v5")
    def need(c):
        n = uid()
        a("s_mov_b32 s60, 0")
        a(f"nq{n}:")
        a(f"s_and_b32 s47, s45, {3 << (2*c)}")
        a(f"s_cmp_eq_u32 s47, {3 << (2*c)}")
        a(f"s_cbranch_scc1 nqd{n}")
        a(f"buffer_load_dword v7, v5, {ws}, 0 offen sc1")
        a("s_waitcnt vmcnt(0)")
        a("v_cmp_eq_u32 vcc, s23, v7")
        a("s_nop 1")
        a("s_mov_b32 s45, vcc_lo")
        a("s_add_u32 s60, s60, 1")
        a(f"s_cmp_lt_u32 s60, {SPIN}")
        a(f"s_cbranch_scc1 nq{n}")
        a(f"nqd{n}:")
    def tok(c):
        slot = c % 4
        need(c)
        a(f"s_add_u32 m0, s59, {TREG + slot*8192}")
        a("s_add_u32 s62, s56, s58")
        a(f"buffer_load_dwordx4 v{VT}, {ws}, s56 offen{SC} lds")
        a(f"s_add_u32 m0, s59, {TREG + slot*8192 + 1024}")
        a("s_nop 0")
        a(f"buffer_load_dwordx4 v{VT}, {ws}, s62 offen{SC} lds")
        a("s_add_u32 s56, s56, s57")
    for c in range(4): tok(c)
    issued = 4
    for c in range(8):
        a(f"s_waitcnt vmcnt({2 * (issued - (c + 1))})")
        a("s_barrier")
        if c >= 2 and issued < 8:
            tok(issued); issued += 1
    fin(a, ST)

def p3_compute(a, N, ST):
    SO = 32
    ACC3 = 32
    TF = [48, 52, 64]; WF3 = [56, 60, 68]
    WA3, TA = 4, 5
    srd(a, SO, 16, 17, 2048*1792)
    a("v_lshrrev_b32 v2, 5, v1")
    a("v_bfe_u32 v3, v1, 2, 2")
    a("v_lshl_add_u32 v2, v2, 2, v3")
    a("v_lshlrev_b32 v16, 8, v2")
    a("v_bfe_u32 v15, v1, 4, 1")
    a("v_lshlrev_b32 v15, 5, v15")
    a("v_and_b32 v17, 3, v1")
    a("v_lshl_add_u32 v15, v17, 3, v15")
    a("s_lshr_b32 s65, s22, 1")
    a("s_mul_i32 s65, s65, 56")
    a("v_add_u32 v17, s65, v15")
    a("v_lshrrev_b32 v18, 4, v17")
    a("v_lshlrev_b32 v19, 2, v3")
    a("v_xor_b32 v18, v18, v19")
    a("v_and_b32 v17, 15, v17")
    a("v_lshl_add_u32 v17, v18, 4, v17")
    a(f"v_add_u32 v{WA3}, v16, v17")
    a("s_and_b32 s65, s22, 1")
    a("s_cmp_eq_u32 s48, 1")
    a(f"s_cbranch_scc1 {N}_raB")
    a("s_lshl_b32 s65, s65, 12")
    a(f"v_lshlrev_b32 v{TA}, 4, v1")
    a(f"v_add_u32 v{TA}, s65, v{TA}")
    a(f"s_branch {N}_radone")
    a(f"{N}_raB:")
    a("s_lshl_b32 s65, s65, 6")
    a("v_add_u32 v17, s65, v15")
    a("v_lshrrev_b32 v18, 4, v17")
    a("v_bfe_u32 v19, v2, 1, 1")
    a("v_lshlrev_b32 v19, 2, v19")
    a("v_xor_b32 v18, v18, v19")
    a("v_and_b32 v17, 15, v17")
    a("v_lshl_add_u32 v17, v18, 4, v17")
    a(f"v_lshl_add_u32 v{TA}, v2, 7, v17")
    a(f"{N}_radone:")
    a(f"v_add_u32 v{TA}, {TREG}, v{TA}")
    for r in range(ACC3, ACC3+16):
        a(f"v_mov_b32 v{r}, 0")
    def main(partB):
        nch = 7 if partB else 8
        nst = nch * 4
        base = [0]
        def reads(n):
            c, kk = n // 4, n % 4
            want = (c // 4) * 65536
            if want != base[0]:
                a(f"v_add_u32 v{WA3}, {want - base[0]:#x}, v{WA3}")
                base[0] = want
            woff = c * 16384 - want
            toff = (c % 4) * 8192
            b = n % 3
            if partB:
                a(f"ds_read_b64_tr_b16 {vr(TF[b],2)}, v{TA} offset:{toff + kk*16*128}")
                a(f"ds_read_b64_tr_b16 {vr(TF[b]+2,2)}, v{TA} offset:{toff + kk*16*128 + 8*128}")
            else:
                a(f"ds_read_b128 {vr(TF[b],4)}, v{TA} offset:{toff + kk*1024}")
            a(f"ds_read_b64_tr_b16 {vr(WF3[b],2)}, v{WA3} offset:{woff + kk*16*256}")
            a(f"ds_read_b64_tr_b16 {vr(WF3[b]+2,2)}, v{WA3} offset:{woff + kk*16*256 + 8*256}")
        nr = 4 if partB else 3
        a("s_barrier")
        dg(a, "p3", 3)
        reads(0); reads(1)
        for n in range(nst):
            b = n % 3
            if n + 2 < nst:
                if (n + 2) % 4 == 0:
                    a("s_barrier")
                reads(n + 2)
                a(f"s_waitcnt lgkmcnt({2*nr})")
            elif n + 1 < nst:
                a(f"s_waitcnt lgkmcnt({nr})")
            else:
                a("s_waitcnt lgkmcnt(0)")
            d = vr(ACC3, 16)
            a(f"{MF32} {d}, {vr(WF3[b],4)}, {vr(TF[b],4)}, {d}")
        if partB: a("s_barrier")
        a("s_nop 15")
    a("s_cmp_eq_u32 s48, 1")
    a(f"s_cbranch_scc1 {N}_mainB")
    main(False)
    a(f"s_branch {N}_epi")
    a(f"{N}_mainB:")
    main(True)
    a(f"{N}_epi:")
    dg(a, "p3", 4)
    ST.n = 9; ST.stamp()
    dbgt(a, 8)
    a("s_cmp_eq_u32 s48, 1")
    a(f"s_mov_b32 s65, {f32bits(2.0/(2048*448)):#x}")
    a("s_cselect_b32 s65, s65, 1.0")
    for i in range(16):
        a(f"v_mul_f32 v{ACC3+i}, s65, v{ACC3+i}")
    for i in range(8):
        a(f"v_cvt_pk_bf16_f32 v{48+i}, v{ACC3+2*i}, v{ACC3+2*i+1}")
    a("s_barrier")
    a("v_and_b32 v2, 31, v1")
    a("s_and_b32 s65, s22, 1")
    a("s_lshl_b32 s65, s65, 5")
    a("v_add_u32 v2, s65, v2")
    a("v_mul_u32_u24 v2, 240, v2")
    a("v_lshrrev_b32 v3, 5, v1")
    a("v_lshl_add_u32 v2, v3, 3, v2")
    a("s_lshr_b32 s65, s22, 1")
    a("s_mul_i32 s65, s65, 56")
    a("v_add_u32 v2, s65, v2")
    for jp in range(3):
        a(f"ds_write_b64 v2, {vr(48+2*jp,2)} offset:{jp*16}")
    a("s_mov_b32 exec_hi, 0")
    a(f"ds_write_b64 v2, {vr(48+6,2)} offset:48")
    a("s_mov_b32 exec_hi, -1")
    a("s_waitcnt lgkmcnt(0)")
    a("s_barrier")
    a("s_mul_i32 s65, s48, 896")
    a("s_mul_i32 s66, s49, 224")
    a("s_add_u32 s65, s65, s66")
    def rb(it):
        a("s_lshl_b32 s66, s46, 6")
        a(f"v_add_u32 v4, {512*it}, v0")
        a("v_mul_u32_u24 v5, 4682, v4")
        a("v_lshrrev_b32 v5, 16, v5")
        a("v_mul_u32_u24 v6, 14, v5")
        a("v_sub_u32 v6, v4, v6")
        a("v_mul_u32_u24 v7, 240, v5")
        a("v_lshl_add_u32 v7, v6, 4, v7")
        a(f"ds_read_b128 {vr(32+4*it,4)}, v7")
        a("v_add_u32 v5, s66, v5")
        a("s_cmp_eq_u32 s48, 0")
        a(f"s_cbranch_scc1 {N}_tk{it}")
        a("v_and_b32 v8, 3, v5")
        a("v_bfe_u32 v9, v5, 6, 2")
        a("v_lshl_add_u32 v8, v9, 2, v8")
        a("v_lshrrev_b32 v9, 9, v5")
        a("v_lshl_add_u32 v8, v9, 4, v8")
        a("v_lshlrev_b32 v8, 5, v8")
        a("v_bfe_u32 v9, v5, 8, 1")
        a("v_lshl_add_u32 v8, v9, 4, v8")
        a("v_bfe_u32 v9, v5, 2, 4")
        a("v_add_u32 v5, v8, v9")
        a(f"{N}_tk{it}:")
        a("v_mul_u32_u24 v5, 1792, v5")
        a(f"v_lshl_add_u32 v{20+it}, v6, 4, v5")
    rb(0)
    a("s_waitcnt lgkmcnt(0)")
    a(f"buffer_store_dwordx4 {vr(32,4)}, v20, s[{SO}:{SO+3}], s65 offen")
    a("v_cmp_gt_u32 vcc, 384, v0")
    a("s_and_saveexec_b64 s[66:67], vcc")
    a(f"s_cbranch_execz {N}_fin")
    rb(1)
    a("s_waitcnt lgkmcnt(0)")
    a(f"buffer_store_dwordx4 {vr(36,4)}, v21, s[{SO}:{SO+3}], s65 offen")
    a(f"{N}_fin:")
    if DBGT:
        a("s_mov_b64 exec, -1")
        a("s_waitcnt vmcnt(0)")
        dbgt(a, 9)
        dbgt_dump(a)
    fin(a, ST)
```
